```python
import torch

def _softmax(x, axis=-1):
    return torch.softmax(x, dim=axis)
def _gelu(x):
    return torch.nn.functional.gelu(x, approximate="tanh")
def _silu(x):
    return torch.nn.functional.silu(x)
def _sigmoid(x):
    return torch.sigmoid(x)
def _layernorm(x, axis=-1, eps=1e-5):
    m = x.mean(dim=axis, keepdim=True)
    v = x.var(dim=axis, keepdim=True, unbiased=False)
    return (x - m) / torch.sqrt(v + eps)
def _scatter_add(tgt, idx, src, axis=0):
    return tgt.clone().index_add_(axis, idx, src)
def _segment_sum(src, seg, n):
    out = torch.zeros((n,) + src.shape[1:], dtype=src.dtype)
    return out.index_add_(0, seg, src)
def _pad(x, pw):
    flat = tuple(v for pair in reversed(pw) for v in pair)
    return torch.nn.functional.pad(x, flat)

kernel_name = 'sequential_preLN__ssm_conv_s4__glu_gated_reglu__prompt'

def setup_inputs():

    _w = (lambda a: (lambda t: t.to(torch.bfloat16) if t.is_floating_point() else t)(torch.as_tensor(a)))
    def _A_setup():
        B, L, D, N = 1, 2048, 640, 192
        A_re = -(lambda _x: torch.exp(torch.as_tensor(_x)))((lambda *s: torch.randn(*s, dtype=torch.bfloat16) * 3.2)(D, N))
        A_im = torch.pi * (lambda *s: torch.randn(*s, dtype=torch.bfloat16) * 0.05)(D, N)
        B_re = (lambda *s: torch.randn(*s, dtype=torch.bfloat16) * 0.05)(D, N)
        B_im = (lambda *s: torch.randn(*s, dtype=torch.bfloat16) * 0.1)(D, N)
        C_re = (lambda *s: torch.randn(*s, dtype=torch.bfloat16) * 0.1)(D, N)
        C_im = (lambda *s: torch.randn(*s, dtype=torch.bfloat16) * 0.05)(D, N)
        log_dt = (lambda *s: torch.randn(*s, dtype=torch.bfloat16) * 0.05)(D) * 0.5 - 4.0
        Dskip = (lambda *s: torch.randn(*s, dtype=torch.bfloat16) * 0.05)(D)
        return {
            "u": _w((lambda *s: torch.randn(*s, dtype=torch.bfloat16) * 0.05)(B, L, D)),
            "A_re": _w(A_re),
            "A_im": _w(A_im),
            "B_re": _w(B_re),
            "B_im": _w(B_im),
            "C_re": _w(C_re),
            "C_im": _w(C_im),
            "log_dt": _w(log_dt),
            "Dskip": _w(Dskip),
        }
    _A_in = _A_setup()

    def _B_setup():
        B, S, D, F = 1, 2048, 640, 1536
        return {
            "x": _w((lambda *s: torch.randn(*s, dtype=torch.bfloat16) * 0.05)(B, S, D)),
            "W_gate": _w((lambda *s: torch.randn(*s, dtype=torch.bfloat16) * 0.4)(D, F) * (2.0 / D) ** 0.5),
            "W_up": _w((lambda *s: torch.randn(*s, dtype=torch.bfloat16) * 0.4)(D, F) * (2.0 / D) ** 0.5),
            "W_down": _w((lambda *s: torch.randn(*s, dtype=torch.bfloat16) * 0.4)(F, D) * (1.0 / F) ** 0.5),
        }
    _B_in = _B_setup()

    return {
        "A_u": _A_in["u"],
        "A_A_re": _A_in["A_re"],
        "A_A_im": _A_in["A_im"],
        "A_B_re": _A_in["B_re"],
        "A_B_im": _A_in["B_im"],
        "A_C_re": _A_in["C_re"],
        "A_C_im": _A_in["C_im"],
        "A_log_dt": _A_in["log_dt"],
        "A_Dskip": _A_in["Dskip"],
        "B_x": _B_in["x"],
        "B_W_gate": _B_in["W_gate"],
        "B_W_up": _B_in["W_up"],
        "B_W_down": _B_in["W_down"],
    }

def reference(A_u, A_A_re, A_A_im, A_B_re, A_B_im, A_C_re, A_C_im, A_log_dt, A_Dskip, B_x, B_W_gate, B_W_up, B_W_down):
    def _A_ref(u, A_re, A_im, B_re, B_im, C_re, C_im, log_dt, Dskip):
        Bsz, L, D = u.shape
        dt = torch.exp(log_dt)[:, None]
        A = A_re + 1j * A_im
        Bc = B_re + 1j * B_im
        Cc = C_re + 1j * C_im
        logdA = dt * A
        dB = dt * Bc
        l = (lambda x, dt: x.to(dt))(torch.arange(L), A_re.dtype)
        P = torch.exp(logdA[:, :, None] * l[None, None, :])
        K = torch.einsum("dn,dnl,dn->dl", Cc, P, dB).real
        L2 = 2 * L
        Kp = _pad(K, ((0, 0), (0, L)))
        up = (lambda x, *d: x.permute(*d))(u, 0, 2, 1)
        up = _pad(up, ((0, 0), (0, 0), (0, L)))
        Kf = (lambda x, axes=(-2,-1): torch.fft.rfft2(x.float(), dim=axes))(Kp[:, None, :], axes=(-2, -1))
        Uf = (lambda x, axes=(-2,-1): torch.fft.rfft2(x.float(), dim=axes))(up[:, :, None, :], axes=(-2, -1))
        Yf = Uf * Kf[None, :, :, :]
        y = (lambda x, s, axes=(-2,-1): torch.fft.irfft2(x, s=s, dim=axes).to(torch.bfloat16))(Yf, (1, L2), axes=(-2, -1))[:, :, 0, :L]
        y = (lambda x, *d: x.permute(*d))(y, 0, 2, 1) + u * Dskip[None, None, :]
        return y

    def _B_ref(x, W_gate, W_up, W_down):
        gate = torch.einsum("bsd,df->bsf", x, W_gate)
        up = torch.einsum("bsd,df->bsf", x, W_up)
        gate = gate * (lambda x, dt: x.to(dt))(gate > 0, gate.dtype)
        h = gate * up
        return torch.einsum("bsf,fd->bsd", h, W_down)

    x = A_u
    h = x + _A_ref(_layernorm(x, axis=-1), A_A_re, A_A_im, A_B_re, A_B_im, A_C_re, A_C_im, A_log_dt, A_Dskip)
    h2 = h + _B_ref(_layernorm(h, axis=-1), B_W_gate, B_W_up, B_W_down)
    return h2
```

```python
import re

_REG = re.compile(r'(?<![\w.])([vas])(?:(\d+)\b|\[(\d+):(\d+)\])')
TRANS = ('v_exp_f32', 'v_log_f32', 'v_rcp_f32', 'v_rsq_f32', 'v_sqrt_f32', 'v_sin_f32', 'v_cos_f32', 'v_rcp_iflag_f32')

def regs_of(tok):
    out = set()
    t = tok.strip()
    for m in _REG.finditer(t):
        f = m.group(1)
        if m.group(2) is not None:
            out.add((f, int(m.group(2))))
        else:
            for i in range(int(m.group(3)), int(m.group(4)) + 1):
                out.add((f, i))
    if re.search(r'\bvcc\b', t): out |= {('s', 'vcc_lo'), ('s', 'vcc_hi')}
    if re.search(r'\bvcc_lo\b', t): out.add(('s', 'vcc_lo'))
    if re.search(r'\bvcc_hi\b', t): out.add(('s', 'vcc_hi'))
    if re.search(r'\bexec\b', t): out |= {('s', 'exec_lo'), ('s', 'exec_hi')}
    if re.search(r'\bexec_lo\b', t): out.add(('s', 'exec_lo'))
    if re.search(r'\bexec_hi\b', t): out.add(('s', 'exec_hi'))
    if re.search(r'\bm0\b', t): out.add(('s', 'm0'))
    return out

def split_ops(s):
    out, depth, cur = [], 0, ''
    for ch in s:
        if ch in '[(': depth += 1
        if ch in '])': depth -= 1
        if ch == ',' and depth == 0:
            out.append(cur.strip()); cur = ''
        else:
            cur += ch
    if cur.strip(): out.append(cur.strip())
    return out

class Ins:
    __slots__ = ('text', 'op', 'kind', 'dst', 'src', 'srcA', 'srcB', 'srcC', 'passes', 'states', 'dpp', 'lds_dma', 'wide_store',
                 'label', 'target', 'uncond', 'opsel_dst', 'data')
    def __init__(self, text):
        self.text = text
        self.label = None; self.target = None; self.uncond = False
        self.dst = set(); self.src = set(); self.srcA = self.srcB = self.srcC = set()
        self.passes = 0; self.states = 1; self.dpp = False; self.lds_dma = False; self.wide_store = False
        self.opsel_dst = False; self.data = set()
        t = text.split(';')[0].strip()
        if t.endswith(':'):
            self.kind = 'label'; self.label = t[:-1]; self.op = ''; self.states = 0; return
        if t.startswith('.') or not t:
            self.kind = 'dir'; self.op = ''; self.states = 0; return
        parts = t.split(None, 1)
        op = parts[0]; self.op = op
        rest = parts[1] if len(parts) > 1 else ''
        ops = split_ops(rest)
        mods = ''
        if ops:
            last = ops[-1]
            m = re.match(r'^(\S+(?:\[[^\]]*\])?)\s+(.*)$', last)
            if m and not op.startswith('s_waitcnt'):
                ops[-1] = m.group(1); mods = m.group(2)
        R = [regs_of(o) for o in ops]
        base = re.sub(r'_(e32|e64|dpp|sdwa)$', '', op)
        if op.startswith('v_mfma'):
            self.kind = 'mfma'
            self.dst = R[0]; self.srcA = R[1]; self.srcB = R[2]; self.srcC = R[3]
            self.src = R[1] | R[2] | R[3]
            self.passes = 8 if '32x32x16' in op else 4 if '16x16x32' in op else None
            assert self.passes, op
        elif op.startswith('v_'):
            self.kind = 'valu'
            if base in TRANS: self.kind = 'trans'
            if base.startswith('v_dot'): self.kind = 'dot'
            self.dpp = op.endswith('_dpp') or 'row_' in mods or 'quad_perm' in mods or 'wave_' in mods
            if 'dst_sel' in mods or ('op_sel' in mods and not base.startswith('v_pk_')): self.opsel_dst = True
            if base.startswith('v_cmp'):
                self.dst = R[0]; self.src = set().union(*R[1:])
                if base.startswith('v_cmpx'): self.dst |= regs_of('exec')
            elif base in ('v_add_co_u32', 'v_sub_co_u32', 'v_subrev_co_u32', 'v_addc_co_u32', 'v_subb_co_u32', 'v_mad_u64_u32', 'v_div_scale_f32'):
                self.dst = R[0] | R[1]; self.src = set().union(*R[2:])
            elif base.startswith('v_permlane') or base == 'v_swap_b32':
                self.dst = R[0] | R[1]; self.src = R[0] | R[1]
            elif base == 'v_nop':
                pass
            else:
                self.dst = R[0]; self.src = set().union(*R[1:]) if len(R) > 1 else set()
                if base in ('v_fmac_f32', 'v_dot2c_f32_bf16', 'v_pk_fmac_f16', 'v_writelane_b32') or self.dpp or 'dst_sel' in mods:
                    self.src |= R[0]
                if base == 'v_cndmask_b32' and len(R) == 3: self.src |= regs_of('vcc')
            if self.kind == 'dot':
                self.srcC = R[3] if len(R) > 3 else R[0]
                self.srcA = R[1]; self.srcB = R[2]
        elif op.startswith('ds_'):
            self.kind = 'ds'
            if op.startswith('ds_read') or op.startswith('ds_bpermute') or op.startswith('ds_permute') or op.startswith('ds_swizzle') or '_rtn' in op:
                self.dst = R[0]; self.src = set().union(*R[1:])
                if 'd16' in op: self.src |= R[0]
            else:
                self.src = set().union(*R)
            if 'addtid' in op: self.lds_dma = True
        elif op.startswith('buffer_') or op.startswith('global_'):
            self.kind = 'vmem'
            allm = mods + ' ' + (ops[-1] if ops else '')
            if re.search(r'\blds\b', mods) or '_lds_' in op:
                self.lds_dma = True; self.src = set().union(*R) | regs_of('m0')
            elif '_load' in op:
                self.dst = R[0]; self.src = set().union(*R[1:])
                if 'd16' in op: self.src |= R[0]
            elif 'buffer_wbl2' in op or 'buffer_inv' in op:
                pass
            else:
                self.src = set().union(*R)
                if op.startswith('buffer_'): self.data = R[0]
                else: self.data = R[1]
                if 'atomic' in op and re.search(r'\bsc0\b', mods): self.dst = R[0]
                if op.endswith('x4') or op.endswith('x3'): self.wide_store = True
        elif op.startswith('s_'):
            self.kind = 'salu'
            if op == 's_nop':
                self.states = int(ops[0], 0) + 1
            elif op in ('s_branch',):
                self.target = ops[0]; self.uncond = True
            elif op.startswith('s_cbranch'):
                self.target = ops[0]
            elif op == 's_endpgm':
                self.uncond = True
            elif op.startswith('s_cmp') or op.startswith('s_bitcmp') or op in ('s_waitcnt', 's_barrier', 's_setprio', 's_sleep'):
                self.src = set().union(*R) if R else set()
            elif op.startswith('s_load') or op.startswith('s_memtime') or op.startswith('s_memrealtime') or op.startswith('s_buffer_load'):
                self.kind = 'smem'; self.dst = R[0]; self.src = set().union(*R[1:]) if len(R) > 1 else set()
            else:
                self.dst = R[0] if R else set(); self.src = set().union(*R[1:]) if len(R) > 1 else set()
                if 'saveexec' in op: self.dst |= regs_of('exec')
        else:
            raise ValueError('unknown op ' + text)

def is_valu(i): return i.kind in ('valu', 'trans', 'dot')
def vg(s): return {r for r in s if r[0] in 'va'}
def sg(s): return {r for r in s if r[0] == 's'}

def need(p, c):
    n = 0
    if is_valu(p):
        pv = vg(p.dst); ps = sg(p.dst)
        if c.kind == 'mfma' and pv & c.src: n = max(n, 3 if p.kind == 'dot' else 2)
        if p.kind == 'trans' and is_valu(c) and c.kind != 'trans' and pv & c.src: n = max(n, 1)
        if p.kind == 'trans' and c.kind in ('ds', 'vmem') and pv & c.src: n = max(n, 1)
        if is_valu(c):
            if ps & c.src:
                n = max(n, 4 if c.op.startswith(('v_readlane', 'v_writelane')) else 2)
            if c.dpp and pv & c.src: n = max(n, 2)
            if c.op.startswith(('v_readlane', 'v_readfirstlane')) and pv & c.src: n = max(n, 1)
            if c.op.startswith('v_permlane') and pv & c.src: n = max(n, 2)
            if p.opsel_dst and pv & (c.src | c.dst): n = max(n, 1)
            if ('s', 'exec_lo') in ps or ('s', 'exec_hi') in ps:
                if c.dpp: n = max(n, 5)
                if c.op.startswith(('v_readlane', 'v_readfirstlane', 'v_writelane', 'v_permlane')): n = max(n, 4)
        if c.kind == 'vmem' and ps & c.src: n = max(n, 5)
        if c.kind == 'mfma' and (('s', 'exec_lo') in ps): n = max(n, 4)
        if p.kind == 'dot':
            if c.kind == 'dot' and c.op == p.op:
                if pv & (c.srcA | c.srcB): n = max(n, 3)
            elif pv & (c.src | c.dst) and c.kind in ('valu', 'trans', 'dot', 'ds', 'vmem', 'mfma'):
                n = max(n, 3)
    if p.kind == 'mfma':
        D = p.dst
        k = {4: 0, 8: 1}[p.passes]
        if c.kind == 'mfma':
            if D & c.srcC and not (c.srcC == D and c.passes == p.passes): n = max(n, (6, 10)[k])
            if D & (c.srcA | c.srcB): n = max(n, (8, 12)[k])
            if D & c.dst and not (D & c.srcC): n = max(n, (8, 12)[k])
        elif is_valu(c):
            if D & (c.src | c.dst): n = max(n, (8, 12)[k])
            if p.srcC & c.dst: n = max(n, (3, 7)[k])
        elif c.kind in ('ds', 'vmem'):
            if D & (c.src | c.dst): n = max(n, (8, 12)[k])
    if p.kind == 'salu' and ('s', 'm0') in p.dst and c.lds_dma: n = max(n, 1)
    if p.wide_store and p.data & c.dst:
        n = max(n, 2 if is_valu(c) else 1)
    return n

class Asm:
    def __init__(self):
        self.ins = []
    def __call__(self, text):
        for line in text.split('\n'):
            if line.strip():
                self.ins.append(Ins(line.strip()))
    def label(self, name): self(name + ':')
    def resolve(self):
        ins = self.ins
        MAXD = 14
        changed = True
        rounds = 0
        while changed:
            changed = False; rounds += 1
            labels = {i.label: k for k, i in enumerate(ins) if i.kind == 'label'}
            srcs = {}
            for k, i in enumerate(ins):
                if i.target is not None and i.target in labels:
                    srcs.setdefault(labels[i.target], []).append(k)
            out = []
            add = {}
            for k, c in enumerate(ins):
                if c.kind in ('label', 'dir') or c.kind in ('salu', 'smem'): continue
                worst = 0
                stack = [(k - 1, 0, True)]
                seen = set()
                while stack:
                    j, dist, fall = stack.pop()
                    if j < 0 or dist >= MAXD or (j, dist) in seen: continue
                    seen.add((j, dist))
                    p = ins[j]
                    if fall and p.uncond: continue
                    if p.kind == 'label':
                        for sidx in srcs.get(j, []): stack.append((sidx, dist, False))
                        stack.append((j - 1, dist, True)); continue
                    if p.kind == 'dir':
                        stack.append((j - 1, dist, True)); continue
                    r = need(p, c) - dist
                    if r > worst: worst = r
                    stack.append((j - 1, dist + p.states + add.get(j, 0), True))
                if worst > 0:
                    add[k] = worst
            if add:
                changed = True
                for k, c in enumerate(ins):
                    if k in add:
                        out.append(Ins(f's_nop {add[k]-1}'))
                    out.append(c)
                ins = out
            assert rounds < 10
        self.ins = ins
    def text(self):
        o = []
        for i in self.ins:
            if i.kind == 'label': o.append(i.text)
            else: o.append('    ' + i.text)
        return '\n'.join(o) + '\n'
    def maxreg(self):
        mv = ma = ms = -1
        for i in self.ins:
            for f, n in (i.dst | i.src):
                if not isinstance(n, int): continue
                if f == 'v': mv = max(mv, n)
                elif f == 'a': ma = max(ma, n)
                else: ms = max(ms, n)
        return mv, ma, ms

def vr(b, n=1): return f'v{b}' if n == 1 else f'v[{b}:{b+n-1}]'
def ar(b, n=1): return f'a{b}' if n == 1 else f'a[{b}:{b+n-1}]'
def sr(b, n=1): return f's{b}' if n == 1 else f's[{b}:{b+n-1}]'

def kernel_text(name, a, extra_kd=''):
    a.resolve()
    mv, ma, ms = a.maxreg()
    acc = ((mv + 1 + 3) // 4) * 4
    nfv = acc + ma + 1 if ma >= 0 else mv + 1
    body = f".globl {name}\n.p2align 8\n.type {name},@function\n{name}:\n" + a.text()
    kd = f""".section .rodata,"a"
.p2align 6
.amdhsa_kernel {name}
  .amdhsa_next_free_vgpr {nfv}
  .amdhsa_next_free_sgpr {max(ms+1, 16)}
  .amdhsa_accum_offset {acc}
  .amdhsa_group_segment_fixed_size 0
  .amdhsa_kernarg_size 128
  .amdhsa_user_sgpr_count 2
  .amdhsa_user_sgpr_kernarg_segment_ptr 1
  .amdhsa_system_sgpr_workgroup_id_x 1
{extra_kd}.end_amdhsa_kernel
"""
    return body, kd, (nfv, ms + 1)
```

```python
from asmlib import *
L, D, N, F = 2048, 640, 192, 1536
KA = dict(x=0, Are=8, Aim=16, Bre=24, Bim=32, Cre=40, Cim=48, logdt=56, dskip=64, bx=72, Wg=80, Wu=88, Wd=96, out=104, dbg=112, ws=120)
WS_UP = 0x000000
WS_XT = 0x280000
WS_KW = 0x500000
WS_HT = 0x780000
WS_HID = 0xA00000
WS_CS = 0x1000000
WS_END = 0x1100000
def f2u(x):
    import struct
    return '0x%08x' % struct.unpack('<I', struct.pack('<f', x))[0]
def srd(a, s, base_s, nbytes, off=0):
    if off:
        a(f's_add_u32 s{s}, s{base_s}, {hex(off)}')
        a(f's_addc_u32 s{s+1}, s{base_s+1}, 0')
    else:
        a(f's_mov_b32 s{s}, s{base_s}')
        a(f's_mov_b32 s{s+1}, s{base_s+1}')
    a(f's_mov_b32 s{s+2}, {hex(nbytes)}')
    a(f's_mov_b32 s{s+3}, 0x20000')
def cmul(a, r, x, y):
    a(f'v_pk_mul_f32 {vr(r,2)}, {vr(x,2)}, {vr(y,2)} op_sel:[0,0] op_sel_hi:[0,1]')
    a(f'v_pk_fma_f32 {vr(r,2)}, {vr(x,2)}, {vr(y,2)}, {vr(r,2)} op_sel:[1,1,0] op_sel_hi:[1,0,1] neg_lo:[0,1,0]')
def interleave(*seqs):
    out = []
    seqs = [list(s) for s in seqs]
    while any(seqs):
        for s in seqs:
            if s: out.append(s.pop(0))
    return out
class Rec:
    def __init__(self): self.l = []
    def __call__(self, t):
        for line in t.split('\n'):
            if line.strip(): self.l.append(line.strip())

class Cnt:
    def __init__(self, a, name, maxv):
        self.a, self.name, self.maxv = a, name, maxv
        self.n = 0
        self.done = 0
        self.tags = {}
    def issue(self, tag=None):
        self.n += 1
        if tag is not None: self.tags[tag] = self.n
    def wait(self, tag):
        k = self.tags[tag]
        if k <= self.done: return
        out = min(self.n - k, self.maxv)
        self.a(f's_waitcnt {self.name}({out})')
        self.done = self.n - out
    def wait_all(self):
        if self.done < self.n:
            self.a(f's_waitcnt {self.name}(0)'); self.done = self.n
WS_R2 = 0x1010000
def round_bf16(a, d, s):
    a(f'v_cvt_pk_bf16_f32 v{d}, v{s}, v{s}')
    a(f'v_and_b32 v{d}, 0xffff0000, v{d}')
```

```python
from common import *
import math
NLN = 128
K1_GRID = NLN + 640
HS = 6272
GT = 8 * HS
K1_LDS = GT + 3072
RS = 1296

def round_bf16(a, d, s):
    a(f'v_cvt_pk_bf16_f32 v{d}, v{s}, v{s}')
    a(f'v_and_b32 v{d}, 0xffff0000, v{d}')

def gen_k1():
    a = Asm()
    a(f's_cmp_ge_u32 s2, {K1_GRID}')
    a('s_cbranch_scc1 K1_END')
    a(f's_cmp_ge_u32 s2, {NLN}')
    a('s_cbranch_scc1 K1_KGEN')
    a(f's_load_dwordx2 s[4:5], s[0:1], {KA["x"]}')
    a(f's_load_dwordx2 s[6:7], s[0:1], {KA["ws"]}')
    a('v_lshrrev_b32 v1, 4, v0')
    a('v_and_b32 v2, 15, v0')
    a('v_mul_u32_u24 v3, 1280, v1')
    a('v_lshl_add_u32 v3, v2, 4, v3')
    a('s_mul_i32 s3, s2, 20480')
    a(f'v_mul_u32_u24 v4, {RS}, v1')
    a('v_lshl_add_u32 v4, v2, 4, v4')
    a('s_waitcnt lgkmcnt(0)')
    srd(a, 8, 4, L*D*2)
    X = 8
    for i in range(5):
        a(f'buffer_load_dwordx4 {vr(X+4*i,4)}, v3, s[8:11], s3 offen offset:{256*i}')
    srd(a, 12, 6, 0x280000, WS_UP)
    srd(a, 16, 6, 0x280000, WS_XT)
    a('v_bfe_u32 v30, v0, 4, 1')
    a('v_bfe_u32 v31, v0, 5, 1')
    a('v_bfe_u32 v32, v0, 2, 2')
    a('v_and_b32 v33, 3, v0')
    a('v_lshrrev_b32 v34, 6, v0')
    a('v_mul_u32_u24 v35, 320, v34')
    a('v_lshl_add_u32 v35, v31, 5, v35')
    a('v_lshl_add_u32 v35, v33, 3, v35')
    a('v_lshlrev_b32 v36, 1, v30')
    a('v_lshl_add_u32 v36, v32, 2, v36')
    a(f'v_mul_u32_u24 v36, {RS}, v36')
    a('v_add_u32 v36, v36, v35')
    a('v_lshl_add_u32 v37, v30, 3, v32')
    a(f'v_mul_u32_u24 v37, {RS}, v37')
    a('v_add_u32 v37, v37, v35')
    a('v_mul_u32_u24 v38, 160, v34')
    a('v_lshl_add_u32 v38, v31, 4, v38')
    a('v_add_u32 v38, v38, v2')
    a('v_lshlrev_b32 v38, 5, v38')
    a('v_lshl_add_u32 v38, v30, 4, v38')
    a('s_mov_b32 s20, 0x3f803f80')
    a('v_mov_b32 v5, 0')
    a('v_mov_b32 v6, 0')
    a('v_mov_b32 v28, 0')
    a('v_mov_b32 v29, 0')
    for i in range(5):
        a(f's_waitcnt vmcnt({4-i})')
        a(f'ds_write_b128 v4, {vr(X+4*i,4)} offset:{16*RS+256*i}')
        for j in range(4):
            r = X+4*i+j
            a(f'v_dot2_f32_bf16 v{5 if j&1 else 28}, v{r}, s20, v{5 if j&1 else 28}')
            a(f'v_dot2_f32_bf16 v{6 if j&1 else 29}, v{r}, v{r}, v{6 if j&1 else 29}')
    a('v_add_f32 v5, v5, v28')
    a('v_add_f32 v6, v6, v29')
    for sh in (8, 4, 2, 1):
        a(f'v_add_f32_dpp v5, v5, v5 row_ror:{sh} row_mask:0xf bank_mask:0xf')
        a(f'v_add_f32_dpp v6, v6, v6 row_ror:{sh} row_mask:0xf bank_mask:0xf')
    a(f'v_mul_f32 v5, {f2u(1.0/640)}, v5')
    a(f'v_mul_f32 v6, {f2u(1.0/640)}, v6')
    a('v_fma_f32 v6, -v5, v5, v6')
    a('v_max_f32 v6, 0, v6')
    round_bf16(a, 5, 5)
    round_bf16(a, 6, 6)
    a(f'v_add_f32 v6, {f2u(1e-5)}, v6')
    round_bf16(a, 6, 6)
    a('v_sqrt_f32 v6, v6')
    round_bf16(a, 6, 6)
    a('v_rcp_f32 v6, v6')
    U = 40
    for i in range(5):
        for j in range(4):
            r = X+4*i+j; t = 60 + 2*j
            a(f'v_lshlrev_b32 v{t}, 16, v{r}')
            a(f'v_and_b32 v{t+1}, 0xffff0000, v{r}')
        for j in range(4):
            t = 60 + 2*j
            a(f'v_sub_f32 v{t}, v{t}, v5')
            a(f'v_sub_f32 v{t+1}, v{t+1}, v5')
        for j in range(4):
            t = 60 + 2*j
            a(f'v_cvt_pk_bf16_f32 v{t+1}, v{t}, v{t+1}')
        for j in range(4):
            t = 60 + 2*j
            a(f'v_lshlrev_b32 v{t}, 16, v{t+1}')
            a(f'v_and_b32 v{t+1}, 0xffff0000, v{t+1}')
        for j in range(4):
            t = 60 + 2*j
            a(f'v_mul_f32 v{t}, v{t}, v6')
            a(f'v_mul_f32 v{t+1}, v{t+1}, v6')
        for j in range(4):
            t = 60 + 2*j
            a(f'v_cvt_pk_bf16_f32 v{U+4*i+j}, v{t}, v{t+1}')
        a(f'ds_write_b128 v4, {vr(U+4*i,4)} offset:{256*i}')
    a('s_waitcnt lgkmcnt(0)')
    a('s_barrier')
    for i in range(5):
        a(f'ds_read_b64_tr_b16 {vr(U+4*i,2)}, v36 offset:{64*i}')
        a(f'ds_read_b64_tr_b16 {vr(U+4*i+2,2)}, v36 offset:{64*i+RS}')
    for i in range(5):
        a(f's_waitcnt lgkmcnt({2*(4-i)+2*i})' if False else f's_waitcnt lgkmcnt({8})' if False else '')
        a(f'ds_read_b64_tr_b16 {vr(X+4*i,2)}, v37 offset:{16*RS+64*i}')
        a(f'ds_read_b64_tr_b16 {vr(X+4*i+2,2)}, v37 offset:{16*RS+64*i+4*RS}')
        a('s_waitcnt lgkmcnt(10)' if i < 5 else '')
        a(f'buffer_store_dwordx4 {vr(U+4*i,4)}, v38, s[12:15], s3 offen offset:{1024*i}' if i < 4 else
          f'v_add_u32 v39, 4096, v38\nbuffer_store_dwordx4 {vr(U+4*i,4)}, v39, s[12:15], s3 offen')
    for i in range(5):
        a(f's_waitcnt lgkmcnt({2*(4-i)})')
        a(f'buffer_store_dwordx4 {vr(X+4*i,4)}, v38, s[16:19], s3 offen offset:{1024*i}' if i < 4 else
          f'buffer_store_dwordx4 {vr(X+4*i,4)}, v39, s[16:19], s3 offen')
    a('s_endpgm')

    a.label('K1_KGEN')
    a(f's_load_dwordx8 s[4:11], s[0:1], {KA["Are"]}')
    a(f's_load_dwordx8 s[12:19], s[0:1], {KA["Cre"]}')
    a(f's_load_dwordx2 s[20:21], s[0:1], {KA["ws"]}')
    a(f's_sub_u32 s3, s2, {NLN}')
    a('v_lshrrev_b32 v1, 6, v0')
    a('v_lshlrev_b32 v2, 1, v0')
    a('v_readfirstlane_b32 s22, v1')
    a('s_mul_i32 s23, s3, 384')
    a('s_lshl_b32 s24, s3, 1')
    a('s_and_b32 s24, s24, 0xfffffffc')
    a('s_waitcnt lgkmcnt(0)')
    a('s_load_dword s25, s[16:17], s24')
    a('s_load_dword s26, s[18:19], s24')
    PRM = 8
    for i in range(6):
        s = 28 + 4*i
        srd(a, s, 4 + 2*i, D*N*2)
    a('s_cmp_eq_u32 s22, 3')
    a('s_cbranch_scc1 K1_SKIPLD')
    for i in range(6):
        s = 28 + 4*i
        a(f'buffer_load_short_d16_hi v{PRM+i}, v2, {sr(s,4)}, s23 offen')
    a.label('K1_SKIPLD')
    srd(a, 52, 20, 0x280000, WS_KW)
    EX = 100
    a('v_lshlrev_b32 v3, 3, v0')
    for e in range(8):
        a(f'v_add_u32 v{EX+e}, {e}, v3')
    for e in range(8):
        a(f'v_cvt_f32_u32 v{20+e}, v{EX+e}')
    for e in range(8):
        a(f'v_cvt_pk_bf16_f32 v{20+e}, v{20+e}, v{20+e}')
    for e in range(8):
        a(f'v_and_b32 v{20+e}, 0xffff, v{20+e}')
    for e in range(8):
        a(f'v_subrev_u32 v{20+e}, {0x4300-128}, v{20+e}')
    for e in range(8):
        a(f'v_max_i32 v{20+e}, 128, v{20+e}')
    for e in range(8):
        a(f'v_min_i32 v{EX+e}, v{EX+e}, v{20+e}')
    for e in range(8):
        a(f'v_lshlrev_b32 v{EX+e}, 2, v{EX+e}')
    a('v_and_b32 v4, 63, v0')
    a('v_bfe_u32 v5, v0, 1, 1')
    a(f'v_mul_u32_u24 v108, {HS}, v5')
    a('v_lshrrev_b32 v5, 2, v4')
    a('v_lshl_add_u32 v108, v5, 4, v108')
    a('v_and_b32 v5, 1, v0')
    a('v_lshl_add_u32 v108, v5, 3, v108')
    a(f's_mul_i32 s27, s22, {2*HS}')
    a(f's_add_u32 s27, s27, {2*HS}')
    a('v_add_u32 v109, s27, v108')
    a('v_and_b32 v5, 15, v0')
    a('v_bfe_u32 v6, v0, 4, 2')
    a('v_lshlrev_b32 v110, 4, v5')
    a('v_lshl_add_u32 v110, v6, 2, v110')
    a('v_add_u32 v111, 2, v110')
    a('s_cmp_eq_u32 s22, 0')
    a('s_cbranch_scc1 K1_GA')
    a('v_lshlrev_b32 v110, 1, v5')
    a('v_lshl_add_u32 v110, v6, 6, v110')
    a('v_add_u32 v110, 512, v110')
    a('v_add_u32 v111, 32, v110')
    a('s_cmp_lg_u32 s22, 1')
    a('s_cbranch_scc1 K1_GA')
    a('v_lshlrev_b32 v110, 3, v5')
    a('v_lshl_add_u32 v110, v6, 2, v110')
    a('v_add_u32 v110, 256, v110')
    a('v_lshlrev_b32 v111, 2, v5')
    a('v_lshl_add_u32 v111, v6, 6, v111')
    a('v_add_u32 v111, 256, v111')
    a('v_cmp_gt_u32 vcc, 2, v6')
    a('v_cndmask_b32 v110, v111, v110, vcc')
    a('v_add_u32 v111, 2, v110')
    a.label('K1_GA')
    a('v_lshlrev_b32 v110, 2, v110')
    a('v_lshlrev_b32 v111, 2, v111')
    a('v_lshlrev_b32 v112, 4, v0')
    a('s_waitcnt lgkmcnt(0)')
    a('s_bitcmp1_b32 s3, 0')
    a('s_cselect_b32 s24, 0, 16')
    a('s_lshl_b32 s25, s25, s24')
    a('s_and_b32 s25, s25, 0xffff0000')
    a('s_lshl_b32 s26, s26, s24')
    a('s_and_b32 s26, s26, 0xffff0000')
    a('v_mov_b32 v5, s26')
    a('v_cmp_eq_u32 vcc, 0, v0')
    a('v_cndmask_b32 v113, 0, v5, vcc')
    a('s_cmp_eq_u32 s22, 3')
    a('s_cbranch_scc1 K1_TBLDONE')
    a(f'v_mov_b32 v5, {f2u(math.log2(math.e))}')
    a('v_mul_f32 v5, s25, v5')
    a('v_exp_f32 v5, v5')
    round_bf16(a, 5, 5)
    a('s_waitcnt vmcnt(0)')
    for i in range(6):
        a(f'v_and_b32 v{PRM+i}, 0xffff0000, v{PRM+i}')
    for i in range(4):
        a(f'v_mul_f32 v{PRM+i}, v5, v{PRM+i}')
    a(f'v_mul_f32 v8, {f2u(math.log2(math.e))}, v8')
    a(f'v_mul_f32 v9, {f2u(1/(2*math.pi))}, v9')
    P0 = 32
    cmul(a, P0, 10, 12)
    anchors = [(14, 1.0, 1), (16, 16.0, -1), (18, 256.0, 1)]
    for k, (r, v, sg_) in enumerate(anchors):
        t = 20 + 3*k
        a(f'v_mul_f32 v{t}, {f2u(v)}, v8')
        a(f'v_mul_f32 v{t+1}, {f2u(v*sg_)}, v9')
    for k in range(3):
        t = 20 + 3*k
        a(f'v_fract_f32 v{t+1}, v{t+1}')
    for k in range(3):
        t = 20 + 3*k
        a(f'v_exp_f32 v{t}, v{t}')
        a(f'v_cos_f32 v{t+2}, v{t+1}')
        a(f'v_sin_f32 v{t+1}, v{t+1}')
    for k, (r, v, sg_) in enumerate(anchors):
        t = 20 + 3*k
        a(f'v_mul_f32 v{r}, v{t}, v{t+2}')
        a(f'v_mul_f32 v{r+1}, v{t}, v{t+1}')
    Q = 64
    PK = 20
    PK2 = 114
    W = 122
    def Wr(k): return 18 if k == 1 else W + 2*(k-2)
    def pack(rec, base, pk, hidx, n=8):
        for j in range(n//2):
            rec(f'v_cvt_pk_bf16_f32 v{pk+j}, v{base+4*j}, v{base+4*j+2}')
            rec(f'v_cvt_pk_bf16_f32 v{pk+4+j}, v{base+4*j+1}, v{base+4*j+3}')
        rec(f'ds_write_b128 v112, {vr(pk,4)} offset:{hidx*HS}')
        rec(f'ds_write_b128 v112, {vr(pk+4,4)} offset:{hidx*HS+3072}')
    rp, rq, rw = Rec(), Rec(), Rec()
    for b in range(1, 16):
        cmul(rp, P0+2*b, P0+2*(b-1), 14)
        if b == 7: pack(rp, P0, PK, 2)
    pack(rp, P0+16, PK, 3)
    rq(f'v_mov_b32 v{Q}, 1.0'); rq(f'v_mov_b32 v{Q+1}, 0')
    rq(f'v_mov_b32 v{Q+2}, v16'); rq(f'v_mov_b32 v{Q+3}, v17')
    for b in range(2, 16):
        cmul(rq, Q+2*b, Q+2*(b-1), 16)
        if b == 7: pack(rq, Q, PK2, 0)
    pack(rq, Q+16, PK2, 1)
    for k in range(2, 9):
        cmul(rw, Wr(k), Wr(k-1), 18)
    for t in interleave(rp.l, rq.l, rw.l): a(t)
    r1, r2 = Rec(), Rec()
    for b in range(8): cmul(r1, Q+2*b, P0+4*b, 18)
    pack(r1, Q, PK, 4)
    for b in range(4): cmul(r2, Q+16+2*b, P0+8*b, Wr(2))
    for b in range(4): cmul(r2, Q+24+2*b, P0+8*b, Wr(3))
    pack(r2, Q+16, PK2, 5)
    for t in interleave(r1.l, r2.l): a(t)
    r1, r2 = Rec(), Rec()
    for aa in range(4):
        for b in range(2):
            cmul(r1 if b == 0 else r2, Q+2*(2*aa+b), P0+16*b, Wr(4+aa))
    cmul(r2, Q+16, P0, Wr(8))
    for t in interleave(r1.l, r2.l): a(t)
    pack(a, Q, PK, 6)
    a(f'v_cvt_pk_bf16_f32 v{PK2}, v{Q+16}, v{Q+16}')
    a(f'v_cvt_pk_bf16_f32 v{PK2+1}, v{Q+17}, v{Q+17}')
    a(f'ds_write_b32 v112, v{PK2} offset:{7*HS}')
    a(f'ds_write_b32 v112, v{PK2+1} offset:{7*HS+3072}')
    a.label('K1_TBLDONE')
    a('s_waitcnt lgkmcnt(0)')
    a('s_barrier')
    a('s_cmp_eq_u32 s22, 3')
    a('s_cbranch_scc1 K1_MFMADONE')
    FR = 4
    def rd(s):
        b = FR + 8*s
        a(f'ds_read_b64_tr_b16 {vr(b,2)}, v109 offset:{512*s}')
        a(f'ds_read_b64_tr_b16 {vr(b+2,2)}, v109 offset:{512*s+256}')
        a(f'ds_read_b64_tr_b16 {vr(b+4,2)}, v108 offset:{512*s}')
        a(f'ds_read_b64_tr_b16 {vr(b+6,2)}, v108 offset:{512*s+256}')
    for s in range(3): rd(s)
    for s in range(12):
        if s + 3 < 12:
            a('s_waitcnt lgkmcnt(8)')
        else:
            a(f's_waitcnt lgkmcnt({4*(11-s)})')
        b = FR + 8*s
        a(f'v_mfma_f32_16x16x32_bf16 v[114:117], {vr(b,4)}, {vr(b+4,4)}, {"0" if s == 0 else "v[114:117]"}')
        if s + 3 < 12: rd(s+3)
    a(f'ds_write_b64 v110, v[114:115] offset:{GT}')
    a(f'ds_write_b64 v111, v[116:117] offset:{GT}')
    a.label('K1_MFMADONE')
    a('s_waitcnt lgkmcnt(0)')
    a('s_barrier')
    for e in range(8):
        a(f'ds_read_b32 v{8+e}, v{EX+e} offset:{GT}')
    a('s_lshl_b32 s23, s3, 12')
    a('s_waitcnt lgkmcnt(0)')
    a('v_add_f32 v8, v8, v113')
    for j in range(4):
        a(f'v_cvt_pk_bf16_f32 v{16+j}, v{8+2*j}, v{9+2*j}')
    a('buffer_store_dwordx4 v[16:19], v112, s[52:55], s23 offen')
    a.label('K1_END')
    a('s_endpgm')
    return a
```

```python
from common import *
K2_CONV = 160
K2_GRID = 256
KREG = 4128
UPS = 1152
WREG = KREG + 4*UPS
K2_LDS = 4 * WREG

def gen_k2():
    a = Asm()
    a(f's_cmp_ge_u32 s2, {K2_GRID}')
    a('s_cbranch_scc1 K2_END')
    a(f's_cmp_ge_u32 s2, {K2_CONV}')
    a('s_cbranch_scc1 K2_CS')
    a(f's_load_dwordx2 s[4:5], s[0:1], {KA["ws"]}')
    a('v_lshrrev_b32 v1, 6, v0')
    a('v_and_b32 v2, 63, v0')
    a('v_readfirstlane_b32 s22, v1')
    a('s_lshl_b32 s3, s2, 2')
    a('s_add_u32 s3, s3, s22')
    a(f's_mul_i32 s23, s22, {WREG}')
    a('v_lshlrev_b32 v3, 4, v2')
    a('v_lshrrev_b32 v4, 1, v2')
    a('v_mul_u32_u24 v4, 20480, v4')
    a('v_and_b32 v5, 1, v2')
    a('v_lshl_add_u32 v4, v5, 4, v4')
    a('s_lshl_b32 s24, s3, 12')
    a('s_lshl_b32 s25, s3, 5')
    a('s_waitcnt lgkmcnt(0)')
    srd(a, 8, 4, 0x280000, WS_UP)
    srd(a, 12, 4, 0x280000, WS_KW)
    vm = Cnt(a, 'vmcnt', 63); lg = Cnt(a, 'lgkmcnt', 15)
    ST = 176
    for i in range(4):
        a(f's_add_u32 s26, s25, {32*20480*i}')
        a(f'buffer_load_dwordx4 {vr(ST+4*i,4)}, v4, s[8:11], s26 offen'); vm.issue(('up', i))
    for i in range(4):
        a(f's_add_u32 m0, s23, {32+1024*i}')
        a(f's_add_u32 s26, s24, {1024*i}')
        a(f'buffer_load_dwordx4 v3, s[12:15], s26 offen lds'); vm.issue(('k', i))
    srd(a, 16, 4, 0x280000, WS_XT)
    srd(a, 28, 4, 0x280000, WS_HT)
    a('v_and_b32 v6, 15, v2')
    a('v_lshrrev_b32 v7, 4, v2')
    a('v_mul_u32_u24 v8, 20480, v6')
    a('v_lshl_add_u32 v8, v7, 3, v8')
    XT = 192
    for t in range(8):
        a(f's_add_u32 s26, s25, {16*20480*t}')
        a(f'buffer_load_dwordx2 {vr(XT+2*t,2)}, v8, s[16:19], s26 offen'); vm.issue(('xt', t))
    a('v_mov_b32 v10, 0'); a('v_mov_b32 v11, 0')
    a(f'v_mul_u32_u24 v9, {UPS}, v7')
    a('v_lshl_add_u32 v9, v6, 3, v9')
    a('v_add_u32 v9, s23, v9')
    a(f'ds_write_b64 v9, v[10:11] offset:{KREG}'); lg.issue()
    a('v_and_b32 v9, 3, v2')
    a('v_lshlrev_b32 v9, 3, v9')
    a('v_add_u32 v9, s23, v9')
    a('ds_write_b64 v9, v[10:11]'); lg.issue()
    a(f'v_mul_u32_u24 v9, {2*UPS}, v5')
    a('v_lshrrev_b32 v12, 1, v2')
    a('v_lshl_add_u32 v9, v12, 3, v9')
    a('v_add_u32 v9, s23, v9')
    a('v_and_b32 v12, 3, v2')
    a('v_bfe_u32 v13, v2, 2, 2')
    a('v_sub_u32 v12, v12, v13')
    a('v_lshlrev_b32 v12, 3, v12')
    a('v_lshlrev_b32 v13, 6, v7')
    a('v_sub_u32 v12, v12, v13')
    a('v_add_u32 v12, 224, v12')
    a('v_add_u32 v12, s23, v12')
    a('v_lshlrev_b32 v13, 3, v6')
    a('v_lshl_add_u32 v13, v7, 4, v13')
    a('v_add_u32 v13, s23, v13')
    a('v_add_u32 v14, 47, v2')
    a('v_cmp_eq_u32 vcc, 0, v2')
    a('v_cndmask_b32 v14, v14, 63, vcc')
    a('v_subrev_u32 v15, 16, v2')
    a('v_cmp_gt_u32 vcc, 16, v2')
    a('v_cndmask_b32 v14, v15, v14, vcc')
    a('v_lshlrev_b32 v14, 2, v14')
    a('v_lshlrev_b32 v15, 5, v6')
    a('v_lshl_add_u32 v15, v7, 3, v15')
    a('s_mov_b32 s32, 0')
    a('s_brev_b32 s33, 1')
    AF = 16
    ACC = 80
    for r in range(96): a(f'v_mov_b32 v{ACC+r}, 0')
    for i in range(4):
        vm.wait(('up', i))
        a(f'ds_write_b64 v9, {vr(ST+4*i,2)} offset:{KREG+128+256*i}'); lg.issue()
        a(f'ds_write_b64 v9, {vr(ST+4*i+2,2)} offset:{KREG+128+256*i+UPS}'); lg.issue()
    vm.wait(('k', 3))
    BR = 208; NB = 8
    groups = [(b, ph) for b in range(-1, 15) for ph in range(4)]
    def rdB(gi):
        b, ph = groups[gi]
        r = BR + 4*(gi % NB)
        off = KREG + 8 + ph*UPS + 64*(b+1)
        a(f'ds_read_b64 {vr(r,2)}, v13 offset:{off}'); lg.issue()
        a(f'ds_read_b64 {vr(r+2,2)}, v13 offset:{off+8}'); lg.issue(('B', gi))
    def rdA(m):
        a(f'ds_read_b64_tr_b16 {vr(AF+4*m,2)}, v12 offset:{256*m+32}'); lg.issue()
        a(f'ds_read_b64_tr_b16 {vr(AF+4*m+2,2)}, v12 offset:{256*m}'); lg.issue(('A', m))
    rdB(0)
    for m in range(1, 16, 2): rdA(m)
    PD = 5
    nextB = 1
    pendA = list(range(0, 16, 2))
    TMP = ST
    def epi1(t):
        E = ACC + 12*t; O = E + 6
        l = []
        for p in range(1, 6):
            l.append(lambda p=p: a(f'v_add_f32 v{E+p}, v{E+p}, v{O+p-1}'))
        cur = [E+4, E+5, O+5]
        prev = [E-12+4, E-12+5, O-12+5]
        tb = TMP + 8*(t & 1)
        for r in range(3):
            if t == 0:
                l.append(lambda r=r: a(f'v_cndmask_b32 v{tb+r}, v{cur[r]}, 0, s[32:33]'))
            else:
                l.append(lambda r=r: a(f'v_cndmask_b32 v{tb+r}, v{cur[r]}, v{prev[r]}, s[32:33]'))
        for r in range(3):
            def f(r=r):
                a(f'ds_bpermute_b32 v{tb+r}, v14, v{tb+r}'); lg.issue(('bp', t, r))
            l.append(f)
        return l
    def epi2(t):
        E = ACC + 12*t
        tb = TMP + 8*(t & 1)
        l = []
        def w():
            vm.wait(('xt', t))
            a(f'v_lshlrev_b32 v{tb+4}, 16, v{XT+2*t}')
        l.append(w)
        l.append(lambda: a(f'v_and_b32 v{tb+5}, 0xffff0000, v{XT+2*t}'))
        l.append(lambda: a(f'v_lshlrev_b32 v{tb+6}, 16, v{XT+2*t+1}'))
        l.append(lambda: a(f'v_and_b32 v{tb+7}, 0xffff0000, v{XT+2*t+1}'))
        for r in range(4):
            l.append(lambda r=r: a(f'v_add_f32 v{tb+4+r}, v{tb+4+r}, v{E+r}'))
        def w2():
            lg.wait(('bp', t, 2))
            a(f'v_add_f32 v{tb+4}, v{tb+4}, v{tb}')
        l.append(w2)
        l.append(lambda: a(f'v_add_f32 v{tb+5}, v{tb+5}, v{tb+1}'))
        l.append(lambda: a(f'v_add_f32 v{tb+6}, v{tb+6}, v{tb+2}'))
        l.append(lambda: a(f'v_cvt_pk_bf16_f32 v{XT+2*t}, v{tb+4}, v{tb+5}'))
        l.append(lambda: a(f'v_cvt_pk_bf16_f32 v{XT+2*t+1}, v{tb+6}, v{tb+7}'))
        def st():
            a(f'buffer_store_dwordx2 {vr(XT+2*t,2)}, v15, s[28:31], s24 offen offset:{512*t}'); vm.issue()
        l.append(st)
        return l
    side = []
    delay = 0
    for gi, (b, ph) in enumerate(groups):
        while nextB < len(groups) and nextB <= gi + PD:
            rdB(nextB); nextB += 1
            if pendA:
                rdA(pendA.pop(0));
                if pendA: rdA(pendA.pop(0))
        lg.wait(('B', gi))
        r = BR + 4*(gi % NB)
        ms = [m for m in range(16) if (m + b) % 2 == 0 and 0 <= (m + b)//2 <= 7]
        for m in ms:
            t = (m + b)//2
            lg.wait(('A', m))
            acc = ACC + 12*t + (6 if ph & 1 else 0) + (2 if ph & 2 else 0)
            a(f'v_mfma_f32_16x16x32_bf16 {vr(acc,4)}, {vr(AF+4*m,4)}, {vr(r,4)}, {vr(acc,4)}')
            if delay > 0: delay -= 1
            elif side: side.pop(0)()
        if ph == 3 and b >= 0 and b % 2 == 0:
            t = b // 2
            side += epi1(t) + epi2(t)
            if len(side) == len(epi1(t)) + len(epi2(t)): delay = 3
    for f in side: f()
    a('s_endpgm')

    a.label('K2_CS')
    a(f's_load_dwordx4 s[4:7], s[0:1], {KA["Wg"]}')
    a(f's_load_dwordx2 s[16:17], s[0:1], {KA["ws"]}')
    a(f's_sub_u32 s3, s2, {K2_CONV}')
    a('s_cmp_ge_u32 s3, 48')
    a('s_cselect_b32 s20, 48, 0')
    a('s_sub_u32 s21, s3, s20')
    a('v_and_b32 v1, 3, v0')
    a('v_lshrrev_b32 v2, 2, v0')
    a('v_mul_u32_u24 v3, 3072, v2')
    a('v_lshl_add_u32 v3, v1, 4, v3')
    a('s_lshl_b32 s22, s21, 6')
    a('s_waitcnt lgkmcnt(0)')
    a('s_cmp_ge_u32 s3, 48')
    a('s_cselect_b32 s8, s6, s4')
    a('s_cselect_b32 s9, s7, s5')
    a(f's_mov_b32 s10, {D*F*2}')
    a('s_mov_b32 s11, 0x20000')
    for i in range(10):
        a(f'buffer_load_dwordx4 {vr(16+4*i,4)}, v3, s[8:11], s22 offen')
        a(f's_add_u32 s22, s22, {64*3072}')
    srd(a, 12, 16, 3072*4, WS_CS)
    a('s_mov_b32 s24, 0x00003f80')
    a('s_mov_b32 s25, 0x3f800000')
    for j in range(8): a(f'v_mov_b32 v{8+j}, 0')
    for i in range(10):
        a(f's_waitcnt vmcnt({9-i})')
        for j in range(4):
            a(f'v_dot2_f32_bf16 v{8+2*j}, v{16+4*i+j}, s24, v{8+2*j}')
            a(f'v_dot2_f32_bf16 v{9+2*j}, v{16+4*i+j}, s25, v{9+2*j}')
    for sh in (4, 8):
        for j in range(8):
            a(f'v_add_f32_dpp v{8+j}, v{8+j}, v{8+j} row_ror:{sh} row_mask:0xf bank_mask:0xf')
    a('v_lshrrev_b32 v4, 4, v0')
    a('v_lshlrev_b32 v4, 7, v4')
    a('v_lshl_add_u32 v4, v1, 5, v4')
    a('ds_write_b128 v4, v[8:11]')
    a('ds_write_b128 v4, v[12:15] offset:16')
    a('s_waitcnt lgkmcnt(0)')
    a('s_barrier')
    a('v_and_b32 v5, 31, v0')
    a('v_lshlrev_b32 v5, 2, v5')
    for p in range(0, 16, 2):
        a(f'ds_read2_b32 {vr(16+p,2)}, v5 offset0:{32*p} offset1:{32*(p+1)}' if 32*(p+1) < 256 else
          f'ds_read_b32 v{16+p}, v5 offset:{128*p}\nds_read_b32 v{17+p}, v5 offset:{128*(p+1)}')
    a('s_waitcnt lgkmcnt(0)')
    for st in (8, 4, 2, 1):
        for j in range(st):
            a(f'v_add_f32 v{16+j}, v{16+j}, v{16+j+st}')
    a('s_lshl_b32 s22, s3, 7')
    a('v_cmp_gt_u32 vcc, 32, v0')
    a('s_and_saveexec_b64 s[26:27], vcc')
    a('s_cbranch_execz K2_END')
    a('buffer_store_dword v16, v5, s[12:15], s22 offen')
    a.label('K2_END')
    a('s_endpgm')
    return a
```

```python
from common import *
K3_GRID = 256
G_OFF = 8192
U_OFF = 8192 + 6144 + 32
STG = U_OFF + 6144
NS = 7
NK = 20
STAT = NS * STG
K3_LDS = STAT + 1024

def gen_k3(rot_on=True):
    a = Asm()
    a(f's_cmp_ge_u32 s2, {K3_GRID}')
    a('s_cbranch_scc1 K3_END')
    a(f's_load_dwordx4 s[4:7], s[0:1], {KA["Wg"]}')
    a(f's_load_dwordx2 s[16:17], s[0:1], {KA["ws"]}')
    a('v_lshrrev_b32 v1, 6, v0')
    a('v_and_b32 v2, 63, v0')
    a('v_readfirstlane_b32 s22, v1')
    a('s_and_b32 s3, s2, 7')
    a('s_lshr_b32 s18, s2, 3')
    a('s_lshr_b32 s19, s18, 3')
    a('s_and_b32 s20, s18, 7')
    a('s_lshr_b32 s23, s3, 1')
    a('s_lshl_b32 s23, s23, 2')
    a('s_add_u32 s23, s23, s19')
    a('s_and_b32 s24, s3, 1')
    a('s_lshl_b32 s24, s24, 3')
    a('s_add_u32 s24, s24, s20')
    a('v_bfe_u32 v3, v2, 4, 1')
    a('v_lshrrev_b32 v4, 5, v2')
    a('v_bfe_u32 v5, v2, 2, 2')
    a('v_and_b32 v6, 3, v2')
    a('s_cmp_lt_u32 s22, 4')
    a('s_cbranch_scc1 K3_COMP')
    a('s_sub_u32 s22, s22, 4')
    if rot_on:
        a('s_mul_i32 s25, s19, 5')
        a('s_mul_i32 s26, s20, 5')
        a('s_lshr_b32 s26, s26, 1')
        a('s_add_u32 s25, s25, s26')
        a('s_cmp_ge_u32 s25, 20')
        a('s_cselect_b32 s26, 20, 0')
        a('s_sub_u32 s25, s25, s26')
    else:
        a('s_mov_b32 s25, 0')
    a('v_lshrrev_b32 v7, 4, v2')
    a('v_lshlrev_b32 v8, 2, v7')
    a('v_and_b32 v9, 15, v2')
    a('v_xor_b32 v8, v8, v9')
    a('v_lshlrev_b32 v8, 4, v8')
    a('v_lshl_add_u32 v8, v7, 12, v8')
    a('s_mov_b32 s26, 0x5556')
    for i in range(3):
        a(f'v_add_u32 v12, {64*i}, v2')
        a('v_mul_u32_u24 v13, s26, v12')
        a('v_lshrrev_b32 v13, 18, v13')
        a('v_mul_u32_u24 v14, 12, v13')
        a('v_sub_u32 v14, v12, v14')
        a(f'v_mul_u32_u24 v{9+i}, 3072, v13')
        a(f'v_lshl_add_u32 v{9+i}, v14, 4, v{9+i}')
    a('s_lshl_b32 s27, s22, 15')
    a('s_lshl_b32 s26, s23, 8')
    a('s_add_u32 s27, s27, s26')
    a('s_and_b32 s28, s22, 1')
    a(f's_mul_i32 s28, s28, {16*3072}')
    a('s_mul_i32 s26, s24, 192')
    a('s_add_u32 s28, s28, s26')
    a('s_lshl_b32 s29, s22, 11')
    a('s_cmp_lt_u32 s22, 2')
    a(f's_cselect_b32 s30, 0, {U_OFF-G_OFF}')
    a(f's_add_u32 s30, s30, {G_OFF}')
    a('s_and_b32 s26, s22, 1')
    a('s_mul_i32 s26, s26, 3072')
    a('s_add_u32 s30, s30, s26')
    a('s_waitcnt lgkmcnt(0)')
    a('s_cmp_lt_u32 s22, 2')
    a('s_cselect_b32 s8, s4, s6')
    a('s_cselect_b32 s9, s5, s7')
    a(f's_mov_b32 s10, {D*F*2}')
    a('s_mov_b32 s11, 0x20000')
    srd(a, 12, 16, 0x280000, WS_HT)
    def dma(s):
        slot = (s % NS) * STG
        a('s_lshl_b32 s31, s25, 17')
        a('s_add_u32 s31, s31, s27')
        a(f's_mul_i32 s32, s25, {32*3072}')
        a('s_add_u32 s32, s32, s28')
        for i in range(2):
            a(f's_add_u32 m0, s29, {slot+1024*i}')
            if i: a('s_add_u32 s31, s31, 16384')
            a('buffer_load_dwordx4 v8, s[12:15], s31 offen lds')
        for i in range(3):
            a(f's_add_u32 m0, s30, {slot+1024*i}')
            a(f'buffer_load_dwordx4 v{9+i}, s[8:11], s32 offen lds')
        a('s_add_u32 s25, s25, 1')
        a('s_cmp_eq_u32 s25, 20')
        a('s_cselect_b32 s25, 0, s25')
    for s in range(NS): dma(s)
    a('v_lshrrev_b32 v13, 1, v6')
    a('v_lshl_add_u32 v13, v3, 1, v13')
    a('s_lshl_b32 s26, s22, 2')
    a('v_add_u32 v13, s26, v13')
    a('v_lshlrev_b32 v14, 2, v5')
    a('v_xor_b32 v13, v13, v14')
    a('v_lshlrev_b32 v13, 4, v13')
    a('v_lshl_add_u32 v14, v4, 3, v5')
    a('v_lshl_add_u32 v13, v14, 8, v13')
    a('v_and_b32 v14, 1, v6')
    a('v_lshl_add_u32 v12, v14, 3, v13')
    a(f'v_add_u32 v13, {3*STG}, v12')
    a(f'v_add_u32 v14, {6*STG}, v12')
    a('s_mov_b32 s33, 0x3f803f80')
    for r in range(16, 20): a(f'v_mov_b32 v{r}, 0')
    issued = NS
    for s in range(NK):
        out = (issued - 1 - s) * 5
        a(f's_waitcnt vmcnt({out})')
        a('s_barrier')
        if s >= 1 and issued < NK:
            dma(issued); issued += 1
        sl = s % NS
        base = 12 + sl // 3; off = (sl % 3) * STG
        for q in range(4):
            a(f'ds_read_b64_tr_b16 {vr(20+2*q,2)}, v{base} offset:{off + (q>>1)*4096 + (q&1)*1024}')
        for q in range(4):
            a(f's_waitcnt lgkmcnt({3-q})')
            for j in range(2):
                r = 20 + 2*q + j
                a(f'v_dot2_f32_bf16 v{16+j}, v{r}, s33, v{16+j}')
                a(f'v_dot2_f32_bf16 v{18+j}, v{r}, v{r}, v{18+j}')
    a('v_add_f32 v16, v16, v17')
    a('v_add_f32 v18, v18, v19')
    a('v_mov_b32 v17, v16')
    a('v_mov_b32 v19, v18')
    a('v_permlane32_swap_b32 v16, v17')
    a('v_permlane32_swap_b32 v18, v19')
    a('v_add_f32 v16, v16, v17')
    a('v_add_f32 v18, v18, v19')
    a(f'v_mul_f32 v16, {f2u(1.0/640)}, v16')
    a(f'v_mul_f32 v18, {f2u(1.0/640)}, v18')
    a('v_fma_f32 v18, -v16, v16, v18')
    a('v_max_f32 v18, 0, v18')
    round_bf16(a, 16, 16)
    a('v_and_b32 v20, 31, v2')
    a('s_lshl_b32 s26, s22, 7')
    a('v_lshl_add_u32 v20, v20, 2, s26')
    a(f'v_add_u32 v21, {STAT}, v20')
    a('ds_write_b32 v21, v16')
    a('s_waitcnt lgkmcnt(0)')
    a('s_barrier')
    a('s_cmp_lg_u32 s24, 0')
    a('s_cbranch_scc1 K3_END')
    round_bf16(a, 18, 18)
    a(f'v_add_f32 v18, {f2u(1e-5)}, v18')
    round_bf16(a, 18, 18)
    a('v_sqrt_f32 v18, v18')
    round_bf16(a, 18, 18)
    a('v_rcp_f32 v18, v18')
    a('v_mul_f32 v18, v18, v18')
    srd(a, 8, 16, L*4, WS_R2)
    a('s_lshl_b32 s26, s23, 9')
    a('buffer_store_dword v18, v20, s[8:11], s26 offen')
    a('s_endpgm')

    a.label('K3_COMP')
    a('s_and_b32 s25, s22, 1')
    a('s_lshr_b32 s26, s22, 1')
    a('s_waitcnt lgkmcnt(0)')
    srd(a, 8, 16, 3072*4, WS_CS)
    srd(a, 12, 16, L*F*2, WS_HID)
    CSR = 112
    a('s_mul_i32 s27, s24, 384')
    a('s_mul_i32 s28, s26, 192')
    a('s_add_u32 s27, s27, s28')
    a('s_add_u32 s28, s27, 6144')
    a('v_lshlrev_b32 v7, 4, v4')
    for ft in range(3):
        for mat in range(2):
            for j in range(2):
                r = CSR + 16*ft + 8*mat + 4*j
                a(f'buffer_load_dwordx4 {vr(r,4)}, v7, s[8:11], s{27+mat} offen offset:{64*ft+32*j}')
    HA = 220
    WA = 226
    a('v_lshl_add_u32 v9, v4, 3, v5')
    a('v_lshrrev_b32 v10, 1, v6')
    a('v_lshl_add_u32 v10, v3, 1, v10')
    a('s_lshl_b32 s29, s25, 3')
    a('v_add_u32 v10, s29, v10')
    a('v_lshlrev_b32 v11, 2, v5')
    a('v_and_b32 v12, 1, v6')
    a('v_lshlrev_b32 v12, 3, v12')
    a('v_lshl_add_u32 v12, v9, 8, v12')
    for tt in range(2):
        a(f'v_add_u32 v13, {4*tt}, v10')
        a('v_xor_b32 v13, v13, v11')
        a(f'v_lshl_add_u32 v{HA+tt}, v13, 4, v12')
        a(f'v_add_u32 v{HA+2+tt}, {3*STG}, v{HA+tt}')
        a(f'v_add_u32 v{HA+4+tt}, {6*STG}, v{HA+tt}')
    a(f'v_mul_u32_u24 v13, {U_OFF-G_OFF}, v3')
    a('v_mul_u32_u24 v14, 192, v9')
    a('v_add_u32 v13, v13, v14')
    a('v_lshl_add_u32 v13, v6, 3, v13')
    a('s_mul_i32 s29, s26, 96')
    a(f's_add_u32 s29, s29, {G_OFF}')
    a(f'v_add_u32 v{WA}, s29, v13')
    a(f'v_add_u32 v{WA+1}, {3*STG}, v{WA}')
    a(f'v_add_u32 v{WA+2}, {6*STG}, v{WA}')
    a('v_mul_u32_u24 v230, 49152, v3')
    a('v_lshl_add_u32 v230, v4, 8, v230')
    a('v_and_b32 v13, 15, v2')
    a('v_lshl_add_u32 v230, v13, 4, v230')
    a('v_and_b32 v13, 31, v2')
    a('s_lshl_b32 s29, s25, 8')
    a(f's_add_u32 s29, s29, {STAT}')
    a('v_lshl_add_u32 v231, v13, 2, s29')
    ACC = 16
    FB = 160
    lg = Cnt(a, 'lgkmcnt', 15)
    def reads(n):
        s, ks = n // 2, n % 2
        sl = s % NS; st = sl // 3; off = (sl % 3) * STG
        fb = FB + 20 * (n % 2)
        l = []
        order = [('W', 0), ('H', 0), ('H', 1), ('W', 1), ('W', 2)]
        for kind, idx in order:
            for hh in range(2):
                if kind == 'W':
                    r = fb + 4*idx + 2*hh
                    txt = f'ds_read_b64_tr_b16 {vr(r,2)}, v{WA+st} offset:{off + ks*16*192 + hh*4*192 + idx*32}'
                else:
                    r = fb + 12 + 4*idx + 2*hh
                    txt = f'ds_read_b64_tr_b16 {vr(r,2)}, v{HA+2*st+idx} offset:{off + ks*4096 + hh*1024}'
                def f(txt=txt, tag=(n, kind, idx, hh)):
                    a(txt); lg.issue(tag)
                l.append(f)
        return l
    a('s_barrier')
    for f in reads(0): f()
    mf_order = [(0, 0), (1, 0), (0, 1), (1, 1), (0, 2), (1, 2)]
    for n in range(2*NK):
        fb = FB + 20 * (n % 2)
        nxt = reads(n+1) if n + 1 < 2*NK else []
        need_bar = (n % 2 == 1) and (n + 1 < 2*NK)
        if need_bar:
            lg.wait_all()
        for k, (tt, ft) in enumerate(mf_order):
            lg.wait((n, 'W', ft, 1)); lg.wait((n, 'H', tt, 1))
            acc = ACC + 16*(3*tt+ft)
            a(f'v_mfma_f32_32x32x16_bf16 {vr(acc,16)}, {vr(fb+4*ft,4)}, {vr(fb+12+4*tt,4)}, {"0" if n == 0 else vr(acc,16)}')
            if k == 0 and need_bar: a('s_barrier')
            for _ in range(2):
                if nxt: nxt.pop(0)()
    a('s_barrier')
    a('ds_read_b32 v8, v231')
    a('ds_read_b32 v10, v231 offset:128')
    a('s_lshl_b32 s27, s23, 1')
    a('s_add_u32 s27, s27, s25')
    a(f's_mul_i32 s27, s27, {4*49152}')
    a('s_lshl_b32 s28, s24, 1')
    a('s_add_u32 s28, s28, s26')
    a('s_mul_i32 s28, s28, 1536')
    a('s_add_u32 s27, s27, s28')
    a(f's_add_u32 s28, s27, {2*49152}')
    a('s_waitcnt vmcnt(0) lgkmcnt(0)')
    for tt in range(2):
        for ft in range(3):
            acc = ACC + 16*(3*tt+ft); cs = CSR + 16*ft; mr = 8 + 2*tt
            for p in range(8):
                a(f'v_pk_fma_f32 {vr(acc+2*p,2)}, {vr(cs+2*p,2)}, {vr(mr,2)}, {vr(acc+2*p,2)} op_sel:[0,0,0] op_sel_hi:[1,0,1] neg_lo:[0,1,0] neg_hi:[0,1,0]')
            for p in range(8):
                a(f'v_max_f32 v{acc+p}, 0, v{acc+p}')
            for p in range(4):
                a(f'v_pk_mul_f32 {vr(acc+2*p,2)}, {vr(acc+2*p,2)}, {vr(acc+8+2*p,2)}')
            for p in range(4):
                a(f'v_cvt_pk_bf16_f32 v{acc+8+p}, v{acc+2*p}, v{acc+2*p+1}')
            a(f'buffer_store_dwordx4 {vr(acc+8,4)}, v230, s[12:15], s{27+tt} offen offset:{512*ft}')
    a.label('K3_END')
    a('s_endpgm')
    return a
```

```python
from common import *
K4_GRID = 256
STG4 = 20480
NS4 = 7
NK4 = 12
K4_LDS = NS4 * STG4

def gen_k4(rot_on=True):
    a = Asm()
    a(f's_cmp_ge_u32 s2, {K4_GRID}')
    a('s_cbranch_scc1 K4_END')
    a(f's_load_dwordx4 s[4:7], s[0:1], {KA["Wd"]}')
    a(f's_load_dwordx2 s[16:17], s[0:1], {KA["ws"]}')
    a('v_lshrrev_b32 v1, 6, v0')
    a('v_and_b32 v2, 63, v0')
    a('v_readfirstlane_b32 s22, v1')
    a('s_and_b32 s3, s2, 7')
    a('s_lshr_b32 s18, s2, 3')
    a('s_lshr_b32 s19, s18, 3')
    a('s_and_b32 s24, s18, 7')
    a('s_lshl_b32 s23, s3, 2')
    a('s_add_u32 s23, s23, s19')
    a('s_lshl_b32 s23, s23, 2')
    a('s_add_u32 s23, s23, s22')
    if rot_on:
        a('s_mul_i32 s25, s19, 3')
        a('s_mul_i32 s26, s24, 3')
        a('s_lshr_b32 s26, s26, 1')
        a('s_add_u32 s25, s25, s26')
        a('s_cmp_ge_u32 s25, 12')
        a('s_cselect_b32 s26, 12, 0')
        a('s_sub_u32 s25, s25, s26')
    else:
        a('s_mov_b32 s25, 0')
    a('s_mov_b32 s26, 0x6667')
    for i in range(5):
        a(f'v_add_u32 v13, {64*i}, v2')
        a('v_mul_u32_u24 v14, s26, v13')
        a('v_lshrrev_b32 v14, 18, v14')
        a('v_mul_u32_u24 v15, 10, v14')
        a('v_sub_u32 v15, v13, v15')
        a(f'v_mul_u32_u24 v{8+i}, 1280, v14')
        a(f'v_lshl_add_u32 v{8+i}, v15, 4, v{8+i}')
    a('v_lshlrev_b32 v13, 4, v2')
    a(f's_mul_i32 s27, s22, {32*1280}')
    a('s_mul_i32 s26, s24, 160')
    a('s_add_u32 s27, s27, s26')
    a('s_mul_i32 s28, s23, 49152')
    a('s_mul_i32 s29, s22, 5120')
    a('s_waitcnt lgkmcnt(0)')
    srd(a, 8, 4, F*D*2)
    srd(a, 12, 16, L*F*2, WS_HID)
    vm = Cnt(a, 'vmcnt', 63); lg = Cnt(a, 'lgkmcnt', 15)
    HB = 64
    def load(s):
        slot = (s % NS4)
        a(f's_mul_i32 s31, s25, {128*1280}')
        a('s_add_u32 s31, s31, s27')
        a('s_lshl_b32 s32, s25, 12')
        a('s_add_u32 s32, s32, s28')
        for q in range(4):
            a(f'buffer_load_dwordx4 {vr(HB+16*slot+4*q,4)}, v13, s[12:15], s32 offen offset:{1024*q}'); vm.issue()
        for i in range(5):
            a(f's_add_u32 m0, s29, {slot*STG4+1024*i}')
            a(f'buffer_load_dwordx4 v{8+i}, s[8:11], s31 offen lds'); vm.issue(('st', s))
        a('s_add_u32 s25, s25, 1')
        a('s_cmp_eq_u32 s25, 12')
        a('s_cselect_b32 s25, 0, s25')
    for s in range(NS4 - 1): load(s)
    a('v_lshrrev_b32 v3, 5, v2')
    a('v_bfe_u32 v4, v2, 4, 1')
    a('v_bfe_u32 v5, v2, 2, 2')
    a('v_and_b32 v6, 3, v2')
    a('v_lshlrev_b32 v3, 4, v3')
    a('v_lshl_add_u32 v3, v4, 2, v3')
    a('v_add_u32 v3, v3, v5')
    a('v_mul_u32_u24 v3, 160, v3')
    a('v_lshl_add_u32 v14, v6, 3, v3')
    a(f'v_add_u32 v15, {3*STG4}, v14')
    a(f'v_add_u32 v16, {6*STG4}, v14')
    a('v_lshrrev_b32 v3, 4, v2')
    a('v_and_b32 v4, 15, v2')
    a('v_lshlrev_b32 v17, 14, v3')
    a('v_lshl_add_u32 v17, v4, 1, v17')
    a('v_mul_u32_u24 v18, 1280, v4')
    a('v_lshl_add_u32 v18, v3, 3, v18')
    a('v_lshlrev_b32 v19, 2, v4')
    srd(a, 36, 16, 0x280000, WS_HT)
    srd(a, 40, 16, L*4, WS_R2)
    srd(a, 44, 6, L*D*2)
    ACC = 20
    HR = 40
    WB = 176
    for r in range(20): a(f'v_mov_b32 v{HR+r}, 0')
    def reads(n):
        s, ks = n // 4, n % 4
        sl = s % NS4; base = 14 + sl // 3; off = (sl % 3) * STG4 + ks * 32 * 160
        wb = WB + 20 * (n % 2)
        l = []
        for tau in range(5):
            for hh in range(2):
                def f(tau=tau, hh=hh):
                    a(f'ds_read_b64_tr_b16 {vr(wb+4*tau+2*hh,2)}, v{base} offset:{off + hh*8*160 + tau*32}'); lg.issue((n, tau, hh))
                l.append(f)
        return l
    issued = NS4 - 1
    def resid():
        a('s_mul_i32 s33, s24, 80')
        a('s_lshl_b32 s33, s33, 12')
        a('s_lshl_b32 s34, s23, 5')
        a('s_add_u32 s33, s33, s34')
        for tau in range(5):
            for r in range(4):
                a(f's_add_u32 s34, s33, {(16*tau+r)*4096}')
                a(f'buffer_load_short_d16_hi v{HR+4*tau+r}, v17, s[36:39], s34 offen'); vm.issue()
        a('s_lshl_b32 s34, s23, 6')
        a('buffer_load_dword v60, v19, s[40:43], s34 offen'); vm.issue('res')
    vm.wait(('st', 0))
    a('s_barrier')
    load(issued); issued += 1
    for f in reads(0): f()
    for n in range(4*NK4):
        s, ks = n // 4, n % 4
        wb = WB + 20 * (n % 2)
        last = n + 1 == 4*NK4
        nxt = reads(n+1) if not last else []
        need_bar = ks == 3 and not last
        if need_bar:
            lg.wait_all()
        for tau in range(5):
            lg.wait((n, tau, 1))
            acc = ACC + 4*tau
            a(f'v_mfma_f32_16x16x32_bf16 {vr(acc,4)}, {vr(wb+4*tau,4)}, {vr(HB+16*(s%NS4)+4*ks,4)}, {"0" if n == 0 else vr(acc,4)}')
            if tau == 0 and need_bar:
                vm.wait(('st', s+1))
                a('s_barrier')
            for _ in range(2):
                if nxt: nxt.pop(0)()
        if need_bar:
            if issued < NK4:
                load(issued); issued += 1
                if issued == NK4: pass
            elif s == NK4 - NS4 + 2:
                resid()
    vm.wait('res')
    a(f's_mul_i32 s33, s23, {16*1280}')
    a('s_mul_i32 s34, s24, 160')
    a('s_add_u32 s33, s33, s34')
    for tau in range(5):
        for r in range(4):
            a(f'v_fma_f32 v{ACC+4*tau+r}, v{ACC+4*tau+r}, v60, v{HR+4*tau+r}')
        a(f'v_cvt_pk_bf16_f32 v{HR+4*tau}, v{ACC+4*tau}, v{ACC+4*tau+1}')
        a(f'v_cvt_pk_bf16_f32 v{HR+4*tau+1}, v{ACC+4*tau+2}, v{ACC+4*tau+3}')
        a(f'buffer_store_dwordx2 {vr(HR+4*tau,2)}, v18, s[44:47], s33 offen offset:{32*tau}')
    a.label('K4_END')
    a('s_endpgm')
    return a
```

```python
import sys
sys.path.insert(0, 'gen')
from common import *
import k1, k2, k3, k4
def build(path):
    ks = [('k1_kernel', k1.gen_k1(), k1.K1_GRID, 256, k1.K1_LDS),
          ('k2_kernel', k2.gen_k2(), k2.K2_GRID, 256, k2.K2_LDS),
          ('k3_kernel', k3.gen_k3(), k3.K3_GRID, 512, k3.K3_LDS),
          ('k4_kernel', k4.gen_k4(), k4.K4_GRID, 256, k4.K4_LDS)]
    hdr = open('sequential_preLN__ssm_conv_s4__glu_gated_reglu__prompt.s.ref').read().split('; Override launch')[0]
    s = hdr
    for n, a, g, b, l in ks:
        s += f'; @launch kernel={n} grid=({g},1,1) block=({b},1,1) lds={l}\n'
    s += '.amdgcn_target "amdgcn-amd-amdhsa--gfx950"\n.text\n'
    kds = ''
    for n, a, g, b, l in ks:
        body, kd, info = kernel_text(n, a)
        print(n, 'vgpr,sgpr', info, 'instrs', len(a.ins), 'lds', l)
        s += body; kds += kd
    s += kds
    open(path, 'w').write(s)
if __name__ == '__main__':
    if len(sys.argv) > 2 and sys.argv[2] == 'stamp': STAMP_ON[0] = True
    if len(sys.argv) > 2 and sys.argv[2] == 'dbg': STAMP_ON[0] = 'dbg'
    build(sys.argv[1] if len(sys.argv) > 1 else 'sequential_preLN__ssm_conv_s4__glu_gated_reglu__prompt.s')
```

```python
import sys; sys.path.insert(0, "work")
HDR = """.amdgcn_target "amdgcn-amd-amdhsa--gfx950"
.text
"""
def kernel(name, setup, body, reps=64, vg=128):
    return f"""
.globl {name}
.p2align 8
.type {name},@function
{name}:
    s_cmp_ge_u32 s2, 256
    s_cbranch_scc1 L_done_{name}
    s_load_dwordx2 s[6:7], s[0:1], 104
    s_waitcnt lgkmcnt(0)
    s_mov_b32 s12, s6
    s_mov_b32 s13, s7
    s_mov_b32 s14, 65536
    s_mov_b32 s15, 0x20000
    v_and_b32 v1, 63, v0
{setup}
    s_mov_b32 s20, {reps}
    s_barrier
    s_memtime s[16:17]
    s_waitcnt lgkmcnt(0)
L_loop_{name}:
{body}
    s_sub_u32 s20, s20, 1
    s_cmp_lg_u32 s20, 0
    s_cbranch_scc1 L_loop_{name}
    s_waitcnt lgkmcnt(0) vmcnt(0)
    s_memtime s[18:19]
    s_waitcnt lgkmcnt(0)
    s_sub_u32 s18, s18, s16
    v_mov_b32 v2, s18
    v_lshrrev_b32 v3, 6, v0
    v_lshlrev_b32 v3, 2, v3
    s_lshl_b32 s21, s2, 6
    v_add_u32 v3, s21, v3
    buffer_store_dword v2, v3, s[12:15], 0 offen
    s_waitcnt vmcnt(0)
L_done_{name}:
    s_endpgm
"""
def kd(name, vg=128):
    return f"""
.section .rodata,"a"
.p2align 6
.amdhsa_kernel {name}
  .amdhsa_next_free_vgpr {vg}
  .amdhsa_next_free_sgpr 32
  .amdhsa_accum_offset {vg}
  .amdhsa_group_segment_fixed_size 0
  .amdhsa_kernarg_size 128
  .amdhsa_user_sgpr_count 2
  .amdhsa_user_sgpr_kernarg_segment_ptr 1
  .amdhsa_system_sgpr_workgroup_id_x 1
.end_amdhsa_kernel
.text
"""
tests = {}
def rep(fn, n): return "\n".join(fn(i) for i in range(n))
init = rep(lambda i: f"    v_mov_b32 v{i}, 1.0", 0)
tests['fma'] = ("", rep(lambda i: f"    v_fma_f32 v{8+i}, v4, v5, v6", 32), 32)
tests['fmac'] = ("", rep(lambda i: f"    v_fmac_f32 v{8+i}, v4, v5", 32), 32)
tests['pkfma'] = ("", rep(lambda i: f"    v_pk_fma_f32 v[{8+2*i}:{9+2*i}], v[4:5], v[6:7], v[2:3]", 32), 32)
tests['pkmul'] = ("", rep(lambda i: f"    v_pk_mul_f32 v[{8+2*i}:{9+2*i}], v[4:5], v[6:7]", 32), 32)
tests['exp'] = ("", rep(lambda i: f"    v_exp_f32 v{8+i}, v4", 32), 32)
tests['sin'] = ("", rep(lambda i: f"    v_sin_f32 v{8+i}, v4", 32), 32)
tests['cvtpk'] = ("", rep(lambda i: f"    v_cvt_pk_bf16_f32 v{8+i}, v4, v5", 32), 32)
tests['dot2'] = ("", rep(lambda i: f"    v_dot2_f32_bf16 v{8+i}, v4, v5, v{8+i}", 32), 32)
tests['dot2c'] = ("", rep(lambda i: f"    v_dot2c_f32_bf16 v{8+i}, v4, v5", 32), 32)
tests['expfma'] = ("", rep(lambda i: f"    v_exp_f32 v{8+i}, v4\n    v_fma_f32 v{48+i}, v4, v5, v6\n    v_fma_f32 v{80+i}, v4, v5, v6", 16), 16)
tests['muldpp'] = ("", rep(lambda i: f"    v_mul_f32_dpp v{8+i}, v4, v5 row_newbcast:3 row_mask:0xf bank_mask:0xf", 32), 32)
al = "    v_lshlrev_b32 v4, 4, v1\n"
tests['rd128_al'] = (al, rep(lambda i: f"    ds_read_b128 v[{8+4*(i%16)}:{11+4*(i%16)}], v4 offset:{(i%8)*1024}", 16) + "\n    s_waitcnt lgkmcnt(0)", 16)
toe = """    v_and_b32 v5, 15, v1
    v_lshrrev_b32 v6, 4, v1
    v_lshlrev_b32 v6, 3, v6
    v_sub_u32 v6, v6, v5
    v_add_u32 v6, 64, v6
    v_lshlrev_b32 v4, 1, v6
"""
tests['rd128_toe'] = (toe, rep(lambda i: f"    ds_read_b128 v[{8+4*(i%16)}:{11+4*(i%16)}], v4 offset:{(i%8)*64}", 16) + "\n    s_waitcnt lgkmcnt(0)", 16)
tests['rd64_toe'] = (toe, rep(lambda i: f"    ds_read_b64 v[{8+2*(i%16)}:{9+2*(i%16)}], v4 offset:{(i%8)*64}", 16) + "\n    s_waitcnt lgkmcnt(0)", 16)
toe4 = toe + "    v_and_b32 v4, 0xfffffffc, v4\n"
tests['rd128_toe4'] = (toe4, tests['rd128_toe'][1], 16)
toe8 = toe + "    v_and_b32 v4, 0xfffffff8, v4\n"
tests['rd128_toe8'] = (toe8, tests['rd128_toe'][1], 16)
tr = "    v_lshlrev_b32 v4, 3, v1\n"
tests['rdtr'] = (tr, rep(lambda i: f"    ds_read_b64_tr_b16 v[{8+2*(i%16)}:{9+2*(i%16)}], v4 offset:{(i%8)*512}", 16) + "\n    s_waitcnt lgkmcnt(0)", 16)
tru = "    v_lshlrev_b32 v4, 3, v1\n    v_add_u32 v4, 2, v4\n"
tests['rdtr_un'] = (tru, tests['rdtr'][1], 16)
tests['wr128'] = (al, rep(lambda i: f"    ds_write_b128 v4, v[{8+4*(i%16)}:{11+4*(i%16)}] offset:{(i%8)*1024}", 16) + "\n    s_waitcnt lgkmcnt(0)", 16)
tests['wr64'] = (tr, rep(lambda i: f"    ds_write_b64 v4, v[{8+2*(i%16)}:{9+2*(i%16)}] offset:{(i%8)*1024}", 16) + "\n    s_waitcnt lgkmcnt(0)", 16)
w32 = "    v_lshlrev_b32 v4, 2, v1\n"
tests['wr32'] = (w32, rep(lambda i: f"    ds_write_b32 v4, v{8+i} offset:{(i%8)*1024}", 16) + "\n    s_waitcnt lgkmcnt(0)", 16)
tests['mfma16'] = ("", rep(lambda i: f"    v_mfma_f32_16x16x32_bf16 v[{40+4*(i%8)}:{43+4*(i%8)}], v[8:11], v[12:15], v[{40+4*(i%8)}:{43+4*(i%8)}]", 16), 16)
tests['mfma32'] = ("", rep(lambda i: f"    v_mfma_f32_32x32x16_bf16 v[{40+16*(i%4)}:{55+16*(i%4)}], v[8:11], v[12:15], v[{40+16*(i%4)}:{55+16*(i%4)}]", 16), 16)
REPS = 64
def gen(blocks):
    s = ""
    for b in blocks:
        for n in tests:
            s += f"; @launch kernel={n}_kernel grid=(1,1,1) block=({b},1,1) lds=16384\n"
    s += HDR
    for n,(setup, body, cnt) in tests.items():
        s += kernel(n+"_kernel", setup, body, REPS)
    for n in tests: s += kd(n+"_kernel")
    return s
if __name__ == "__main__":
    blocks = [256, 512, 1024]
    if sys.argv[1] == "gen":
        open("mb.s","w").write(gen(blocks))
    else:
        from hx import *
        kl, L = build("mb.s")
        inp = [np.zeros(16, np.uint16)]*13
        c = Ctx(inp, 65536, ws_bytes=1<<20)
        for i, l in enumerate(L):
            kl.launches = [l]
            for _ in range(2):
                c.memset(c.out, 0); c.run(kl, [l]); c.sync()
            o = c.read(c.out, np.uint32, 16)
            nw = l.block[0]//64
            n = l.kernel[:-7]
            cnt = tests[n][2]*REPS
            print(f"{n:12s} waves/SIMD={nw//4} cycles/instr/wave max={o[:nw].max()/cnt:.2f}  per-SIMD-instr={o[:nw].max()/cnt/(nw//4):.2f}")
```

```python
import sys; sys.path.insert(0, "work")
import mb
t = {}
def setup(lps, stride, coloff_expr):
    magic = {4:None,8:None,16:None,32:None,64:None}
    s = f"""
    s_load_dwordx2 s[4:5], s[0:1], 120
    s_waitcnt lgkmcnt(0)
    s_mov_b32 s8, s4
    s_mov_b32 s9, s5
    s_mov_b32 s10, 0x10000000
    s_mov_b32 s11, 0x20000
    v_lshrrev_b32 v5, 6, v0
    s_nop 0
    v_readfirstlane_b32 s24, v5
    s_mov_b32 s26, {(1<<18)//lps + 1}
    v_mul_u32_u24 v6, s26, v0
    v_lshrrev_b32 v6, 18, v6
    v_mul_u32_u24 v7, {lps}, v6
    v_sub_u32 v7, v0, v7
    s_mov_b32 s26, {stride}
    v_mul_lo_u32 v4, v6, s26
    v_lshl_add_u32 v4, v7, 4, v4
{coloff_expr}
    s_lshl_b32 s24, s24, 10
"""
    return s
def body(nw, lps, stride, per_iter, depth, wrap):
    rows = (nw*64)//lps
    s = ""
    for i in range(per_iter):
        s += f"    s_add_u32 m0, s24, {(i*nw*1024) % 131072}\n    s_nop 0\n"
        s += f"    buffer_load_dwordx4 v4, s[8:11], s23 offen lds\n"
        s += f"    s_add_u32 s23, s23, {rows*stride}\n"
        s += f"    s_waitcnt vmcnt({depth})\n"
    s += f"    s_add_u32 s27, s27, 1\n    s_and_b32 s27, s27, {wrap-1}\n    s_cmp_eq_u32 s27, 0\n    s_cselect_b32 s23, s28, s23\n"
    return s
TOTAL = 512*1024
def add(name, lps, stride, ncol, nw=4, depth=16, wrap=2):
    col = f"    s_lshr_b32 s23, s2, 3\n    s_and_b32 s23, s23, {ncol-1}\n    s_mul_i32 s23, s23, {lps*16}\n    s_mov_b32 s28, s23\n    s_mov_b32 s27, 0"
    per_iter = 16
    reps = TOTAL // (nw*1024*per_iter)
    t[name] = (setup(lps, stride, col), body(nw, lps, stride, per_iter, depth, wrap), reps, nw)
add('lin', 64, 1024, 1)
add('s256_4096_c4', 16, 4096, 4)
add('s256_4096_c16', 16, 4096, 16)
add('s256_4352_c4', 16, 4352, 4)
add('s256_4224_c4', 16, 4224, 4)
add('s256_256', 16, 256, 1)
add('s128_4096_c4', 8, 4096, 4)
add('s128_4224_c4', 8, 4224, 4)
add('s128_3072_c8', 8, 3072, 8)
add('s256_3072_c8', 16, 3072, 8)
add('s192_3072_c8', 12, 3072, 8)
add('s192_3072_c16', 12, 3072, 16)
add('s160_1280_c8', 10, 1280, 8)
add('s64_3072_c8', 4, 3072, 8, wrap=1)
add('s64_1280_c8', 4, 1280, 8, wrap=1)
add('s512_4096_c4', 32, 4096, 4)
add('s512_3072_c4', 32, 3072, 4)
def gen():
    s = ""
    for n in t:
        s += f"; @launch kernel={n}_kernel grid=(256,1,1) block=({t[n][3]*64},1,1) lds=140000\n"
    s += mb.HDR
    for n,(st, b, reps, nw) in t.items():
        s += mb.kernel(n+"_kernel", st, b, reps)
    for n in t: s += mb.kd(n+"_kernel")
    return s
if sys.argv[1] == "gen":
    open("mb9.s","w").write(gen())
else:
    from hx import *
    kl, L = build("mb9.s")
    inp = [np.zeros(16, np.uint16)]*13
    c = Ctx(inp, 65536)
    for i, l in enumerate(L):
        res = []
        for mode in ["warm", "warm", "warm"]:
            kl.launches = [l]
            c.memset(c.out, 0); c.run(kl, [l]); c.sync()
            nw = l.block[0]//64
            o = c.read(c.out, np.uint32, 256*16).reshape(256,16)[:, :nw].max(1)
            res.append(f"med={int(np.median(o))} max={o.max()} B/clk={TOTAL/np.median(o):.1f}")
        print(f"{l.kernel[:-7]:20s} " + " | ".join(res[1:]))
```

```python
from asmlib import *
L, D, N, F = 2048, 640, 192, 1536
KA = dict(x=0, Are=8, Aim=16, Bre=24, Bim=32, Cre=40, Cim=48, logdt=56, dskip=64, bx=72, Wg=80, Wu=88, Wd=96, out=104, dbg=112, ws=120)
WS_UP = 0x000000
WS_XT = 0x280000
WS_KW = 0x500000
WS_HT = 0x780000
WS_HID = 0xA00000
WS_CS = 0x1000000
WS_END = 0x1100000
def f2u(x):
    import struct
    return '0x%08x' % struct.unpack('<I', struct.pack('<f', x))[0]
def srd(a, s, base_s, nbytes, off=0):
    if off:
        a(f's_add_u32 s{s}, s{base_s}, {hex(off)}')
        a(f's_addc_u32 s{s+1}, s{base_s+1}, 0')
    else:
        a(f's_mov_b32 s{s}, s{base_s}')
        a(f's_mov_b32 s{s+1}, s{base_s+1}')
    a(f's_mov_b32 s{s+2}, {hex(nbytes)}')
    a(f's_mov_b32 s{s+3}, 0x20000')
def cmul(a, r, x, y):
    a(f'v_pk_mul_f32 {vr(r,2)}, {vr(x,2)}, {vr(y,2)} op_sel:[0,0] op_sel_hi:[0,1]')
    a(f'v_pk_fma_f32 {vr(r,2)}, {vr(x,2)}, {vr(y,2)}, {vr(r,2)} op_sel:[1,1,0] op_sel_hi:[1,0,1] neg_lo:[0,1,0]')
def interleave(*seqs):
    out = []
    seqs = [list(s) for s in seqs]
    while any(seqs):
        for s in seqs:
            if s: out.append(s.pop(0))
    return out
class Rec:
    def __init__(self): self.l = []
    def __call__(self, t):
        for line in t.split('\n'):
            if line.strip(): self.l.append(line.strip())

class Cnt:
    def __init__(self, a, name, maxv):
        self.a, self.name, self.maxv = a, name, maxv
        self.n = 0
        self.done = 0
        self.tags = {}
    def issue(self, tag=None):
        self.n += 1
        if tag is not None: self.tags[tag] = self.n
    def wait(self, tag):
        k = self.tags[tag]
        if k <= self.done: return
        out = min(self.n - k, self.maxv)
        self.a(f's_waitcnt {self.name}({out})')
        self.done = self.n - out
    def wait_all(self):
        if self.done < self.n:
            self.a(f's_waitcnt {self.name}(0)'); self.done = self.n
WS_R2 = 0x1010000
def round_bf16(a, d, s):
    a(f'v_cvt_pk_bf16_f32 v{d}, v{s}, v{s}')
    a(f'v_and_b32 v{d}, 0xffff0000, v{d}')

WS_STAMP = 0x2000000
STAMP_ON = [False]
def stamp(a, i):
    if STAMP_ON[0]:
        a(f's_memrealtime s[{80+2*i}:{81+2*i}]')
def stamp_init(a):
    if STAMP_ON[0]:
        for i in range(8): a(f's_mov_b32 s{80+2*i}, 0')
        a('s_mov_b32 s98, s2')
        a('v_lshrrev_b32 v1, 6, v0')
        a('v_readfirstlane_b32 s99, v1')
        stamp(a, 0)
def stamp_end(a, kidx):
    if not STAMP_ON[0]: return
    stamp(a, 7)
    if STAMP_ON[0] == 'dbg':
        sel = DBG_SEL[kidx]
        import random
        lab = f'DBGSKIP_{kidx}_{len(a.ins)}'
        a(f's_load_dwordx2 s[60:61], s[0:1], {KA["dbg"]}')
        a('s_waitcnt lgkmcnt(0)')
        a(f's_add_u32 s64, s60, {512*(DBG_LAST[0]-kidx)}')
        a('s_addc_u32 s65, s61, 0')
        a('s_mov_b32 s66, 256')
        a('s_mov_b32 s67, 0x20000')
        a('s_and_b32 s62, s98, 15')
        a('s_or_b32 s62, s62, s99')
        a('s_cmp_lg_u32 s62, 0')
        a(f's_cbranch_scc1 {lab}')
        a('s_mov_b64 exec, 1')
        a('v_mov_b32 v0, 0')
        a('s_not_b32 s80, s80')
        for j, i in enumerate(sel):
            a(f'v_mov_b32 v{2+j}, s{80+2*i}')
            a(f'buffer_atomic_umax v{2+j}, v0, s[64:67], 0 offen offset:{16*kidx+4*j}')
        a.label(lab)
        return
    a(f's_load_dwordx2 s[60:61], s[0:1], {KA["ws"]}')
    a('s_waitcnt lgkmcnt(0)')
    srd(a, 64, 60, 0x100000, WS_STAMP + kidx*0x100000)
    a('s_lshl_b32 s62, s98, 4')
    a('s_add_u32 s62, s62, s99')
    a('s_lshl_b32 s62, s62, 5')
    a('s_mov_b64 exec, 1')
    for i in range(8): a(f'v_mov_b32 v{2+i}, s{80+2*i}')
    a('v_mov_b32 v0, 0')
    a('buffer_store_dwordx4 v[2:5], v0, s[64:67], s62 offen')
    a('buffer_store_dwordx4 v[6:9], v0, s[64:67], s62 offen offset:16')

DBG_SEL = {0: (0, 3, 4, 7), 1: (0, 4, 5, 7), 2: (0, 2, 5, 7), 3: (0, 3, 6, 7)}
DBG_LAST = [3]
```

```python
from common import *
import math
NLN = 128
K1_GRID = NLN + 640
HS = 6272
GT = 8 * HS
K1_LDS = GT + 3072
RS = 1296

def round_bf16(a, d, s):
    a(f'v_cvt_pk_bf16_f32 v{d}, v{s}, v{s}')
    a(f'v_and_b32 v{d}, 0xffff0000, v{d}')

def gen_k1():
    a = Asm()
    a(f's_cmp_ge_u32 s2, {K1_GRID}')
    a('s_cbranch_scc1 K1_END')
    stamp_init(a)
    a(f's_cmp_ge_u32 s2, {NLN}')
    a('s_cbranch_scc1 K1_KGEN')
    a(f's_load_dwordx2 s[4:5], s[0:1], {KA["x"]}')
    a(f's_load_dwordx2 s[6:7], s[0:1], {KA["ws"]}')
    a('v_lshrrev_b32 v1, 4, v0')
    a('v_and_b32 v2, 15, v0')
    a('v_mul_u32_u24 v3, 1280, v1')
    a('v_lshl_add_u32 v3, v2, 4, v3')
    a('s_mul_i32 s3, s2, 20480')
    a(f'v_mul_u32_u24 v4, {RS}, v1')
    a('v_lshl_add_u32 v4, v2, 4, v4')
    a('s_waitcnt lgkmcnt(0)')
    stamp(a, 1)
    srd(a, 8, 4, L*D*2)
    X = 8
    for i in range(5):
        a(f'buffer_load_dwordx4 {vr(X+4*i,4)}, v3, s[8:11], s3 offen offset:{256*i}')
    srd(a, 12, 6, 0x280000, WS_UP)
    srd(a, 16, 6, 0x280000, WS_XT)
    a('v_bfe_u32 v30, v0, 4, 1')
    a('v_bfe_u32 v31, v0, 5, 1')
    a('v_bfe_u32 v32, v0, 2, 2')
    a('v_and_b32 v33, 3, v0')
    a('v_lshrrev_b32 v34, 6, v0')
    a('v_mul_u32_u24 v35, 320, v34')
    a('v_lshl_add_u32 v35, v31, 5, v35')
    a('v_lshl_add_u32 v35, v33, 3, v35')
    a('v_lshlrev_b32 v36, 1, v30')
    a('v_lshl_add_u32 v36, v32, 2, v36')
    a(f'v_mul_u32_u24 v36, {RS}, v36')
    a('v_add_u32 v36, v36, v35')
    a('v_lshl_add_u32 v37, v30, 3, v32')
    a(f'v_mul_u32_u24 v37, {RS}, v37')
    a('v_add_u32 v37, v37, v35')
    a('v_mul_u32_u24 v38, 160, v34')
    a('v_lshl_add_u32 v38, v31, 4, v38')
    a('v_add_u32 v38, v38, v2')
    a('v_lshlrev_b32 v38, 5, v38')
    a('v_lshl_add_u32 v38, v30, 4, v38')
    a('s_mov_b32 s20, 0x3f803f80')
    a('v_mov_b32 v5, 0')
    a('v_mov_b32 v6, 0')
    a('v_mov_b32 v28, 0')
    a('v_mov_b32 v29, 0')
    for i in range(5):
        a(f's_waitcnt vmcnt({4-i})')
        a(f'ds_write_b128 v4, {vr(X+4*i,4)} offset:{16*RS+256*i}')
        for j in range(4):
            r = X+4*i+j
            a(f'v_dot2_f32_bf16 v{5 if j&1 else 28}, v{r}, s20, v{5 if j&1 else 28}')
            a(f'v_dot2_f32_bf16 v{6 if j&1 else 29}, v{r}, v{r}, v{6 if j&1 else 29}')
    stamp(a, 2)
    a('v_add_f32 v5, v5, v28')
    a('v_add_f32 v6, v6, v29')
    for sh in (8, 4, 2, 1):
        a(f'v_add_f32_dpp v5, v5, v5 row_ror:{sh} row_mask:0xf bank_mask:0xf')
        a(f'v_add_f32_dpp v6, v6, v6 row_ror:{sh} row_mask:0xf bank_mask:0xf')
    a(f'v_mul_f32 v5, {f2u(1.0/640)}, v5')
    a(f'v_mul_f32 v6, {f2u(1.0/640)}, v6')
    a('v_fma_f32 v6, -v5, v5, v6')
    a('v_max_f32 v6, 0, v6')
    round_bf16(a, 5, 5)
    round_bf16(a, 6, 6)
    a(f'v_add_f32 v6, {f2u(1e-5)}, v6')
    round_bf16(a, 6, 6)
    a('v_sqrt_f32 v6, v6')
    round_bf16(a, 6, 6)
    a('v_rcp_f32 v6, v6')
    U = 40
    for i in range(5):
        for j in range(4):
            r = X+4*i+j; t = 60 + 2*j
            a(f'v_lshlrev_b32 v{t}, 16, v{r}')
            a(f'v_and_b32 v{t+1}, 0xffff0000, v{r}')
        for j in range(4):
            t = 60 + 2*j
            a(f'v_sub_f32 v{t}, v{t}, v5')
            a(f'v_sub_f32 v{t+1}, v{t+1}, v5')
        for j in range(4):
            t = 60 + 2*j
            a(f'v_cvt_pk_bf16_f32 v{t+1}, v{t}, v{t+1}')
        for j in range(4):
            t = 60 + 2*j
            a(f'v_lshlrev_b32 v{t}, 16, v{t+1}')
            a(f'v_and_b32 v{t+1}, 0xffff0000, v{t+1}')
        for j in range(4):
            t = 60 + 2*j
            a(f'v_mul_f32 v{t}, v{t}, v6')
            a(f'v_mul_f32 v{t+1}, v{t+1}, v6')
        for j in range(4):
            t = 60 + 2*j
            a(f'v_cvt_pk_bf16_f32 v{U+4*i+j}, v{t}, v{t+1}')
        a(f'ds_write_b128 v4, {vr(U+4*i,4)} offset:{256*i}')
    a('s_waitcnt lgkmcnt(0)')
    a('s_barrier')
    stamp(a, 3)
    for i in range(5):
        a(f'ds_read_b64_tr_b16 {vr(U+4*i,2)}, v36 offset:{64*i}')
        a(f'ds_read_b64_tr_b16 {vr(U+4*i+2,2)}, v36 offset:{64*i+RS}')
    for i in range(5):
        a(f's_waitcnt lgkmcnt({2*(4-i)+2*i})' if False else f's_waitcnt lgkmcnt({8})' if False else '')
        a(f'ds_read_b64_tr_b16 {vr(X+4*i,2)}, v37 offset:{16*RS+64*i}')
        a(f'ds_read_b64_tr_b16 {vr(X+4*i+2,2)}, v37 offset:{16*RS+64*i+4*RS}')
        a('s_waitcnt lgkmcnt(10)' if i < 5 else '')
        a(f'buffer_store_dwordx4 {vr(U+4*i,4)}, v38, s[12:15], s3 offen offset:{1024*i}' if i < 4 else
          f'v_add_u32 v39, 4096, v38\nbuffer_store_dwordx4 {vr(U+4*i,4)}, v39, s[12:15], s3 offen')
    for i in range(5):
        a(f's_waitcnt lgkmcnt({2*(4-i)})')
        a(f'buffer_store_dwordx4 {vr(X+4*i,4)}, v38, s[16:19], s3 offen offset:{1024*i}' if i < 4 else
          f'buffer_store_dwordx4 {vr(X+4*i,4)}, v39, s[16:19], s3 offen')
    stamp_end(a, 0)
    a('s_endpgm')

    a.label('K1_KGEN')
    a(f's_load_dwordx8 s[4:11], s[0:1], {KA["Are"]}')
    a(f's_load_dwordx8 s[12:19], s[0:1], {KA["Cre"]}')
    a(f's_load_dwordx2 s[20:21], s[0:1], {KA["ws"]}')
    a(f's_sub_u32 s3, s2, {NLN}')
    a('v_lshrrev_b32 v1, 6, v0')
    a('v_lshlrev_b32 v2, 1, v0')
    a('v_readfirstlane_b32 s22, v1')
    a('s_mul_i32 s23, s3, 384')
    a('s_lshl_b32 s24, s3, 1')
    a('s_and_b32 s24, s24, 0xfffffffc')
    a('s_waitcnt lgkmcnt(0)')
    stamp(a, 1)
    a('s_load_dword s25, s[16:17], s24')
    a('s_load_dword s26, s[18:19], s24')
    PRM = 8
    for i in range(6):
        s = 28 + 4*i
        srd(a, s, 4 + 2*i, D*N*2)
    a('s_cmp_eq_u32 s22, 3')
    a('s_cbranch_scc1 K1_SKIPLD')
    for i in range(6):
        s = 28 + 4*i
        a(f'buffer_load_short_d16_hi v{PRM+i}, v2, {sr(s,4)}, s23 offen')
    a.label('K1_SKIPLD')
    srd(a, 52, 20, 0x280000, WS_KW)
    EX = 100
    a('v_lshlrev_b32 v3, 3, v0')
    for e in range(8):
        a(f'v_add_u32 v{EX+e}, {e}, v3')
    for e in range(8):
        a(f'v_cvt_f32_u32 v{20+e}, v{EX+e}')
    for e in range(8):
        a(f'v_cvt_pk_bf16_f32 v{20+e}, v{20+e}, v{20+e}')
    for e in range(8):
        a(f'v_and_b32 v{20+e}, 0xffff, v{20+e}')
    for e in range(8):
        a(f'v_subrev_u32 v{20+e}, {0x4300-128}, v{20+e}')
    for e in range(8):
        a(f'v_max_i32 v{20+e}, 128, v{20+e}')
    for e in range(8):
        a(f'v_min_i32 v{EX+e}, v{EX+e}, v{20+e}')
    for e in range(8):
        a(f'v_lshlrev_b32 v{EX+e}, 2, v{EX+e}')
    a('v_and_b32 v4, 63, v0')
    a('v_bfe_u32 v5, v0, 1, 1')
    a(f'v_mul_u32_u24 v108, {HS}, v5')
    a('v_lshrrev_b32 v5, 2, v4')
    a('v_lshl_add_u32 v108, v5, 4, v108')
    a('v_and_b32 v5, 1, v0')
    a('v_lshl_add_u32 v108, v5, 3, v108')
    a(f's_mul_i32 s27, s22, {2*HS}')
    a(f's_add_u32 s27, s27, {2*HS}')
    a('v_add_u32 v109, s27, v108')
    a('v_and_b32 v5, 15, v0')
    a('v_bfe_u32 v6, v0, 4, 2')
    a('v_lshlrev_b32 v110, 4, v5')
    a('v_lshl_add_u32 v110, v6, 2, v110')
    a('v_add_u32 v111, 2, v110')
    a('s_cmp_eq_u32 s22, 0')
    a('s_cbranch_scc1 K1_GA')
    a('v_lshlrev_b32 v110, 1, v5')
    a('v_lshl_add_u32 v110, v6, 6, v110')
    a('v_add_u32 v110, 512, v110')
    a('v_add_u32 v111, 32, v110')
    a('s_cmp_lg_u32 s22, 1')
    a('s_cbranch_scc1 K1_GA')
    a('v_lshlrev_b32 v110, 3, v5')
    a('v_lshl_add_u32 v110, v6, 2, v110')
    a('v_add_u32 v110, 256, v110')
    a('v_lshlrev_b32 v111, 2, v5')
    a('v_lshl_add_u32 v111, v6, 6, v111')
    a('v_add_u32 v111, 256, v111')
    a('v_cmp_gt_u32 vcc, 2, v6')
    a('v_cndmask_b32 v110, v111, v110, vcc')
    a('v_add_u32 v111, 2, v110')
    a.label('K1_GA')
    a('v_lshlrev_b32 v110, 2, v110')
    a('v_lshlrev_b32 v111, 2, v111')
    a('v_lshlrev_b32 v112, 4, v0')
    a('s_waitcnt lgkmcnt(0)')
    a('s_bitcmp1_b32 s3, 0')
    a('s_cselect_b32 s24, 0, 16')
    a('s_lshl_b32 s25, s25, s24')
    a('s_and_b32 s25, s25, 0xffff0000')
    a('s_lshl_b32 s26, s26, s24')
    a('s_and_b32 s26, s26, 0xffff0000')
    a('v_mov_b32 v5, s26')
    a('v_cmp_eq_u32 vcc, 0, v0')
    a('v_cndmask_b32 v113, 0, v5, vcc')
    a('s_cmp_eq_u32 s22, 3')
    a('s_cbranch_scc1 K1_TBLDONE')
    a(f'v_mov_b32 v5, {f2u(math.log2(math.e))}')
    a('v_mul_f32 v5, s25, v5')
    a('v_exp_f32 v5, v5')
    round_bf16(a, 5, 5)
    stamp(a, 2)
    a('s_waitcnt vmcnt(0)')
    stamp(a, 3)
    for i in range(6):
        a(f'v_and_b32 v{PRM+i}, 0xffff0000, v{PRM+i}')
    for i in range(4):
        a(f'v_mul_f32 v{PRM+i}, v5, v{PRM+i}')
    a(f'v_mul_f32 v8, {f2u(math.log2(math.e))}, v8')
    a(f'v_mul_f32 v9, {f2u(1/(2*math.pi))}, v9')
    P0 = 32
    cmul(a, P0, 10, 12)
    anchors = [(14, 1.0, 1), (16, 16.0, -1), (18, 256.0, 1)]
    for k, (r, v, sg_) in enumerate(anchors):
        t = 20 + 3*k
        a(f'v_mul_f32 v{t}, {f2u(v)}, v8')
        a(f'v_mul_f32 v{t+1}, {f2u(v*sg_)}, v9')
    for k in range(3):
        t = 20 + 3*k
        a(f'v_fract_f32 v{t+1}, v{t+1}')
    for k in range(3):
        t = 20 + 3*k
        a(f'v_exp_f32 v{t}, v{t}')
        a(f'v_cos_f32 v{t+2}, v{t+1}')
        a(f'v_sin_f32 v{t+1}, v{t+1}')
    for k, (r, v, sg_) in enumerate(anchors):
        t = 20 + 3*k
        a(f'v_mul_f32 v{r}, v{t}, v{t+2}')
        a(f'v_mul_f32 v{r+1}, v{t}, v{t+1}')
    Q = 64
    PK = 20
    PK2 = 114
    W = 122
    def Wr(k): return 18 if k == 1 else W + 2*(k-2)
    def pack(rec, base, pk, hidx, n=8):
        for j in range(n//2):
            rec(f'v_cvt_pk_bf16_f32 v{pk+j}, v{base+4*j}, v{base+4*j+2}')
            rec(f'v_cvt_pk_bf16_f32 v{pk+4+j}, v{base+4*j+1}, v{base+4*j+3}')
        rec(f'ds_write_b128 v112, {vr(pk,4)} offset:{hidx*HS}')
        rec(f'ds_write_b128 v112, {vr(pk+4,4)} offset:{hidx*HS+3072}')
    rp, rq, rw = Rec(), Rec(), Rec()
    for b in range(1, 16):
        cmul(rp, P0+2*b, P0+2*(b-1), 14)
        if b == 7: pack(rp, P0, PK, 2)
    pack(rp, P0+16, PK, 3)
    rq(f'v_mov_b32 v{Q}, 1.0'); rq(f'v_mov_b32 v{Q+1}, 0')
    rq(f'v_mov_b32 v{Q+2}, v16'); rq(f'v_mov_b32 v{Q+3}, v17')
    for b in range(2, 16):
        cmul(rq, Q+2*b, Q+2*(b-1), 16)
        if b == 7: pack(rq, Q, PK2, 0)
    pack(rq, Q+16, PK2, 1)
    for k in range(2, 9):
        cmul(rw, Wr(k), Wr(k-1), 18)
    for t in interleave(rp.l, rq.l, rw.l): a(t)
    r1, r2 = Rec(), Rec()
    for b in range(8): cmul(r1, Q+2*b, P0+4*b, 18)
    pack(r1, Q, PK, 4)
    for b in range(4): cmul(r2, Q+16+2*b, P0+8*b, Wr(2))
    for b in range(4): cmul(r2, Q+24+2*b, P0+8*b, Wr(3))
    pack(r2, Q+16, PK2, 5)
    for t in interleave(r1.l, r2.l): a(t)
    r1, r2 = Rec(), Rec()
    for aa in range(4):
        for b in range(2):
            cmul(r1 if b == 0 else r2, Q+2*(2*aa+b), P0+16*b, Wr(4+aa))
    cmul(r2, Q+16, P0, Wr(8))
    for t in interleave(r1.l, r2.l): a(t)
    pack(a, Q, PK, 6)
    a(f'v_cvt_pk_bf16_f32 v{PK2}, v{Q+16}, v{Q+16}')
    a(f'v_cvt_pk_bf16_f32 v{PK2+1}, v{Q+17}, v{Q+17}')
    a(f'ds_write_b32 v112, v{PK2} offset:{7*HS}')
    a(f'ds_write_b32 v112, v{PK2+1} offset:{7*HS+3072}')
    a.label('K1_TBLDONE')
    a('s_waitcnt lgkmcnt(0)')
    a('s_barrier')
    stamp(a, 4)
    a('s_cmp_eq_u32 s22, 3')
    a('s_cbranch_scc1 K1_MFMADONE')
    FR = 4
    def rd(s):
        b = FR + 8*s
        a(f'ds_read_b64_tr_b16 {vr(b,2)}, v109 offset:{512*s}')
        a(f'ds_read_b64_tr_b16 {vr(b+2,2)}, v109 offset:{512*s+256}')
        a(f'ds_read_b64_tr_b16 {vr(b+4,2)}, v108 offset:{512*s}')
        a(f'ds_read_b64_tr_b16 {vr(b+6,2)}, v108 offset:{512*s+256}')
    for s in range(3): rd(s)
    for s in range(12):
        if s + 3 < 12:
            a('s_waitcnt lgkmcnt(8)')
        else:
            a(f's_waitcnt lgkmcnt({4*(11-s)})')
        b = FR + 8*s
        a(f'v_mfma_f32_16x16x32_bf16 v[114:117], {vr(b,4)}, {vr(b+4,4)}, {"0" if s == 0 else "v[114:117]"}')
        if s + 3 < 12: rd(s+3)
    a(f'ds_write_b64 v110, v[114:115] offset:{GT}')
    a(f'ds_write_b64 v111, v[116:117] offset:{GT}')
    a.label('K1_MFMADONE')
    a('s_waitcnt lgkmcnt(0)')
    a('s_barrier')
    stamp(a, 5)
    for e in range(8):
        a(f'ds_read_b32 v{8+e}, v{EX+e} offset:{GT}')
    a('s_lshl_b32 s23, s3, 12')
    a('s_waitcnt lgkmcnt(0)')
    a('v_add_f32 v8, v8, v113')
    for j in range(4):
        a(f'v_cvt_pk_bf16_f32 v{16+j}, v{8+2*j}, v{9+2*j}')
    a('buffer_store_dwordx4 v[16:19], v112, s[52:55], s23 offen')
    stamp_end(a, 0)
    a.label('K1_END')
    a('s_endpgm')
    return a
```

```python
from common import *
K2_CONV = 160
K2_GRID = 256
KREG = 4128
UPS = 1152
WREG = KREG + 4*UPS
K2_LDS = 4 * WREG

def gen_k2():
    a = Asm()
    a(f's_cmp_ge_u32 s2, {K2_GRID}')
    a('s_cbranch_scc1 K2_END')
    stamp_init(a)
    a(f's_cmp_ge_u32 s2, {K2_CONV}')
    a('s_cbranch_scc1 K2_CS')
    a(f's_load_dwordx2 s[4:5], s[0:1], {KA["ws"]}')
    a('v_lshrrev_b32 v1, 6, v0')
    a('v_and_b32 v2, 63, v0')
    a('v_readfirstlane_b32 s22, v1')
    a('s_lshl_b32 s3, s2, 2')
    a('s_add_u32 s3, s3, s22')
    a(f's_mul_i32 s23, s22, {WREG}')
    a('v_lshlrev_b32 v3, 4, v2')
    a('v_lshrrev_b32 v4, 1, v2')
    a('v_mul_u32_u24 v4, 20480, v4')
    a('v_and_b32 v5, 1, v2')
    a('v_lshl_add_u32 v4, v5, 4, v4')
    a('s_lshl_b32 s24, s3, 12')
    a('s_lshl_b32 s25, s3, 5')
    a('s_waitcnt lgkmcnt(0)')
    stamp(a, 1)
    srd(a, 8, 4, 0x280000, WS_UP)
    srd(a, 12, 4, 0x280000, WS_KW)
    vm = Cnt(a, 'vmcnt', 63); lg = Cnt(a, 'lgkmcnt', 15)
    ST = 176
    for i in range(4):
        a(f's_add_u32 s26, s25, {32*20480*i}')
        a(f'buffer_load_dwordx4 {vr(ST+4*i,4)}, v4, s[8:11], s26 offen'); vm.issue(('up', i))
    for i in range(4):
        a(f's_add_u32 m0, s23, {32+1024*i}')
        a(f's_add_u32 s26, s24, {1024*i}')
        a(f'buffer_load_dwordx4 v3, s[12:15], s26 offen lds'); vm.issue(('k', i))
    srd(a, 16, 4, 0x280000, WS_XT)
    srd(a, 28, 4, 0x280000, WS_HT)
    a('v_and_b32 v6, 15, v2')
    a('v_lshrrev_b32 v7, 4, v2')
    a('v_mul_u32_u24 v8, 20480, v6')
    a('v_lshl_add_u32 v8, v7, 3, v8')
    XT = 192
    for t in range(8):
        a(f's_add_u32 s26, s25, {16*20480*t}')
        a(f'buffer_load_dwordx2 {vr(XT+2*t,2)}, v8, s[16:19], s26 offen'); vm.issue(('xt', t))
    a('v_mov_b32 v10, 0'); a('v_mov_b32 v11, 0')
    a(f'v_mul_u32_u24 v9, {UPS}, v7')
    a('v_lshl_add_u32 v9, v6, 3, v9')
    a('v_add_u32 v9, s23, v9')
    a(f'ds_write_b64 v9, v[10:11] offset:{KREG}'); lg.issue()
    a('v_and_b32 v9, 3, v2')
    a('v_lshlrev_b32 v9, 3, v9')
    a('v_add_u32 v9, s23, v9')
    a('ds_write_b64 v9, v[10:11]'); lg.issue()
    a(f'v_mul_u32_u24 v9, {2*UPS}, v5')
    a('v_lshrrev_b32 v12, 1, v2')
    a('v_lshl_add_u32 v9, v12, 3, v9')
    a('v_add_u32 v9, s23, v9')
    a('v_and_b32 v12, 3, v2')
    a('v_bfe_u32 v13, v2, 2, 2')
    a('v_sub_u32 v12, v12, v13')
    a('v_lshlrev_b32 v12, 3, v12')
    a('v_lshlrev_b32 v13, 6, v7')
    a('v_sub_u32 v12, v12, v13')
    a('v_add_u32 v12, 224, v12')
    a('v_add_u32 v12, s23, v12')
    a('v_lshlrev_b32 v13, 3, v6')
    a('v_lshl_add_u32 v13, v7, 4, v13')
    a('v_add_u32 v13, s23, v13')
    a('v_add_u32 v14, 47, v2')
    a('v_cmp_eq_u32 vcc, 0, v2')
    a('v_cndmask_b32 v14, v14, 63, vcc')
    a('v_subrev_u32 v15, 16, v2')
    a('v_cmp_gt_u32 vcc, 16, v2')
    a('v_cndmask_b32 v14, v15, v14, vcc')
    a('v_lshlrev_b32 v14, 2, v14')
    a('v_lshlrev_b32 v15, 5, v6')
    a('v_lshl_add_u32 v15, v7, 3, v15')
    a('s_mov_b32 s32, 0')
    a('s_brev_b32 s33, 1')
    AF = 16
    ACC = 80
    for r in range(96): a(f'v_mov_b32 v{ACC+r}, 0')
    stamp(a, 2)
    for i in range(4):
        vm.wait(('up', i))
        a(f'ds_write_b64 v9, {vr(ST+4*i,2)} offset:{KREG+128+256*i}'); lg.issue()
        a(f'ds_write_b64 v9, {vr(ST+4*i+2,2)} offset:{KREG+128+256*i+UPS}'); lg.issue()
    stamp(a, 3)
    vm.wait(('k', 3))
    stamp(a, 4)
    BR = 208; NB = 8
    groups = [(b, ph) for b in range(-1, 15) for ph in range(4)]
    def rdB(gi):
        b, ph = groups[gi]
        r = BR + 4*(gi % NB)
        off = KREG + 8 + ph*UPS + 64*(b+1)
        a(f'ds_read_b64 {vr(r,2)}, v13 offset:{off}'); lg.issue()
        a(f'ds_read_b64 {vr(r+2,2)}, v13 offset:{off+8}'); lg.issue(('B', gi))
    def rdA(m):
        a(f'ds_read_b64_tr_b16 {vr(AF+4*m,2)}, v12 offset:{256*m+32}'); lg.issue()
        a(f'ds_read_b64_tr_b16 {vr(AF+4*m+2,2)}, v12 offset:{256*m}'); lg.issue(('A', m))
    rdB(0)
    for m in range(1, 16, 2): rdA(m)
    PD = 5
    nextB = 1
    pendA = list(range(0, 16, 2))
    TMP = ST
    def epi1(t):
        E = ACC + 12*t; O = E + 6
        l = []
        for p in range(1, 6):
            l.append(lambda p=p: a(f'v_add_f32 v{E+p}, v{E+p}, v{O+p-1}'))
        cur = [E+4, E+5, O+5]
        prev = [E-12+4, E-12+5, O-12+5]
        tb = TMP + 8*(t & 1)
        for r in range(3):
            if t == 0:
                l.append(lambda r=r: a(f'v_cndmask_b32 v{tb+r}, v{cur[r]}, 0, s[32:33]'))
            else:
                l.append(lambda r=r: a(f'v_cndmask_b32 v{tb+r}, v{cur[r]}, v{prev[r]}, s[32:33]'))
        for r in range(3):
            def f(r=r):
                a(f'ds_bpermute_b32 v{tb+r}, v14, v{tb+r}'); lg.issue(('bp', t, r))
            l.append(f)
        return l
    def epi2(t):
        E = ACC + 12*t
        tb = TMP + 8*(t & 1)
        l = []
        def w():
            vm.wait(('xt', t))
            a(f'v_lshlrev_b32 v{tb+4}, 16, v{XT+2*t}')
        l.append(w)
        l.append(lambda: a(f'v_and_b32 v{tb+5}, 0xffff0000, v{XT+2*t}'))
        l.append(lambda: a(f'v_lshlrev_b32 v{tb+6}, 16, v{XT+2*t+1}'))
        l.append(lambda: a(f'v_and_b32 v{tb+7}, 0xffff0000, v{XT+2*t+1}'))
        for r in range(4):
            l.append(lambda r=r: a(f'v_add_f32 v{tb+4+r}, v{tb+4+r}, v{E+r}'))
        def w2():
            lg.wait(('bp', t, 2))
            a(f'v_add_f32 v{tb+4}, v{tb+4}, v{tb}')
        l.append(w2)
        l.append(lambda: a(f'v_add_f32 v{tb+5}, v{tb+5}, v{tb+1}'))
        l.append(lambda: a(f'v_add_f32 v{tb+6}, v{tb+6}, v{tb+2}'))
        l.append(lambda: a(f'v_cvt_pk_bf16_f32 v{XT+2*t}, v{tb+4}, v{tb+5}'))
        l.append(lambda: a(f'v_cvt_pk_bf16_f32 v{XT+2*t+1}, v{tb+6}, v{tb+7}'))
        def st():
            a(f'buffer_store_dwordx2 {vr(XT+2*t,2)}, v15, s[28:31], s24 offen offset:{512*t}'); vm.issue()
        l.append(st)
        return l
    side = []
    delay = 0
    for gi, (b, ph) in enumerate(groups):
        while nextB < len(groups) and nextB <= gi + PD:
            rdB(nextB); nextB += 1
            if pendA:
                rdA(pendA.pop(0));
                if pendA: rdA(pendA.pop(0))
        lg.wait(('B', gi))
        r = BR + 4*(gi % NB)
        ms = [m for m in range(16) if (m + b) % 2 == 0 and 0 <= (m + b)//2 <= 7]
        for m in ms:
            t = (m + b)//2
            lg.wait(('A', m))
            acc = ACC + 12*t + (6 if ph & 1 else 0) + (2 if ph & 2 else 0)
            a(f'v_mfma_f32_16x16x32_bf16 {vr(acc,4)}, {vr(AF+4*m,4)}, {vr(r,4)}, {vr(acc,4)}')
            if delay > 0: delay -= 1
            elif side: side.pop(0)()
        if ph == 3 and b >= 0 and b % 2 == 0:
            t = b // 2
            side += epi1(t) + epi2(t)
            if len(side) == len(epi1(t)) + len(epi2(t)): delay = 3
    stamp(a, 5)
    for f in side: f()
    stamp_end(a, 1)
    a('s_endpgm')

    a.label('K2_CS')
    a(f's_load_dwordx4 s[4:7], s[0:1], {KA["Wg"]}')
    a(f's_load_dwordx2 s[16:17], s[0:1], {KA["ws"]}')
    a(f's_sub_u32 s3, s2, {K2_CONV}')
    a('s_cmp_ge_u32 s3, 48')
    a('s_cselect_b32 s20, 48, 0')
    a('s_sub_u32 s21, s3, s20')
    a('v_and_b32 v1, 3, v0')
    a('v_lshrrev_b32 v2, 2, v0')
    a('v_mul_u32_u24 v3, 3072, v2')
    a('v_lshl_add_u32 v3, v1, 4, v3')
    a('s_lshl_b32 s22, s21, 6')
    a('s_waitcnt lgkmcnt(0)')
    a('s_cmp_ge_u32 s3, 48')
    a('s_cselect_b32 s8, s6, s4')
    a('s_cselect_b32 s9, s7, s5')
    a(f's_mov_b32 s10, {D*F*2}')
    a('s_mov_b32 s11, 0x20000')
    for i in range(10):
        a(f'buffer_load_dwordx4 {vr(16+4*i,4)}, v3, s[8:11], s22 offen')
        a(f's_add_u32 s22, s22, {64*3072}')
    srd(a, 12, 16, 3072*4, WS_CS)
    a('s_mov_b32 s24, 0x00003f80')
    a('s_mov_b32 s25, 0x3f800000')
    for j in range(8): a(f'v_mov_b32 v{8+j}, 0')
    for i in range(10):
        a(f's_waitcnt vmcnt({9-i})')
        for j in range(4):
            a(f'v_dot2_f32_bf16 v{8+2*j}, v{16+4*i+j}, s24, v{8+2*j}')
            a(f'v_dot2_f32_bf16 v{9+2*j}, v{16+4*i+j}, s25, v{9+2*j}')
    for sh in (4, 8):
        for j in range(8):
            a(f'v_add_f32_dpp v{8+j}, v{8+j}, v{8+j} row_ror:{sh} row_mask:0xf bank_mask:0xf')
    a('v_lshrrev_b32 v4, 4, v0')
    a('v_lshlrev_b32 v4, 7, v4')
    a('v_lshl_add_u32 v4, v1, 5, v4')
    a('ds_write_b128 v4, v[8:11]')
    a('ds_write_b128 v4, v[12:15] offset:16')
    a('s_waitcnt lgkmcnt(0)')
    a('s_barrier')
    a('v_and_b32 v5, 31, v0')
    a('v_lshlrev_b32 v5, 2, v5')
    for p in range(0, 16, 2):
        a(f'ds_read2_b32 {vr(16+p,2)}, v5 offset0:{32*p} offset1:{32*(p+1)}' if 32*(p+1) < 256 else
          f'ds_read_b32 v{16+p}, v5 offset:{128*p}\nds_read_b32 v{17+p}, v5 offset:{128*(p+1)}')
    a('s_waitcnt lgkmcnt(0)')
    for st in (8, 4, 2, 1):
        for j in range(st):
            a(f'v_add_f32 v{16+j}, v{16+j}, v{16+j+st}')
    a('s_lshl_b32 s22, s3, 7')
    a('buffer_store_dword v16, v5, s[12:15], s22 offen')
    stamp_end(a, 1)
    a.label('K2_END')
    a('s_endpgm')
    return a
```

```python
from common import *
K3_GRID = 256
G_OFF = 8192
U_OFF = 8192 + 6144 + 32
STG = U_OFF + 6144
NS = 7
NK = 20
STAT = NS * STG
K3_LDS = STAT + 1024

def gen_k3(rot_on=True):
    a = Asm()
    a(f's_cmp_ge_u32 s2, {K3_GRID}')
    a('s_cbranch_scc1 K3_END')
    stamp_init(a)
    a(f's_load_dwordx4 s[4:7], s[0:1], {KA["Wg"]}')
    a(f's_load_dwordx2 s[16:17], s[0:1], {KA["ws"]}')
    a('v_lshrrev_b32 v1, 6, v0')
    a('v_and_b32 v2, 63, v0')
    a('v_readfirstlane_b32 s22, v1')
    a('s_and_b32 s3, s2, 7')
    a('s_lshr_b32 s18, s2, 3')
    a('s_lshr_b32 s19, s18, 3')
    a('s_and_b32 s20, s18, 7')
    a('s_lshr_b32 s23, s3, 1')
    a('s_lshl_b32 s23, s23, 2')
    a('s_add_u32 s23, s23, s19')
    a('s_and_b32 s24, s3, 1')
    a('s_lshl_b32 s24, s24, 3')
    a('s_add_u32 s24, s24, s20')
    a('v_bfe_u32 v3, v2, 4, 1')
    a('v_lshrrev_b32 v4, 5, v2')
    a('v_bfe_u32 v5, v2, 2, 2')
    a('v_and_b32 v6, 3, v2')
    a('s_cmp_lt_u32 s22, 4')
    a('s_cbranch_scc1 K3_COMP')
    a('s_sub_u32 s22, s22, 4')
    if rot_on:
        a('s_mul_i32 s25, s19, 5')
        a('s_mul_i32 s26, s20, 5')
        a('s_lshr_b32 s26, s26, 1')
        a('s_add_u32 s25, s25, s26')
        a('s_cmp_ge_u32 s25, 20')
        a('s_cselect_b32 s26, 20, 0')
        a('s_sub_u32 s25, s25, s26')
    else:
        a('s_mov_b32 s25, 0')
    a('v_lshrrev_b32 v7, 4, v2')
    a('v_lshlrev_b32 v8, 2, v7')
    a('v_and_b32 v9, 15, v2')
    a('v_xor_b32 v8, v8, v9')
    a('v_lshlrev_b32 v8, 4, v8')
    a('v_lshl_add_u32 v8, v7, 12, v8')
    a('s_mov_b32 s26, 0x5556')
    for i in range(3):
        a(f'v_add_u32 v12, {64*i}, v2')
        a('v_mul_u32_u24 v13, s26, v12')
        a('v_lshrrev_b32 v13, 18, v13')
        a('v_mul_u32_u24 v14, 12, v13')
        a('v_sub_u32 v14, v12, v14')
        a(f'v_mul_u32_u24 v{9+i}, 3072, v13')
        a(f'v_lshl_add_u32 v{9+i}, v14, 4, v{9+i}')
    a('s_lshl_b32 s27, s22, 15')
    a('s_lshl_b32 s26, s23, 8')
    a('s_add_u32 s27, s27, s26')
    a('s_and_b32 s28, s22, 1')
    a(f's_mul_i32 s28, s28, {16*3072}')
    a('s_mul_i32 s26, s24, 192')
    a('s_add_u32 s28, s28, s26')
    a('s_lshl_b32 s29, s22, 11')
    a('s_cmp_lt_u32 s22, 2')
    a(f's_cselect_b32 s30, 0, {U_OFF-G_OFF}')
    a(f's_add_u32 s30, s30, {G_OFF}')
    a('s_and_b32 s26, s22, 1')
    a('s_mul_i32 s26, s26, 3072')
    a('s_add_u32 s30, s30, s26')
    a('s_waitcnt lgkmcnt(0)')
    a('s_cmp_lt_u32 s22, 2')
    a('s_cselect_b32 s8, s4, s6')
    a('s_cselect_b32 s9, s5, s7')
    a(f's_mov_b32 s10, {D*F*2}')
    a('s_mov_b32 s11, 0x20000')
    srd(a, 12, 16, 0x280000, WS_HT)
    def dma(s):
        slot = (s % NS) * STG
        a('s_lshl_b32 s31, s25, 17')
        a('s_add_u32 s31, s31, s27')
        a(f's_mul_i32 s32, s25, {32*3072}')
        a('s_add_u32 s32, s32, s28')
        for i in range(2):
            a(f's_add_u32 m0, s29, {slot+1024*i}')
            if i: a('s_add_u32 s31, s31, 16384')
            a('buffer_load_dwordx4 v8, s[12:15], s31 offen lds')
        for i in range(3):
            a(f's_add_u32 m0, s30, {slot+1024*i}')
            a(f'buffer_load_dwordx4 v{9+i}, s[8:11], s32 offen lds')
        a('s_add_u32 s25, s25, 1')
        a('s_cmp_eq_u32 s25, 20')
        a('s_cselect_b32 s25, 0, s25')
    stamp(a, 1)
    for s in range(NS): dma(s)
    stamp(a, 2)
    a('v_lshrrev_b32 v13, 1, v6')
    a('v_lshl_add_u32 v13, v3, 1, v13')
    a('s_lshl_b32 s26, s22, 2')
    a('v_add_u32 v13, s26, v13')
    a('v_lshlrev_b32 v14, 2, v5')
    a('v_xor_b32 v13, v13, v14')
    a('v_lshlrev_b32 v13, 4, v13')
    a('v_lshl_add_u32 v14, v4, 3, v5')
    a('v_lshl_add_u32 v13, v14, 8, v13')
    a('v_and_b32 v14, 1, v6')
    a('v_lshl_add_u32 v12, v14, 3, v13')
    a(f'v_add_u32 v13, {3*STG}, v12')
    a(f'v_add_u32 v14, {6*STG}, v12')
    a('s_mov_b32 s33, 0x3f803f80')
    for r in range(16, 20): a(f'v_mov_b32 v{r}, 0')
    issued = NS
    for s in range(NK):
        out = (issued - 1 - s) * 5
        a(f's_waitcnt vmcnt({out})')
        if s in (0, 7, 14): stamp(a, 3 + s//7)
        a('s_barrier')
        if s >= 1 and issued < NK:
            dma(issued); issued += 1
        sl = s % NS
        base = 12 + sl // 3; off = (sl % 3) * STG
        for q in range(4):
            a(f'ds_read_b64_tr_b16 {vr(20+2*q,2)}, v{base} offset:{off + (q>>1)*4096 + (q&1)*1024}')
        for q in range(4):
            a(f's_waitcnt lgkmcnt({3-q})')
            for j in range(2):
                r = 20 + 2*q + j
                a(f'v_dot2_f32_bf16 v{16+j}, v{r}, s33, v{16+j}')
                a(f'v_dot2_f32_bf16 v{18+j}, v{r}, v{r}, v{18+j}')
    a('v_add_f32 v16, v16, v17')
    a('v_add_f32 v18, v18, v19')
    a('v_mov_b32 v17, v16')
    a('v_mov_b32 v19, v18')
    a('v_permlane32_swap_b32 v16, v17')
    a('v_permlane32_swap_b32 v18, v19')
    a('v_add_f32 v16, v16, v17')
    a('v_add_f32 v18, v18, v19')
    a(f'v_mul_f32 v16, {f2u(1.0/640)}, v16')
    a(f'v_mul_f32 v18, {f2u(1.0/640)}, v18')
    a('v_fma_f32 v18, -v16, v16, v18')
    a('v_max_f32 v18, 0, v18')
    round_bf16(a, 16, 16)
    a('v_and_b32 v20, 31, v2')
    a('s_lshl_b32 s26, s22, 7')
    a('v_lshl_add_u32 v20, v20, 2, s26')
    a(f'v_add_u32 v21, {STAT}, v20')
    a('ds_write_b32 v21, v16')
    a('s_waitcnt lgkmcnt(0)')
    a('s_barrier')
    a('s_cmp_lg_u32 s24, 0')
    a('s_cbranch_scc1 K3_LEND')
    round_bf16(a, 18, 18)
    a(f'v_add_f32 v18, {f2u(1e-5)}, v18')
    round_bf16(a, 18, 18)
    a('v_sqrt_f32 v18, v18')
    round_bf16(a, 18, 18)
    a('v_rcp_f32 v18, v18')
    a('v_mul_f32 v18, v18, v18')
    srd(a, 8, 16, L*4, WS_R2)
    a('s_lshl_b32 s26, s23, 9')
    a('buffer_store_dword v18, v20, s[8:11], s26 offen')
    a.label('K3_LEND')
    stamp_end(a, 2)
    a('s_endpgm')

    a.label('K3_COMP')
    a('s_and_b32 s25, s22, 1')
    a('s_lshr_b32 s26, s22, 1')
    a('s_waitcnt lgkmcnt(0)')
    srd(a, 8, 16, 3072*4, WS_CS)
    srd(a, 12, 16, L*F*2, WS_HID)
    CSR = 112
    a('s_mul_i32 s27, s24, 384')
    a('s_mul_i32 s28, s26, 192')
    a('s_add_u32 s27, s27, s28')
    a('s_add_u32 s28, s27, 6144')
    a('v_lshlrev_b32 v7, 4, v4')
    for ft in range(3):
        for mat in range(2):
            for j in range(2):
                r = CSR + 16*ft + 8*mat + 4*j
                a(f'buffer_load_dwordx4 {vr(r,4)}, v7, s[8:11], s{27+mat} offen offset:{64*ft+32*j}')
    HA = 220
    WA = 226
    a('v_lshl_add_u32 v9, v4, 3, v5')
    a('v_lshrrev_b32 v10, 1, v6')
    a('v_lshl_add_u32 v10, v3, 1, v10')
    a('s_lshl_b32 s29, s25, 3')
    a('v_add_u32 v10, s29, v10')
    a('v_lshlrev_b32 v11, 2, v5')
    a('v_and_b32 v12, 1, v6')
    a('v_lshlrev_b32 v12, 3, v12')
    a('v_lshl_add_u32 v12, v9, 8, v12')
    for tt in range(2):
        a(f'v_add_u32 v13, {4*tt}, v10')
        a('v_xor_b32 v13, v13, v11')
        a(f'v_lshl_add_u32 v{HA+tt}, v13, 4, v12')
        a(f'v_add_u32 v{HA+2+tt}, {3*STG}, v{HA+tt}')
        a(f'v_add_u32 v{HA+4+tt}, {6*STG}, v{HA+tt}')
    a(f'v_mul_u32_u24 v13, {U_OFF-G_OFF}, v3')
    a('v_mul_u32_u24 v14, 192, v9')
    a('v_add_u32 v13, v13, v14')
    a('v_lshl_add_u32 v13, v6, 3, v13')
    a('s_mul_i32 s29, s26, 96')
    a(f's_add_u32 s29, s29, {G_OFF}')
    a(f'v_add_u32 v{WA}, s29, v13')
    a(f'v_add_u32 v{WA+1}, {3*STG}, v{WA}')
    a(f'v_add_u32 v{WA+2}, {6*STG}, v{WA}')
    a('v_mul_u32_u24 v230, 49152, v3')
    a('v_lshl_add_u32 v230, v4, 8, v230')
    a('v_and_b32 v13, 15, v2')
    a('v_lshl_add_u32 v230, v13, 4, v230')
    a('v_and_b32 v13, 31, v2')
    a('s_lshl_b32 s29, s25, 8')
    a(f's_add_u32 s29, s29, {STAT}')
    a('v_lshl_add_u32 v231, v13, 2, s29')
    ACC = 16
    FB = 160
    lg = Cnt(a, 'lgkmcnt', 15)
    def reads(n):
        s, ks = n // 2, n % 2
        sl = s % NS; st = sl // 3; off = (sl % 3) * STG
        fb = FB + 20 * (n % 2)
        l = []
        order = [('W', 0), ('H', 0), ('H', 1), ('W', 1), ('W', 2)]
        for kind, idx in order:
            for hh in range(2):
                if kind == 'W':
                    r = fb + 4*idx + 2*hh
                    txt = f'ds_read_b64_tr_b16 {vr(r,2)}, v{WA+st} offset:{off + ks*16*192 + hh*4*192 + idx*32}'
                else:
                    r = fb + 12 + 4*idx + 2*hh
                    txt = f'ds_read_b64_tr_b16 {vr(r,2)}, v{HA+2*st+idx} offset:{off + ks*4096 + hh*1024}'
                def f(txt=txt, tag=(n, kind, idx, hh)):
                    a(txt); lg.issue(tag)
                l.append(f)
        return l
    stamp(a, 1)
    a('s_barrier')
    stamp(a, 2)
    for f in reads(0): f()
    mf_order = [(0, 0), (1, 0), (0, 1), (1, 1), (0, 2), (1, 2)]
    for n in range(2*NK):
        fb = FB + 20 * (n % 2)
        nxt = reads(n+1) if n + 1 < 2*NK else []
        need_bar = (n % 2 == 1) and (n + 1 < 2*NK)
        if need_bar:
            lg.wait_all()
        if n in (14, 28): stamp(a, 2 + n//14)
        for k, (tt, ft) in enumerate(mf_order):
            lg.wait((n, 'W', ft, 1)); lg.wait((n, 'H', tt, 1))
            acc = ACC + 16*(3*tt+ft)
            a(f'v_mfma_f32_32x32x16_bf16 {vr(acc,16)}, {vr(fb+4*ft,4)}, {vr(fb+12+4*tt,4)}, {"0" if n == 0 else vr(acc,16)}')
            if k == 0 and need_bar: a('s_barrier')
            for _ in range(2):
                if nxt: nxt.pop(0)()
    stamp(a, 5)
    a('s_barrier')
    stamp(a, 6)
    a('ds_read_b32 v8, v231')
    a('ds_read_b32 v10, v231 offset:128')
    a('s_lshl_b32 s27, s23, 1')
    a('s_add_u32 s27, s27, s25')
    a(f's_mul_i32 s27, s27, {4*49152}')
    a('s_lshl_b32 s28, s24, 1')
    a('s_add_u32 s28, s28, s26')
    a('s_mul_i32 s28, s28, 1536')
    a('s_add_u32 s27, s27, s28')
    a(f's_add_u32 s28, s27, {2*49152}')
    a('s_waitcnt vmcnt(0) lgkmcnt(0)')
    for tt in range(2):
        for ft in range(3):
            acc = ACC + 16*(3*tt+ft); cs = CSR + 16*ft; mr = 8 + 2*tt
            for p in range(8):
                a(f'v_pk_fma_f32 {vr(acc+2*p,2)}, {vr(cs+2*p,2)}, {vr(mr,2)}, {vr(acc+2*p,2)} op_sel:[0,0,0] op_sel_hi:[1,0,1] neg_lo:[0,1,0] neg_hi:[0,1,0]')
            for p in range(8):
                a(f'v_max_f32 v{acc+p}, 0, v{acc+p}')
            for p in range(4):
                a(f'v_pk_mul_f32 {vr(acc+2*p,2)}, {vr(acc+2*p,2)}, {vr(acc+8+2*p,2)}')
            for p in range(4):
                a(f'v_cvt_pk_bf16_f32 v{acc+8+p}, v{acc+2*p}, v{acc+2*p+1}')
            a(f'buffer_store_dwordx4 {vr(acc+8,4)}, v230, s[12:15], s{27+tt} offen offset:{512*ft}')
    stamp_end(a, 2)
    a.label('K3_END')
    a('s_endpgm')
    return a
```

```python
from common import *
K4_GRID = 256
STG4 = 20480
NS4 = 7
NK4 = 12
K4_LDS = NS4 * STG4

def gen_k4(rot_on=True):
    a = Asm()
    a(f's_cmp_ge_u32 s2, {K4_GRID}')
    a('s_cbranch_scc1 K4_END')
    stamp_init(a)
    a(f's_load_dwordx4 s[4:7], s[0:1], {KA["Wd"]}')
    a(f's_load_dwordx2 s[16:17], s[0:1], {KA["ws"]}')
    a('v_lshrrev_b32 v1, 6, v0')
    a('v_and_b32 v2, 63, v0')
    a('v_readfirstlane_b32 s22, v1')
    a('s_and_b32 s3, s2, 7')
    a('s_lshr_b32 s18, s2, 3')
    a('s_lshr_b32 s19, s18, 3')
    a('s_and_b32 s24, s18, 7')
    a('s_lshl_b32 s23, s3, 2')
    a('s_add_u32 s23, s23, s19')
    a('s_lshl_b32 s23, s23, 2')
    a('s_add_u32 s23, s23, s22')
    if rot_on:
        a('s_mul_i32 s25, s19, 3')
        a('s_mul_i32 s26, s24, 3')
        a('s_lshr_b32 s26, s26, 1')
        a('s_add_u32 s25, s25, s26')
        a('s_cmp_ge_u32 s25, 12')
        a('s_cselect_b32 s26, 12, 0')
        a('s_sub_u32 s25, s25, s26')
    else:
        a('s_mov_b32 s25, 0')
    a('s_mov_b32 s26, 0x6667')
    for i in range(5):
        a(f'v_add_u32 v13, {64*i}, v2')
        a('v_mul_u32_u24 v14, s26, v13')
        a('v_lshrrev_b32 v14, 18, v14')
        a('v_mul_u32_u24 v15, 10, v14')
        a('v_sub_u32 v15, v13, v15')
        a(f'v_mul_u32_u24 v{8+i}, 1280, v14')
        a(f'v_lshl_add_u32 v{8+i}, v15, 4, v{8+i}')
    a('v_lshlrev_b32 v13, 4, v2')
    a(f's_mul_i32 s27, s22, {32*1280}')
    a('s_mul_i32 s26, s24, 160')
    a('s_add_u32 s27, s27, s26')
    a('s_mul_i32 s28, s23, 49152')
    a('s_mul_i32 s29, s22, 5120')
    a('s_waitcnt lgkmcnt(0)')
    srd(a, 8, 4, F*D*2)
    srd(a, 12, 16, L*F*2, WS_HID)
    vm = Cnt(a, 'vmcnt', 63); lg = Cnt(a, 'lgkmcnt', 15)
    HB = 64
    def load(s):
        slot = (s % NS4)
        a(f's_mul_i32 s31, s25, {128*1280}')
        a('s_add_u32 s31, s31, s27')
        a('s_lshl_b32 s32, s25, 12')
        a('s_add_u32 s32, s32, s28')
        for q in range(4):
            a(f'buffer_load_dwordx4 {vr(HB+16*slot+4*q,4)}, v13, s[12:15], s32 offen offset:{1024*q}'); vm.issue()
        for i in range(5):
            a(f's_add_u32 m0, s29, {slot*STG4+1024*i}')
            a(f'buffer_load_dwordx4 v{8+i}, s[8:11], s31 offen lds'); vm.issue(('st', s))
        a('s_add_u32 s25, s25, 1')
        a('s_cmp_eq_u32 s25, 12')
        a('s_cselect_b32 s25, 0, s25')
    stamp(a, 1)
    for s in range(NS4 - 1): load(s)
    stamp(a, 2)
    a('v_lshrrev_b32 v3, 5, v2')
    a('v_bfe_u32 v4, v2, 4, 1')
    a('v_bfe_u32 v5, v2, 2, 2')
    a('v_and_b32 v6, 3, v2')
    a('v_lshlrev_b32 v3, 4, v3')
    a('v_lshl_add_u32 v3, v4, 2, v3')
    a('v_add_u32 v3, v3, v5')
    a('v_mul_u32_u24 v3, 160, v3')
    a('v_lshl_add_u32 v14, v6, 3, v3')
    a(f'v_add_u32 v15, {3*STG4}, v14')
    a(f'v_add_u32 v16, {6*STG4}, v14')
    a('v_lshrrev_b32 v3, 4, v2')
    a('v_and_b32 v4, 15, v2')
    a('v_lshlrev_b32 v17, 14, v3')
    a('v_lshl_add_u32 v17, v4, 1, v17')
    a('v_mul_u32_u24 v18, 1280, v4')
    a('v_lshl_add_u32 v18, v3, 3, v18')
    a('v_lshlrev_b32 v19, 2, v4')
    srd(a, 36, 16, 0x280000, WS_HT)
    srd(a, 40, 16, L*4, WS_R2)
    srd(a, 44, 6, L*D*2)
    ACC = 20
    HR = 40
    WB = 176
    for r in range(20): a(f'v_mov_b32 v{HR+r}, 0')
    def reads(n):
        s, ks = n // 4, n % 4
        sl = s % NS4; base = 14 + sl // 3; off = (sl % 3) * STG4 + ks * 32 * 160
        wb = WB + 20 * (n % 2)
        l = []
        for tau in range(5):
            for hh in range(2):
                def f(tau=tau, hh=hh):
                    a(f'ds_read_b64_tr_b16 {vr(wb+4*tau+2*hh,2)}, v{base} offset:{off + hh*8*160 + tau*32}'); lg.issue((n, tau, hh))
                l.append(f)
        return l
    issued = NS4 - 1
    def resid():
        a('s_mul_i32 s33, s24, 80')
        a('s_lshl_b32 s33, s33, 12')
        a('s_lshl_b32 s34, s23, 5')
        a('s_add_u32 s33, s33, s34')
        for tau in range(5):
            for r in range(4):
                a(f's_add_u32 s34, s33, {(16*tau+r)*4096}')
                a(f'buffer_load_short_d16_hi v{HR+4*tau+r}, v17, s[36:39], s34 offen'); vm.issue()
        a('s_lshl_b32 s34, s23, 6')
        a('buffer_load_dword v60, v19, s[40:43], s34 offen'); vm.issue('res')
    vm.wait(('st', 0))
    a('s_barrier')
    stamp(a, 3)
    load(issued); issued += 1
    for f in reads(0): f()
    for n in range(4*NK4):
        s, ks = n // 4, n % 4
        wb = WB + 20 * (n % 2)
        last = n + 1 == 4*NK4
        nxt = reads(n+1) if not last else []
        need_bar = ks == 3 and not last
        if need_bar:
            lg.wait_all()
        if n in (16, 32): stamp(a, 3 + n//16)
        for tau in range(5):
            lg.wait((n, tau, 1))
            acc = ACC + 4*tau
            a(f'v_mfma_f32_16x16x32_bf16 {vr(acc,4)}, {vr(wb+4*tau,4)}, {vr(HB+16*(s%NS4)+4*ks,4)}, {"0" if n == 0 else vr(acc,4)}')
            if tau == 0 and need_bar:
                vm.wait(('st', s+1))
                a('s_barrier')
            for _ in range(2):
                if nxt: nxt.pop(0)()
        if need_bar:
            if issued < NK4:
                load(issued); issued += 1
                if issued == NK4: pass
            elif s == NK4 - NS4 + 2:
                resid()
    stamp(a, 6)
    vm.wait('res')
    a(f's_mul_i32 s33, s23, {16*1280}')
    a('s_mul_i32 s34, s24, 160')
    a('s_add_u32 s33, s33, s34')
    for tau in range(5):
        for r in range(4):
            a(f'v_fma_f32 v{ACC+4*tau+r}, v{ACC+4*tau+r}, v60, v{HR+4*tau+r}')
        a(f'v_cvt_pk_bf16_f32 v{HR+4*tau}, v{ACC+4*tau}, v{ACC+4*tau+1}')
        a(f'v_cvt_pk_bf16_f32 v{HR+4*tau+1}, v{ACC+4*tau+2}, v{ACC+4*tau+3}')
        a(f'buffer_store_dwordx2 {vr(HR+4*tau,2)}, v18, s[44:47], s33 offen offset:{32*tau}')
    stamp_end(a, 3)
    a.label('K4_END')
    a('s_endpgm')
    return a
```

```python
from asmlib import *
L, D, N, F = 2048, 640, 192, 1536
OPT = dict(pf=1, rot3=0, rot4=0)
KA = dict(x=0, Are=8, Aim=16, Bre=24, Bim=32, Cre=40, Cim=48, logdt=56, dskip=64, bx=72, Wg=80, Wu=88, Wd=96, out=104, dbg=112, ws=120)
WS_UP = 0x000000
WS_XT = 0x280000
WS_KW = 0x500000
WS_HT = 0x780000
WS_HID = 0xA00000
WS_CS = 0x1000000
WS_END = 0x1100000
def f2u(x):
    import struct
    return '0x%08x' % struct.unpack('<I', struct.pack('<f', x))[0]
def srd(a, s, base_s, nbytes, off=0):
    if off:
        a(f's_add_u32 s{s}, s{base_s}, {hex(off)}')
        a(f's_addc_u32 s{s+1}, s{base_s+1}, 0')
    else:
        a(f's_mov_b32 s{s}, s{base_s}')
        a(f's_mov_b32 s{s+1}, s{base_s+1}')
    a(f's_mov_b32 s{s+2}, {hex(nbytes)}')
    a(f's_mov_b32 s{s+3}, 0x20000')
def cmul(a, r, x, y):
    a(f'v_pk_mul_f32 {vr(r,2)}, {vr(x,2)}, {vr(y,2)} op_sel:[0,0] op_sel_hi:[0,1]')
    a(f'v_pk_fma_f32 {vr(r,2)}, {vr(x,2)}, {vr(y,2)}, {vr(r,2)} op_sel:[1,1,0] op_sel_hi:[1,0,1] neg_lo:[0,1,0]')
def interleave(*seqs):
    out = []
    seqs = [list(s) for s in seqs]
    while any(seqs):
        for s in seqs:
            if s: out.append(s.pop(0))
    return out
class Rec:
    def __init__(self): self.l = []
    def __call__(self, t):
        for line in t.split('\n'):
            if line.strip(): self.l.append(line.strip())

class Cnt:
    def __init__(self, a, name, maxv):
        self.a, self.name, self.maxv = a, name, maxv
        self.n = 0
        self.done = 0
        self.tags = {}
    def issue(self, tag=None):
        self.n += 1
        if tag is not None: self.tags[tag] = self.n
    def wait(self, tag):
        k = self.tags[tag]
        if k <= self.done: return
        out = min(self.n - k, self.maxv)
        self.a(f's_waitcnt {self.name}({out})')
        self.done = self.n - out
    def wait_all(self):
        if self.done < self.n:
            self.a(f's_waitcnt {self.name}(0)'); self.done = self.n
WS_R2 = 0x1010000
def round_bf16(a, d, s):
    a(f'v_cvt_pk_bf16_f32 v{d}, v{s}, v{s}')
    a(f'v_and_b32 v{d}, 0xffff0000, v{d}')

WS_STAMP = 0x2000000
STAMP_ON = [False]
STAMP_OP = ['s_memrealtime']
def stamp(a, i):
    if STAMP_ON[0]:
        a(f'{STAMP_OP[0]} s[{80+2*i}:{81+2*i}]')
def stamp_init(a):
    if STAMP_ON[0]:
        for i in range(8): a(f's_mov_b32 s{80+2*i}, 0')
        a('s_mov_b32 s98, s2')
        a('v_lshrrev_b32 v1, 6, v0')
        a('v_readfirstlane_b32 s99, v1')
        stamp(a, 0)
def stamp_end(a, kidx):
    if not STAMP_ON[0]: return
    stamp(a, 7)
    if STAMP_ON[0] == 'dbg':
        sel = DBG_SEL[kidx]
        import random
        lab = f'DBGSKIP_{kidx}_{len(a.ins)}'
        a(f's_load_dwordx2 s[60:61], s[0:1], {KA["dbg"]}')
        a('s_waitcnt lgkmcnt(0)')
        a(f's_add_u32 s64, s60, {512*(DBG_LAST[0]-kidx)}')
        a('s_addc_u32 s65, s61, 0')
        a('s_mov_b32 s66, 256')
        a('s_mov_b32 s67, 0x20000')
        a('s_and_b32 s62, s98, 15')
        a('s_or_b32 s62, s62, s99')
        a('s_cmp_lg_u32 s62, 0')
        a(f's_cbranch_scc1 {lab}')
        a('s_mov_b64 exec, 1')
        a('v_mov_b32 v0, 0')
        a('s_not_b32 s80, s80')
        for j, i in enumerate(sel):
            a(f'v_mov_b32 v{2+j}, s{80+2*i}')
            a(f'buffer_atomic_umax v{2+j}, v0, s[64:67], 0 offen offset:{16*kidx+4*j}')
        a.label(lab)
        return
    a(f's_load_dwordx2 s[60:61], s[0:1], {KA["ws"]}')
    a('s_waitcnt lgkmcnt(0)')
    srd(a, 64, 60, 0x100000, WS_STAMP + kidx*0x100000)
    a('s_lshl_b32 s62, s98, 4')
    a('s_add_u32 s62, s62, s99')
    a('s_lshl_b32 s62, s62, 5')
    a('s_mov_b64 exec, 1')
    for i in range(8): a(f'v_mov_b32 v{2+i}, s{80+2*i}')
    a('v_mov_b32 v0, 0')
    a('buffer_store_dwordx4 v[2:5], v0, s[64:67], s62 offen')
    a('buffer_store_dwordx4 v[6:9], v0, s[64:67], s62 offen offset:16')

DBG_SEL = {0: (0, 3, 4, 7), 1: (0, 4, 5, 7), 2: (0, 2, 5, 7), 3: (0, 3, 6, 7)}
DBG_LAST = [3]

WS_W1F = 0x1200000
WS_W2F = 0x1600000
WS_SP  = 0x1020000
WS_CNT = 0x1080000
W1F_BYTES = 16*20*12*1024
W2F_BYTES = 8*48*5*1024

def prep_unit(a, pfx, su, sW, sws, v0lane, vb, sb, end_label):
    R = vb; O = vb + 32; va = vb + 64
    S0, S1 = sb, sb + 4
    t = sb + 8
    a(f'v_and_b32 v{va}, 15, v{v0lane}')
    a(f'v_lshrrev_b32 v{va+1}, 4, v{v0lane}')
    a(f's_mov_b32 s{t+8}, 0x05040100')
    a(f's_mov_b32 s{t+9}, 0x07060302')
    a(f's_cmp_ge_u32 s{su}, 480')
    a(f's_cbranch_scc1 {pfx}_W2')
    a(f's_cmp_ge_u32 s{su}, 240')
    a(f's_cselect_b32 s{S0}, s{sW+2}, s{sW}')
    a(f's_cselect_b32 s{S0+1}, s{sW+3}, s{sW+1}')
    a(f's_cselect_b32 s{t}, 240, 0')
    a(f's_cselect_b32 s{t+4}, 6144, 0')
    a(f's_mov_b32 s{S0+2}, {D*F*2}')
    a(f's_mov_b32 s{S0+3}, 0x20000')
    a(f's_sub_u32 s{t}, s{su}, s{t}')
    a(f's_mul_i32 s{t+1}, s{t}, 0x5556')
    a(f's_lshr_b32 s{t+1}, s{t+1}, 18')
    a(f's_mul_i32 s{t+2}, s{t+1}, 12')
    a(f's_sub_u32 s{t+2}, s{t}, s{t+2}')
    a(f'v_mul_u32_u24 v{va+2}, {4*3072}, v{va+1}')
    a(f'v_lshl_add_u32 v{va+2}, v{va}, 4, v{va+2}')
    a(f's_mul_i32 s{t+3}, s{t+1}, {32*3072}')
    a(f's_lshl_b32 s{t+5}, s{t+2}, 8')
    a(f's_add_u32 s{t+3}, s{t+3}, s{t+5}')
    for jj in range(8):
        hh, r = jj >> 2, jj & 3
        a(f's_add_u32 s{t+5}, s{t+3}, {(16*hh+r)*3072}')
        a(f'buffer_load_dwordx4 {vr(R+4*jj,4)}, v{va+2}, {sr(S0,4)}, s{t+5} offen')
    srd(a, S1, sws, W1F_BYTES, WS_W1F)
    a(f'v_lshlrev_b32 v{va+3}, 4, v{v0lane}')
    a(f's_mul_i32 s{t+3}, s{t+1}, 12288')
    a(f's_add_u32 s{t+3}, s{t+3}, s{t+4}')
    a(f's_lshl_b32 s{t+2}, s{t+2}, 3')
    a('s_waitcnt vmcnt(0)')
    for j in range(8):
        for q in range(4):
            a(f'v_perm_b32 v{O+4*j+q}, v{R+4*(2*q+1)+(j>>1)}, v{R+4*(2*q)+(j>>1)}, s{t+8+(j&1)}')
        a(f's_add_u32 s{t+5}, s{t+2}, {j}')
        a(f's_mul_i32 s{t+6}, s{t+5}, 0xaaab')
        a(f's_lshr_b32 s{t+6}, s{t+6}, 18')
        a(f's_mul_i32 s{t+7}, s{t+6}, {245760-6*1024}')
        a(f's_lshl_b32 s{t+5}, s{t+5}, 10')
        a(f's_add_u32 s{t+5}, s{t+5}, s{t+7}')
        a(f's_add_u32 s{t+5}, s{t+5}, s{t+3}')
        a(f'buffer_store_dwordx4 {vr(O+4*j,4)}, v{va+3}, {sr(S1,4)}, s{t+5} offen')
    a(f's_branch {end_label}')
    a.label(f'{pfx}_W2')
    srd(a, S0, sW+4, F*D*2)
    a(f's_sub_u32 s{t}, s{su}, 480')
    a(f's_mul_i32 s{t+1}, s{t}, 0xcccd')
    a(f's_lshr_b32 s{t+1}, s{t+1}, 18')
    a(f's_mul_i32 s{t+2}, s{t+1}, 5')
    a(f's_sub_u32 s{t+2}, s{t}, s{t+2}')
    a(f'v_mul_u32_u24 v{va+2}, {32*1280}, v{va+1}')
    a(f'v_lshl_add_u32 v{va+2}, v{va}, 4, v{va+2}')
    a(f's_lshr_b32 s{t+3}, s{t+1}, 2')
    a(f's_lshl_b32 s{t+3}, s{t+3}, 7')
    a(f's_and_b32 s{t+5}, s{t+1}, 3')
    a(f's_lshl_b32 s{t+5}, s{t+5}, 1')
    a(f's_add_u32 s{t+3}, s{t+3}, s{t+5}')
    a(f's_mul_i32 s{t+3}, s{t+3}, 1280')
    a(f's_lshl_b32 s{t+5}, s{t+2}, 8')
    a(f's_add_u32 s{t+3}, s{t+3}, s{t+5}')
    for jj in range(8):
        hh, r = jj >> 2, jj & 3
        a(f's_add_u32 s{t+5}, s{t+3}, {(8*r+hh)*1280}')
        a(f'buffer_load_dwordx4 {vr(R+4*jj,4)}, v{va+2}, {sr(S0,4)}, s{t+5} offen')
    srd(a, S1, sws, W2F_BYTES, WS_W2F)
    a(f's_lshl_b32 s{t+5}, s{t+2}, 3')
    a(f'v_lshrrev_b32 v{va+3}, 1, v{va}')
    a(f'v_add_u32 v{va+3}, s{t+5}, v{va+3}')
    a(f'v_mul_u32_u24 v{va+4}, 0xcccd, v{va+3}')
    a(f'v_lshrrev_b32 v{va+4}, 18, v{va+4}')
    a(f'v_mul_u32_u24 v{va+4}, {245760-5*1024}, v{va+4}')
    a(f'v_lshl_add_u32 v{va+3}, v{va+3}, 10, v{va+4}')
    a(f'v_lshl_add_u32 v{va+3}, v{va+1}, 8, v{va+3}')
    a(f'v_and_b32 v{va+4}, 1, v{va}')
    a(f'v_lshl_add_u32 v{va+3}, v{va+4}, 7, v{va+3}')
    a(f's_mul_i32 s{t+3}, s{t+1}, 5120')
    a('s_waitcnt vmcnt(0)')
    for j in range(8):
        for q in range(4):
            a(f'v_perm_b32 v{O+4*j+q}, v{R+4*(2*q+1)+(j>>1)}, v{R+4*(2*q)+(j>>1)}, s{t+8+(j&1)}')
        a(f'buffer_store_dwordx4 {vr(O+4*j,4)}, v{va+3}, {sr(S1,4)}, s{t+3} offen offset:{16*j}')
    a(f's_branch {end_label}')

_pf_id = [0]
def code_prefetch(a, start_label, end_label, ninstr, vlane128, vdst, sp):
    _pf_id[0] += 1
    h = f'PFH{_pf_id[0]}'
    a(f's_getpc_b64 s[{sp}:{sp+1}]')
    a.label(h)
    if start_label:
        a(f's_add_u32 s{sp}, s{sp}, {start_label}-{h}')
        a(f's_addc_u32 s{sp+1}, s{sp+1}, 0')
    a(f's_mov_b32 s{sp+2}, {end_label}-{start_label or h}')
    a(f's_mov_b32 s{sp+3}, 0x20000')
    for i in range(ninstr):
        if i == 0:
            a(f'buffer_load_dword v{vdst}, v{vlane128}, s[{sp}:{sp+3}], 0 offen')
        else:
            a(f's_mov_b32 s{sp+4}, {8192*i}')
            a(f'buffer_load_dword v{vdst}, v{vlane128}, s[{sp}:{sp+3}], s{sp+4} offen')
```

```python
from common import *
import math
NLN = 128
K1_GRID = NLN + 640
HS = 6272
GT = 8 * HS
K1_LDS = GT + 3072
RS = 1296

def round_bf16(a, d, s):
    a(f'v_cvt_pk_bf16_f32 v{d}, v{s}, v{s}')
    a(f'v_and_b32 v{d}, 0xffff0000, v{d}')

def gen_k1():
    a = Asm()
    a(f's_cmp_ge_u32 s2, {K1_GRID}')
    a('s_cbranch_scc1 K1_END')
    stamp_init(a)
    t0_mark(a, 0)
    if OPT['pf']:
        a('s_cmp_ge_u32 s2, 16')
        a('s_cbranch_scc1 K1_NOPF')
        a('v_lshlrev_b32 v1, 7, v0')
        code_prefetch(a, None, 'CODE_END', 1, 1, 135, 64)
        a('v_add_u32 v1, 0x8000, v1')
        a('buffer_load_dword v135, v1, s[64:67], 0 offen')
        a.label('K1_NOPF')
    a(f's_cmp_ge_u32 s2, {NLN}')
    a('s_cbranch_scc1 K1_KGEN')
    a(f's_load_dwordx2 s[4:5], s[0:1], {KA["x"]}')
    a(f's_load_dwordx2 s[6:7], s[0:1], {KA["ws"]}')
    a('v_lshrrev_b32 v1, 4, v0')
    a('v_and_b32 v2, 15, v0')
    a('v_mul_u32_u24 v3, 1280, v1')
    a('v_lshl_add_u32 v3, v2, 4, v3')
    a('s_mul_i32 s3, s2, 20480')
    a(f'v_mul_u32_u24 v4, {RS}, v1')
    a('v_lshl_add_u32 v4, v2, 4, v4')
    a('s_waitcnt lgkmcnt(0)')
    stamp(a, 1)
    srd(a, 8, 4, L*D*2)
    X = 8
    for i in range(5):
        a(f'buffer_load_dwordx4 {vr(X+4*i,4)}, v3, s[8:11], s3 offen offset:{256*i}')
    srd(a, 12, 6, 0x280000, WS_UP)
    srd(a, 16, 6, 0x280000, WS_XT)
    a('v_bfe_u32 v30, v0, 4, 1')
    a('v_bfe_u32 v31, v0, 5, 1')
    a('v_bfe_u32 v32, v0, 2, 2')
    a('v_and_b32 v33, 3, v0')
    a('v_lshrrev_b32 v34, 6, v0')
    a('v_mul_u32_u24 v35, 320, v34')
    a('v_lshl_add_u32 v35, v31, 5, v35')
    a('v_lshl_add_u32 v35, v33, 3, v35')
    a('v_lshlrev_b32 v36, 1, v30')
    a('v_lshl_add_u32 v36, v32, 2, v36')
    a(f'v_mul_u32_u24 v36, {RS}, v36')
    a('v_add_u32 v36, v36, v35')
    a('v_lshl_add_u32 v37, v30, 3, v32')
    a(f'v_mul_u32_u24 v37, {RS}, v37')
    a('v_add_u32 v37, v37, v35')
    a('v_mul_u32_u24 v38, 160, v34')
    a('v_lshl_add_u32 v38, v31, 4, v38')
    a('v_add_u32 v38, v38, v2')
    a('v_lshlrev_b32 v38, 5, v38')
    a('v_lshl_add_u32 v38, v30, 4, v38')
    a('s_mov_b32 s20, 0x3f803f80')
    a('v_mov_b32 v5, 0')
    a('v_mov_b32 v6, 0')
    a('v_mov_b32 v28, 0')
    a('v_mov_b32 v29, 0')
    for i in range(5):
        a(f's_waitcnt vmcnt({4-i})')
        a(f'ds_write_b128 v4, {vr(X+4*i,4)} offset:{16*RS+256*i}')
        for j in range(4):
            r = X+4*i+j
            a(f'v_dot2_f32_bf16 v{5 if j&1 else 28}, v{r}, s20, v{5 if j&1 else 28}')
            a(f'v_dot2_f32_bf16 v{6 if j&1 else 29}, v{r}, v{r}, v{6 if j&1 else 29}')
    stamp(a, 2)
    a('v_add_f32 v5, v5, v28')
    a('v_add_f32 v6, v6, v29')
    for sh in (8, 4, 2, 1):
        a(f'v_add_f32_dpp v5, v5, v5 row_ror:{sh} row_mask:0xf bank_mask:0xf')
        a(f'v_add_f32_dpp v6, v6, v6 row_ror:{sh} row_mask:0xf bank_mask:0xf')
    a(f'v_mul_f32 v5, {f2u(1.0/640)}, v5')
    a(f'v_mul_f32 v6, {f2u(1.0/640)}, v6')
    a('v_fma_f32 v6, -v5, v5, v6')
    a('v_max_f32 v6, 0, v6')
    round_bf16(a, 5, 5)
    round_bf16(a, 6, 6)
    a(f'v_add_f32 v6, {f2u(1e-5)}, v6')
    round_bf16(a, 6, 6)
    a('v_sqrt_f32 v6, v6')
    round_bf16(a, 6, 6)
    a('v_rcp_f32 v6, v6')
    U = 40
    for i in range(5):
        for j in range(4):
            r = X+4*i+j; t = 60 + 2*j
            a(f'v_lshlrev_b32 v{t}, 16, v{r}')
            a(f'v_and_b32 v{t+1}, 0xffff0000, v{r}')
        for j in range(4):
            t = 60 + 2*j
            a(f'v_sub_f32 v{t}, v{t}, v5')
            a(f'v_sub_f32 v{t+1}, v{t+1}, v5')
        for j in range(4):
            t = 60 + 2*j
            a(f'v_cvt_pk_bf16_f32 v{t+1}, v{t}, v{t+1}')
        for j in range(4):
            t = 60 + 2*j
            a(f'v_lshlrev_b32 v{t}, 16, v{t+1}')
            a(f'v_and_b32 v{t+1}, 0xffff0000, v{t+1}')
        for j in range(4):
            t = 60 + 2*j
            a(f'v_mul_f32 v{t}, v{t}, v6')
            a(f'v_mul_f32 v{t+1}, v{t+1}, v6')
        for j in range(4):
            t = 60 + 2*j
            a(f'v_cvt_pk_bf16_f32 v{U+4*i+j}, v{t}, v{t+1}')
        a(f'ds_write_b128 v4, {vr(U+4*i,4)} offset:{256*i}')
    a('s_waitcnt lgkmcnt(0)')
    a('s_barrier')
    stamp(a, 3)
    for i in range(5):
        a(f'ds_read_b64_tr_b16 {vr(U+4*i,2)}, v36 offset:{64*i}')
        a(f'ds_read_b64_tr_b16 {vr(U+4*i+2,2)}, v36 offset:{64*i+RS}')
    for i in range(5):
        a(f's_waitcnt lgkmcnt({2*(4-i)+2*i})' if False else f's_waitcnt lgkmcnt({8})' if False else '')
        a(f'ds_read_b64_tr_b16 {vr(X+4*i,2)}, v37 offset:{16*RS+64*i}')
        a(f'ds_read_b64_tr_b16 {vr(X+4*i+2,2)}, v37 offset:{16*RS+64*i+4*RS}')
        a('s_waitcnt lgkmcnt(10)' if i < 5 else '')
        a(f'buffer_store_dwordx4 {vr(U+4*i,4)}, v38, s[12:15], s3 offen offset:{1024*i}' if i < 4 else
          f'v_add_u32 v39, 4096, v38\nbuffer_store_dwordx4 {vr(U+4*i,4)}, v39, s[12:15], s3 offen')
    for i in range(5):
        a(f's_waitcnt lgkmcnt({2*(4-i)})')
        a(f'buffer_store_dwordx4 {vr(X+4*i,4)}, v38, s[16:19], s3 offen offset:{1024*i}' if i < 4 else
          f'buffer_store_dwordx4 {vr(X+4*i,4)}, v39, s[16:19], s3 offen')
    stamp_end(a, 0)
    a('s_endpgm')

    a.label('K1_KGEN')
    a(f's_load_dwordx8 s[4:11], s[0:1], {KA["Are"]}')
    a(f's_load_dwordx8 s[12:19], s[0:1], {KA["Cre"]}')
    a(f's_load_dwordx2 s[20:21], s[0:1], {KA["ws"]}')
    a(f's_load_dwordx4 s[56:59], s[0:1], {KA["Wg"]}')
    a(f's_load_dwordx2 s[60:61], s[0:1], {KA["Wd"]}')
    a(f's_sub_u32 s3, s2, {NLN}')
    a('v_lshrrev_b32 v1, 6, v0')
    a('v_lshlrev_b32 v2, 1, v0')
    a('v_readfirstlane_b32 s22, v1')
    a('s_mul_i32 s23, s3, 384')
    a('s_lshl_b32 s24, s3, 1')
    a('s_and_b32 s24, s24, 0xfffffffc')
    a('s_waitcnt lgkmcnt(0)')
    stamp(a, 1)
    a('s_load_dword s25, s[16:17], s24')
    a('s_load_dword s26, s[18:19], s24')
    PRM = 8
    for i in range(6):
        s = 28 + 4*i
        srd(a, s, 4 + 2*i, D*N*2)
    a('s_cmp_eq_u32 s22, 3')
    a('s_cbranch_scc1 K1_SKIPLD')
    for i in range(6):
        s = 28 + 4*i
        a(f'buffer_load_short_d16_hi v{PRM+i}, v2, {sr(s,4)}, s23 offen')
    a.label('K1_SKIPLD')
    srd(a, 52, 20, 0x280000, WS_KW)
    EX = 100
    a('v_lshlrev_b32 v3, 3, v0')
    for e in range(8):
        a(f'v_add_u32 v{EX+e}, {e}, v3')
    for e in range(8):
        a(f'v_cvt_f32_u32 v{20+e}, v{EX+e}')
    for e in range(8):
        a(f'v_cvt_pk_bf16_f32 v{20+e}, v{20+e}, v{20+e}')
    for e in range(8):
        a(f'v_and_b32 v{20+e}, 0xffff, v{20+e}')
    for e in range(8):
        a(f'v_subrev_u32 v{20+e}, {0x4300-128}, v{20+e}')
    for e in range(8):
        a(f'v_max_i32 v{20+e}, 128, v{20+e}')
    for e in range(8):
        a(f'v_min_i32 v{EX+e}, v{EX+e}, v{20+e}')
    for e in range(8):
        a(f'v_lshlrev_b32 v{EX+e}, 2, v{EX+e}')
    a('v_and_b32 v4, 63, v0')
    a('v_bfe_u32 v5, v0, 1, 1')
    a(f'v_mul_u32_u24 v108, {HS}, v5')
    a('v_lshrrev_b32 v5, 2, v4')
    a('v_lshl_add_u32 v108, v5, 4, v108')
    a('v_and_b32 v5, 1, v0')
    a('v_lshl_add_u32 v108, v5, 3, v108')
    a(f's_mul_i32 s27, s22, {2*HS}')
    a(f's_add_u32 s27, s27, {2*HS}')
    a('v_add_u32 v109, s27, v108')
    a('v_and_b32 v5, 15, v0')
    a('v_bfe_u32 v6, v0, 4, 2')
    a('v_lshlrev_b32 v110, 4, v5')
    a('v_lshl_add_u32 v110, v6, 2, v110')
    a('v_add_u32 v111, 2, v110')
    a('s_cmp_eq_u32 s22, 0')
    a('s_cbranch_scc1 K1_GA')
    a('v_lshlrev_b32 v110, 1, v5')
    a('v_lshl_add_u32 v110, v6, 6, v110')
    a('v_add_u32 v110, 512, v110')
    a('v_add_u32 v111, 32, v110')
    a('s_cmp_lg_u32 s22, 1')
    a('s_cbranch_scc1 K1_GA')
    a('v_lshlrev_b32 v110, 3, v5')
    a('v_lshl_add_u32 v110, v6, 2, v110')
    a('v_add_u32 v110, 256, v110')
    a('v_lshlrev_b32 v111, 2, v5')
    a('v_lshl_add_u32 v111, v6, 6, v111')
    a('v_add_u32 v111, 256, v111')
    a('v_cmp_gt_u32 vcc, 2, v6')
    a('v_cndmask_b32 v110, v111, v110, vcc')
    a('v_add_u32 v111, 2, v110')
    a.label('K1_GA')
    a('v_lshlrev_b32 v110, 2, v110')
    a('v_lshlrev_b32 v111, 2, v111')
    a('v_lshlrev_b32 v112, 4, v0')
    a('s_waitcnt lgkmcnt(0)')
    a('s_bitcmp1_b32 s3, 0')
    a('s_cselect_b32 s24, 0, 16')
    a('s_lshl_b32 s25, s25, s24')
    a('s_and_b32 s25, s25, 0xffff0000')
    a('s_lshl_b32 s26, s26, s24')
    a('s_and_b32 s26, s26, 0xffff0000')
    a('v_mov_b32 v5, s26')
    a('v_cmp_eq_u32 vcc, 0, v0')
    a('v_cndmask_b32 v113, 0, v5, vcc')
    a('s_cmp_eq_u32 s22, 3')
    a('s_cbranch_scc1 K1_PREP')
    a(f'v_mov_b32 v5, {f2u(math.log2(math.e))}')
    a('v_mul_f32 v5, s25, v5')
    a('v_exp_f32 v5, v5')
    round_bf16(a, 5, 5)
    stamp(a, 2)
    a('s_waitcnt vmcnt(0)')
    stamp(a, 3)
    for i in range(6):
        a(f'v_and_b32 v{PRM+i}, 0xffff0000, v{PRM+i}')
    for i in range(4):
        a(f'v_mul_f32 v{PRM+i}, v5, v{PRM+i}')
    a(f'v_mul_f32 v8, {f2u(math.log2(math.e))}, v8')
    a(f'v_mul_f32 v9, {f2u(1/(2*math.pi))}, v9')
    P0 = 32
    cmul(a, P0, 10, 12)
    anchors = [(14, 1.0, 1), (16, 16.0, -1), (18, 256.0, 1)]
    for k, (r, v, sg_) in enumerate(anchors):
        t = 20 + 3*k
        a(f'v_mul_f32 v{t}, {f2u(v)}, v8')
        a(f'v_mul_f32 v{t+1}, {f2u(v*sg_)}, v9')
    for k in range(3):
        t = 20 + 3*k
        a(f'v_fract_f32 v{t+1}, v{t+1}')
    for k in range(3):
        t = 20 + 3*k
        a(f'v_exp_f32 v{t}, v{t}')
        a(f'v_cos_f32 v{t+2}, v{t+1}')
        a(f'v_sin_f32 v{t+1}, v{t+1}')
    for k, (r, v, sg_) in enumerate(anchors):
        t = 20 + 3*k
        a(f'v_mul_f32 v{r}, v{t}, v{t+2}')
        a(f'v_mul_f32 v{r+1}, v{t}, v{t+1}')
    Q = 64
    PK = 20
    PK2 = 114
    W = 122
    def Wr(k): return 18 if k == 1 else W + 2*(k-2)
    def pack(rec, base, pk, hidx, n=8):
        for j in range(n//2):
            rec(f'v_cvt_pk_bf16_f32 v{pk+j}, v{base+4*j}, v{base+4*j+2}')
            rec(f'v_cvt_pk_bf16_f32 v{pk+4+j}, v{base+4*j+1}, v{base+4*j+3}')
        rec(f'ds_write_b128 v112, {vr(pk,4)} offset:{hidx*HS}')
        rec(f'ds_write_b128 v112, {vr(pk+4,4)} offset:{hidx*HS+3072}')
    rp, rq, rw = Rec(), Rec(), Rec()
    for b in range(1, 16):
        cmul(rp, P0+2*b, P0+2*(b-1), 14)
        if b == 7: pack(rp, P0, PK, 2)
    pack(rp, P0+16, PK, 3)
    rq(f'v_mov_b32 v{Q}, 1.0'); rq(f'v_mov_b32 v{Q+1}, 0')
    rq(f'v_mov_b32 v{Q+2}, v16'); rq(f'v_mov_b32 v{Q+3}, v17')
    for b in range(2, 16):
        cmul(rq, Q+2*b, Q+2*(b-1), 16)
        if b == 7: pack(rq, Q, PK2, 0)
    pack(rq, Q+16, PK2, 1)
    for k in range(2, 9):
        cmul(rw, Wr(k), Wr(k-1), 18)
    for t in interleave(rp.l, rq.l, rw.l): a(t)
    r1, r2 = Rec(), Rec()
    for b in range(8): cmul(r1, Q+2*b, P0+4*b, 18)
    pack(r1, Q, PK, 4)
    for b in range(4): cmul(r2, Q+16+2*b, P0+8*b, Wr(2))
    for b in range(4): cmul(r2, Q+24+2*b, P0+8*b, Wr(3))
    pack(r2, Q+16, PK2, 5)
    for t in interleave(r1.l, r2.l): a(t)
    r1, r2 = Rec(), Rec()
    for aa in range(4):
        for b in range(2):
            cmul(r1 if b == 0 else r2, Q+2*(2*aa+b), P0+16*b, Wr(4+aa))
    cmul(r2, Q+16, P0, Wr(8))
    for t in interleave(r1.l, r2.l): a(t)
    pack(a, Q, PK, 6)
    a(f'v_cvt_pk_bf16_f32 v{PK2}, v{Q+16}, v{Q+16}')
    a(f'v_cvt_pk_bf16_f32 v{PK2+1}, v{Q+17}, v{Q+17}')
    a(f'ds_write_b32 v112, v{PK2} offset:{7*HS}')
    a(f'ds_write_b32 v112, v{PK2+1} offset:{7*HS+3072}')
    a.label('K1_TBLDONE')
    a('s_waitcnt lgkmcnt(0)')
    a('s_barrier')
    stamp(a, 4)
    a('s_cmp_eq_u32 s22, 3')
    a('s_cbranch_scc1 K1_MFMADONE')
    FR = 4
    def rd(s):
        b = FR + 8*s
        a(f'ds_read_b64_tr_b16 {vr(b,2)}, v109 offset:{512*s}')
        a(f'ds_read_b64_tr_b16 {vr(b+2,2)}, v109 offset:{512*s+256}')
        a(f'ds_read_b64_tr_b16 {vr(b+4,2)}, v108 offset:{512*s}')
        a(f'ds_read_b64_tr_b16 {vr(b+6,2)}, v108 offset:{512*s+256}')
    for s in range(3): rd(s)
    for s in range(12):
        if s + 3 < 12:
            a('s_waitcnt lgkmcnt(8)')
        else:
            a(f's_waitcnt lgkmcnt({4*(11-s)})')
        b = FR + 8*s
        a(f'v_mfma_f32_16x16x32_bf16 v[114:117], {vr(b,4)}, {vr(b+4,4)}, {"0" if s == 0 else "v[114:117]"}')
        if s + 3 < 12: rd(s+3)
    a(f'ds_write_b64 v110, v[114:115] offset:{GT}')
    a(f'ds_write_b64 v111, v[116:117] offset:{GT}')
    a.label('K1_MFMADONE')
    a('s_waitcnt lgkmcnt(0)')
    a('s_barrier')
    stamp(a, 5)
    for e in range(8):
        a(f'ds_read_b32 v{8+e}, v{EX+e} offset:{GT}')
    a('s_lshl_b32 s23, s3, 12')
    a('s_waitcnt lgkmcnt(0)')
    a('v_add_f32 v8, v8, v113')
    for j in range(4):
        a(f'v_cvt_pk_bf16_f32 v{16+j}, v{8+2*j}, v{9+2*j}')
    a('buffer_store_dwordx4 v[16:19], v112, s[52:55], s23 offen')
    stamp_end(a, 0)
    a.label('K1_END')
    a('s_endpgm')
    a.label('K1_PREP')
    colsum_unit(a, 'K1P', 3, 56, 20, 4, 20, 28, 'K1_TBLDONE')
    return a
```

```python
from common import *
K2_CONV = 160
K2_GRID = 256
KREG = 4128
UPS = 1152
WREG = KREG + 4*UPS
K2_LDS = 4 * WREG

def gen_k2():
    a = Asm()
    a(f's_cmp_ge_u32 s2, {K2_GRID}')
    a('s_cbranch_scc1 K2_END')
    stamp_init(a)
    t0_mark(a, 1)
    if OPT['pf']:
        a('s_cmp_ge_u32 s2, 16')
        a('s_cbranch_scc1 k2_NOPF')
        a('v_lshlrev_b32 v1, 7, v0')
        code_prefetch(a, None, 'CODE_END', 1, 1, 240, 64)
        a.label('k2_NOPF')
    a(f's_cmp_ge_u32 s2, {K2_CONV}')
    a('s_cbranch_scc1 K2_CS')
    a(f's_load_dwordx2 s[4:5], s[0:1], {KA["ws"]}')
    a('v_lshrrev_b32 v1, 6, v0')
    a('v_and_b32 v2, 63, v0')
    a('v_readfirstlane_b32 s22, v1')
    a('s_lshl_b32 s3, s2, 2')
    a('s_add_u32 s3, s3, s22')
    a(f's_mul_i32 s23, s22, {WREG}')
    a('v_lshlrev_b32 v3, 4, v2')
    a('v_lshrrev_b32 v4, 1, v2')
    a('v_mul_u32_u24 v4, 20480, v4')
    a('v_and_b32 v5, 1, v2')
    a('v_lshl_add_u32 v4, v5, 4, v4')
    a('s_lshl_b32 s24, s3, 12')
    a('s_lshl_b32 s25, s3, 5')
    a('s_waitcnt lgkmcnt(0)')
    stamp(a, 1)
    srd(a, 8, 4, 0x280000, WS_UP)
    srd(a, 12, 4, 0x280000, WS_KW)
    vm = Cnt(a, 'vmcnt', 63); lg = Cnt(a, 'lgkmcnt', 15)
    ST = 176
    for i in range(4):
        a(f's_add_u32 s26, s25, {32*20480*i}')
        a(f'buffer_load_dwordx4 {vr(ST+4*i,4)}, v4, s[8:11], s26 offen'); vm.issue(('up', i))
    for i in range(4):
        a(f's_add_u32 m0, s23, {32+1024*i}')
        a(f's_add_u32 s26, s24, {1024*i}')
        a(f'buffer_load_dwordx4 v3, s[12:15], s26 offen lds'); vm.issue(('k', i))
    srd(a, 16, 4, 0x280000, WS_XT)
    srd(a, 28, 4, 0x280000, WS_HT)
    a('v_and_b32 v6, 15, v2')
    a('v_lshrrev_b32 v7, 4, v2')
    a('v_mul_u32_u24 v8, 20480, v6')
    a('v_lshl_add_u32 v8, v7, 3, v8')
    XT = 192
    for t in range(8):
        a(f's_add_u32 s26, s25, {16*20480*t}')
        a(f'buffer_load_dwordx2 {vr(XT+2*t,2)}, v8, s[16:19], s26 offen'); vm.issue(('xt', t))
    a('v_mov_b32 v10, 0'); a('v_mov_b32 v11, 0')
    a(f'v_mul_u32_u24 v9, {UPS}, v7')
    a('v_lshl_add_u32 v9, v6, 3, v9')
    a('v_add_u32 v9, s23, v9')
    a(f'ds_write_b64 v9, v[10:11] offset:{KREG}'); lg.issue()
    a('v_and_b32 v9, 3, v2')
    a('v_lshlrev_b32 v9, 3, v9')
    a('v_add_u32 v9, s23, v9')
    a('ds_write_b64 v9, v[10:11]'); lg.issue()
    a(f'v_mul_u32_u24 v9, {2*UPS}, v5')
    a('v_lshrrev_b32 v12, 1, v2')
    a('v_lshl_add_u32 v9, v12, 3, v9')
    a('v_add_u32 v9, s23, v9')
    a('v_and_b32 v12, 3, v2')
    a('v_bfe_u32 v13, v2, 2, 2')
    a('v_sub_u32 v12, v12, v13')
    a('v_lshlrev_b32 v12, 3, v12')
    a('v_lshlrev_b32 v13, 6, v7')
    a('v_sub_u32 v12, v12, v13')
    a('v_add_u32 v12, 224, v12')
    a('v_add_u32 v12, s23, v12')
    a('v_lshlrev_b32 v13, 3, v6')
    a('v_lshl_add_u32 v13, v7, 4, v13')
    a('v_add_u32 v13, s23, v13')
    a('v_add_u32 v14, 47, v2')
    a('v_cmp_eq_u32 vcc, 0, v2')
    a('v_cndmask_b32 v14, v14, 63, vcc')
    a('v_subrev_u32 v15, 16, v2')
    a('v_cmp_gt_u32 vcc, 16, v2')
    a('v_cndmask_b32 v14, v15, v14, vcc')
    a('v_lshlrev_b32 v14, 2, v14')
    a('v_lshrrev_b32 v15, 3, v6')
    a('v_mul_u32_u24 v15, 163840, v15')
    a('v_and_b32 v10, 7, v6')
    a('v_lshl_add_u32 v15, v10, 5, v15')
    a('v_lshl_add_u32 v15, v7, 3, v15')
    a('s_lshl_b32 s34, s3, 8')
    a('s_mov_b32 s32, 0')
    a('s_brev_b32 s33, 1')
    AF = 16
    ACC = 80
    for r in range(96): a(f'v_mov_b32 v{ACC+r}, 0')
    stamp(a, 2)
    for i in range(4):
        vm.wait(('up', i))
        a(f'ds_write_b64 v9, {vr(ST+4*i,2)} offset:{KREG+128+256*i}'); lg.issue()
        a(f'ds_write_b64 v9, {vr(ST+4*i+2,2)} offset:{KREG+128+256*i+UPS}'); lg.issue()
    stamp(a, 3)
    vm.wait(('k', 3))
    stamp(a, 4)
    BR = 208; NB = 8
    groups = [(b, ph) for b in range(-1, 15) for ph in range(4)]
    def rdB(gi):
        b, ph = groups[gi]
        r = BR + 4*(gi % NB)
        off = KREG + 8 + ph*UPS + 64*(b+1)
        a(f'ds_read_b64 {vr(r,2)}, v13 offset:{off}'); lg.issue()
        a(f'ds_read_b64 {vr(r+2,2)}, v13 offset:{off+8}'); lg.issue(('B', gi))
    def rdA(m):
        a(f'ds_read_b64_tr_b16 {vr(AF+4*m,2)}, v12 offset:{256*m+32}'); lg.issue()
        a(f'ds_read_b64_tr_b16 {vr(AF+4*m+2,2)}, v12 offset:{256*m}'); lg.issue(('A', m))
    rdB(0)
    for m in range(1, 16, 2): rdA(m)
    PD = 5
    nextB = 1
    pendA = list(range(0, 16, 2))
    TMP = ST
    def epi1(t):
        E = ACC + 12*t; O = E + 6
        l = []
        for p in range(1, 6):
            l.append(lambda p=p: a(f'v_add_f32 v{E+p}, v{E+p}, v{O+p-1}'))
        cur = [E+4, E+5, O+5]
        prev = [E-12+4, E-12+5, O-12+5]
        tb = TMP + 8*(t & 1)
        for r in range(3):
            if t == 0:
                l.append(lambda r=r: a(f'v_cndmask_b32 v{tb+r}, v{cur[r]}, 0, s[32:33]'))
            else:
                l.append(lambda r=r: a(f'v_cndmask_b32 v{tb+r}, v{cur[r]}, v{prev[r]}, s[32:33]'))
        for r in range(3):
            def f(r=r):
                a(f'ds_bpermute_b32 v{tb+r}, v14, v{tb+r}'); lg.issue(('bp', t, r))
            l.append(f)
        return l
    def epi2(t):
        E = ACC + 12*t
        tb = TMP + 8*(t & 1)
        l = []
        def w():
            vm.wait(('xt', t))
            a(f'v_lshlrev_b32 v{tb+4}, 16, v{XT+2*t}')
        l.append(w)
        l.append(lambda: a(f'v_and_b32 v{tb+5}, 0xffff0000, v{XT+2*t}'))
        l.append(lambda: a(f'v_lshlrev_b32 v{tb+6}, 16, v{XT+2*t+1}'))
        l.append(lambda: a(f'v_and_b32 v{tb+7}, 0xffff0000, v{XT+2*t+1}'))
        for r in range(4):
            l.append(lambda r=r: a(f'v_add_f32 v{tb+4+r}, v{tb+4+r}, v{E+r}'))
        def w2():
            lg.wait(('bp', t, 2))
            a(f'v_add_f32 v{tb+4}, v{tb+4}, v{tb}')
        l.append(w2)
        l.append(lambda: a(f'v_add_f32 v{tb+5}, v{tb+5}, v{tb+1}'))
        l.append(lambda: a(f'v_add_f32 v{tb+6}, v{tb+6}, v{tb+2}'))
        l.append(lambda: a(f'v_cvt_pk_bf16_f32 v{XT+2*t}, v{tb+4}, v{tb+5}'))
        l.append(lambda: a(f'v_cvt_pk_bf16_f32 v{XT+2*t+1}, v{tb+6}, v{tb+7}'))
        def st():
            a(f'buffer_store_dwordx2 {vr(XT+2*t,2)}, v15, s[28:31], s34 offen'); vm.issue()
            a('s_add_u32 s34, s34, 327680')
        l.append(st)
        return l
    side = []
    delay = 0
    for gi, (b, ph) in enumerate(groups):
        while nextB < len(groups) and nextB <= gi + PD:
            rdB(nextB); nextB += 1
            if pendA:
                rdA(pendA.pop(0));
                if pendA: rdA(pendA.pop(0))
        lg.wait(('B', gi))
        r = BR + 4*(gi % NB)
        ms = [m for m in range(16) if (m + b) % 2 == 0 and 0 <= (m + b)//2 <= 7]
        for m in ms:
            t = (m + b)//2
            lg.wait(('A', m))
            acc = ACC + 12*t + (6 if ph & 1 else 0) + (2 if ph & 2 else 0)
            a(f'v_mfma_f32_16x16x32_bf16 {vr(acc,4)}, {vr(AF+4*m,4)}, {vr(r,4)}, {vr(acc,4)}')
            if delay > 0: delay -= 1
            elif side: side.pop(0)()
        if ph == 3 and b >= 0 and b % 2 == 0:
            t = b // 2
            side += epi1(t) + epi2(t)
            if len(side) == len(epi1(t)) + len(epi2(t)): delay = 3
    stamp(a, 5)
    for f in side: f()
    stamp_end(a, 1)
    a('s_endpgm')

    a.label('K2_CS')
    a(f's_load_dwordx4 s[4:7], s[0:1], {KA["Wg"]}')
    a(f's_load_dwordx2 s[8:9], s[0:1], {KA["Wd"]}')
    a(f's_load_dwordx2 s[16:17], s[0:1], {KA["ws"]}')
    a('v_lshrrev_b32 v1, 6, v0')
    a('v_and_b32 v2, 63, v0')
    a('v_readfirstlane_b32 s22, v1')
    a(f's_sub_u32 s3, s2, {K2_CONV}')
    a('s_lshl_b32 s3, s3, 2')
    a('s_add_u32 s3, s3, s22')
    a('s_cmp_ge_u32 s3, 272')
    a('s_cbranch_scc1 K2_END')
    a('s_cmp_ge_u32 s3, 192')
    a('s_cbranch_scc1 K2_PREP')
    a('s_mul_i32 s20, s3, 0x5556')
    a('s_lshr_b32 s20, s20, 18')
    a(f's_mul_i32 s20, s20, {245760-12*1024}')
    a('s_lshl_b32 s21, s3, 10')
    a('s_add_u32 s20, s20, s21')
    a('v_lshlrev_b32 v3, 4, v2')
    a('s_waitcnt lgkmcnt(0)')
    srd(a, 12, 16, W1F_BYTES, WS_W1F)
    a('s_mov_b32 s21, s20')
    for i in range(20):
        a(f'buffer_load_dwordx4 {vr(16+4*i,4)}, v3, s[12:15], s21 offen')
        a('s_add_u32 s21, s21, 12288')
    a('s_mov_b32 s24, 0x3f803f80')
    for j in range(4): a(f'v_mov_b32 v{8+j}, 0')
    for i in range(20):
        a(f's_waitcnt vmcnt({19-i})')
        for j in range(4):
            a(f'v_dot2_f32_bf16 v{8+j}, v{16+4*i+j}, s24, v{8+j}')
    a('v_add_f32 v8, v8, v9')
    a('v_add_f32 v10, v10, v11')
    a('v_add_f32 v8, v8, v10')
    a('v_mov_b32 v9, v8')
    a('v_permlane32_swap_b32 v8, v9')
    a('v_add_f32 v8, v8, v9')
    a('v_mov_b32 v9, v8')
    a('v_permlane16_swap_b32 v8, v9')
    a('v_add_f32 v8, v8, v9')
    a(f'v_mul_f32 v8, {f2u(1.0/640)}, v8')
    for i in range(20):
        for j in range(4):
            r = 16+4*i+j; t = 96 + 2*j
            a(f'v_lshlrev_b32 v{t}, 16, v{r}')
            a(f'v_and_b32 v{t+1}, 0xffff0000, v{r}')
        for j in range(4):
            t = 96 + 2*j
            a(f'v_pk_add_f32 {vr(t,2)}, {vr(t,2)}, v[8:9] op_sel_hi:[1,0] neg_lo:[0,1] neg_hi:[0,1]')
        for j in range(4):
            t = 96 + 2*j
            a(f'v_cvt_pk_bf16_f32 v{16+4*i+j}, v{t}, v{t+1}')
        a(f'buffer_store_dwordx4 {vr(16+4*i,4)}, v3, s[12:15], s20 offen')
        a('s_add_u32 s20, s20, 12288')
    a.label('K2_CSEND')
    stamp_end(a, 1)
    a.label('K2_END')
    a('s_endpgm')
    a.label('K2_PREP')
    a(f's_add_u32 s3, s3, {640-192}')
    a('s_waitcnt lgkmcnt(0)')
    prep_unit(a, 'K2P', 3, 4, 16, 2, 8, 28, 'K2_CSEND')
    return a
```

```python
from common import *
K3_GRID = 256
HIMG = 8*1056
STG = HIMG + 12288
NS = 6
NK = 20
K3_LDS = NS * STG
LAG = 3

def gen_k3(rot_on=True):
    a = Asm()
    a(f's_cmp_ge_u32 s2, {K3_GRID}')
    a('s_cbranch_scc1 K3_END')
    stamp_init(a)
    t0_mark(a, 2)
    if OPT['pf']:
        a('s_cmp_ge_u32 s2, 16')
        a('s_cbranch_scc1 k3_NOPF')
        a('v_lshlrev_b32 v1, 7, v0')
        code_prefetch(a, None, 'CODE_END', 1, 1, 200, 64)
        a.label('k3_NOPF')
    a(f's_load_dwordx2 s[16:17], s[0:1], {KA["ws"]}')
    a('v_lshrrev_b32 v1, 6, v0')
    a('v_and_b32 v2, 63, v0')
    a('v_readfirstlane_b32 s22, v1')
    a('s_and_b32 s3, s2, 7')
    a('s_lshr_b32 s18, s2, 3')
    a('s_lshr_b32 s19, s18, 3')
    a('s_and_b32 s20, s18, 7')
    a('s_lshr_b32 s23, s3, 1')
    a('s_lshl_b32 s23, s23, 2')
    a('s_add_u32 s23, s23, s19')
    a('s_and_b32 s24, s3, 1')
    a('s_lshl_b32 s24, s24, 3')
    a('s_add_u32 s24, s24, s20')
    a('s_cmp_lt_u32 s22, 4')
    a('s_cbranch_scc1 K3_COMP')
    a('s_sub_u32 s22, s22, 4')
    if rot_on:
        a('s_mul_i32 s25, s19, 5')
        a('s_mul_i32 s26, s20, 5')
        a('s_lshr_b32 s26, s26, 1')
        a('s_add_u32 s25, s25, s26')
        a('s_cmp_ge_u32 s25, 20')
        a('s_cselect_b32 s26, 20, 0')
        a('s_sub_u32 s25, s25, s26')
    else:
        a('s_mov_b32 s25, 0')
    a('s_mov_b32 s34, s25')
    a('v_lshrrev_b32 v7, 4, v2')
    a('v_and_b32 v9, 15, v2')
    a('v_lshlrev_b32 v8, 11, v7')
    a('v_lshl_add_u32 v8, v9, 4, v8')
    a('v_lshlrev_b32 v10, 4, v2')
    a('s_mul_i32 s27, s23, 163840')
    a('s_lshl_b32 s26, s22, 9')
    a('s_add_u32 s27, s27, s26')
    a('s_mul_i32 s28, s24, 245760')
    a('s_mul_i32 s26, s22, 3072')
    a('s_add_u32 s28, s28, s26')
    a('s_mul_i32 s29, s22, 2112')
    a(f's_add_u32 s30, s26, {HIMG}')
    a('s_waitcnt lgkmcnt(0)')
    srd(a, 12, 16, 0x280000, WS_HT)
    srd(a, 8, 16, W1F_BYTES, WS_W1F)
    def dma(s):
        slot = (s % NS) * STG
        a('s_lshl_b32 s31, s25, 13')
        a('s_add_u32 s31, s31, s27')
        a('s_mul_i32 s32, s25, 12288')
        a('s_add_u32 s32, s32, s28')
        for i in range(2):
            a(f's_add_u32 m0, s29, {slot+1056*i}')
            if i: a('s_add_u32 s31, s31, 256')
            a('buffer_load_dwordx4 v8, s[12:15], s31 offen lds')
        a(f's_add_u32 m0, s30, {slot}')
        for i in range(3):
            a(f'buffer_load_dwordx4 v10, s[8:11], s32 offen offset:{1024*i} lds')
        a('s_add_u32 s25, s25, 1')
        a('s_cmp_eq_u32 s25, 20')
        a('s_cselect_b32 s25, 0, s25')
    stamp(a, 1)
    for s in range(LAG): dma(s)
    stamp(a, 2)
    a('v_bfe_u32 v3, v2, 2, 3')
    a('v_mul_u32_u24 v12, 1056, v3')
    a('v_lshrrev_b32 v3, 5, v2')
    a('v_lshl_add_u32 v12, v3, 8, v12')
    a('v_and_b32 v3, 3, v2')
    a('v_lshl_add_u32 v12, v3, 3, v12')
    a('s_lshl_b32 s26, s22, 6')
    a('v_add_u32 v12, s26, v12')
    a('s_mov_b32 s33, 0x3f803f80')
    srd(a, 36, 16, 20*L*8, WS_SP)
    a('v_and_b32 v13, 31, v2')
    a('s_lshl_b32 s26, s22, 8')
    a('v_lshl_add_u32 v13, v13, 3, s26')
    a('s_mov_b32 s40, 0xffff0000')
    a('s_mov_b32 s41, 0xffff0000')
    issued = LAG
    nst = 0
    for s in range(NK):
        if issued < NK and issued - NS < s - 1 + 1:
            pass
        out = (issued - 1 - s) * 5
        a(f's_waitcnt vmcnt({out})')
        if s in (0, 7, 14): stamp(a, 3 + s//7)
        a('s_barrier')
        if issued < NK:
            dma(issued); issued += 1
        a('s_and_b32 s26, s34, 15')
        a('s_cmp_lg_u32 s26, s24')
        a(f's_cbranch_scc1 K3_NOST{s}')
        a(f's_mov_b32 s35, {(s % NS) * STG}')
        a('s_getpc_b64 s[42:43]')
        a(f's_branch K3_STATS')
        a.label(f'K3_NOST{s}')
        a('s_add_u32 s34, s34, 1')
        a('s_cmp_eq_u32 s34, 20')
        a('s_cselect_b32 s34, 0, s34')
    stamp_end(a, 2)
    a('s_endpgm')
    a.label('K3_STATS')
    a('v_add_u32 v14, s35, v12')
    for T in range(2):
        for hh in range(2):
            a(f'ds_read_b64_tr_b16 {vr(20+4*T+2*hh,2)}, v14 offset:{hh*512+T*32}')
    for r in range(16, 20): a(f'v_mov_b32 v{r}, 0')
    a('s_waitcnt lgkmcnt(0)')
    for j in range(4):
        for T in range(2):
            r = 20 + 4*T + j
            a(f'v_dot2_f32_bf16 v{16+2*T}, v{r}, s33, v{16+2*T}')
            a(f'v_dot2_f32_bf16 v{17+2*T}, v{r}, v{r}, v{17+2*T}')
    a('v_permlane16_swap_b32 v16, v18')
    a('v_permlane16_swap_b32 v17, v19')
    a('v_add_f32 v16, v16, v18')
    a('v_add_f32 v17, v17, v19')
    a('v_mov_b32 v18, v16')
    a('v_mov_b32 v19, v17')
    a('v_permlane32_swap_b32 v16, v18')
    a('v_permlane32_swap_b32 v17, v19')
    a('v_add_f32 v16, v16, v18')
    a('v_add_f32 v17, v17, v19')
    a('s_lshl_b32 s26, s34, 14')
    a('s_lshl_b32 s35, s23, 10')
    a('s_add_u32 s26, s26, s35')
    a('buffer_store_dwordx2 v[16:17], v13, s[36:39], s26 offen')
    a('s_add_u32 s42, s42, 4')
    a('s_addc_u32 s43, s43, 0')
    a('s_setpc_b64 s[42:43]')

    a.label('K3_COMP')
    a('s_and_b32 s25, s22, 1')
    a('s_lshr_b32 s26, s22, 1')
    HA = 4; WA = 6
    a('v_bfe_u32 v3, v2, 2, 3')
    a('v_mul_u32_u24 v4, 1056, v3')
    a('v_lshrrev_b32 v3, 5, v2')
    a('v_lshl_add_u32 v4, v3, 8, v4')
    a('v_and_b32 v3, 3, v2')
    a('v_lshl_add_u32 v4, v3, 3, v4')
    a('s_lshl_b32 s29, s25, 7')
    a('v_add_u32 v4, s29, v4')
    a(f'v_add_u32 v5, {3*STG}, v4')
    a('s_mul_i32 s29, s26, 3072')
    a(f's_add_u32 s29, s29, {HIMG}')
    a('v_lshl_add_u32 v6, v2, 4, s29')
    a(f'v_add_u32 v7, {3*STG}, v6')
    a('v_lshlrev_b32 v8, 4, v2')
    a('s_waitcnt lgkmcnt(0)')
    srd(a, 12, 16, L*F*2, WS_HID)
    ACC = 16
    FB = 112
    lg = Cnt(a, 'lgkmcnt', 15)
    def reads(s):
        sl = s % NS; st = sl // 3; off = (sl % 3) * STG
        fb = FB + 40 * (s % 2)
        l = []
        def W(w):
            fr = (w % 3) + 6 * (w // 3)
            def f():
                a(f'ds_read_b128 {vr(fb+4*w,4)}, v{WA+st} offset:{off + fr*1024}'); lg.issue((s, 'W', w))
            l.append(f)
        def H(tt):
            for hh in range(2):
                def f(hh=hh):
                    a(f'ds_read_b64_tr_b16 {vr(fb+24+4*tt+2*hh,2)}, v{HA+st} offset:{off + hh*512 + tt*32}'); lg.issue((s, 'H', tt))
                l.append(f)
        W(0); H(0); W(1); W(2); H(1); W(3); W(4); W(5); H(2); H(3)
        return l
    order = [(0,0),(0,1),(0,2),(1,0),(1,1),(1,2),(0,3),(1,3),(0,4),(1,4),(0,5),(1,5)] + [(tt, w) for tt in (2, 3) for w in range(6)]
    stamp(a, 1)
    a('s_barrier')
    stamp(a, 2)
    for f in reads(0): f()
    BARPOS = 6
    for s in range(NK):
        fb = FB + 40 * (s % 2)
        last = s + 1 == NK
        nxt = reads(s+1) if not last else []
        if s in (7, 14): stamp(a, 2 + s//7)
        for k, (tt, w) in enumerate(order):
            lg.wait((s, 'W', w)); lg.wait((s, 'H', tt))
            acc = ACC + 4*(6*tt+w)
            if k == BARPOS and not last:
                lg.wait_all()
            a(f'v_mfma_f32_16x16x32_bf16 {vr(acc,4)}, {vr(fb+4*w,4)}, {vr(fb+24+4*tt,4)}, {"0" if s == 0 else vr(acc,4)}')
            if k == BARPOS and not last: a('s_barrier')
            if k >= BARPOS and nxt: nxt.pop(0)()
        assert not nxt
    stamp(a, 5)
    a('s_lshl_b32 s27, s23, 1')
    a('s_add_u32 s27, s27, s25')
    a(f's_mul_i32 s27, s27, {4*49152}')
    a('s_mul_i32 s28, s24, 3072')
    a('s_add_u32 s27, s27, s28')
    a('s_cmp_eq_u32 s26, 0')
    a('s_cselect_b32 s28, 0, 2048')
    a('s_cselect_b32 s29, 0, 8')
    a('s_add_u32 s29, s29, 1024')
    a('s_add_u32 s28, s28, s27')
    a('s_add_u32 s29, s29, s27')
    a('s_cbranch_scc0 K3_EPI0' if False else '')
    a('s_cmp_eq_u32 s26, 0')
    a('s_cbranch_scc1 K3_EPI0')
    for fh in (1, 0):
        if fh == 0: a.label('K3_EPI0')
        pair = (0, 1) if fh == 0 else (1, 2)
        single = 2 if fh == 0 else 0
        for tt in range(4):
            b = ACC + 24*tt
            for p in range(12): a(f'v_max_f32 v{b+p}, 0, v{b+p}')
            for p in range(6): a(f'v_pk_mul_f32 {vr(b+2*p,2)}, {vr(b+2*p,2)}, {vr(b+12+2*p,2)}')
            o = b + 12
            for q, j in enumerate(pair + (single,)):
                a(f'v_cvt_pk_bf16_f32 v{o+2*q}, v{b+4*j}, v{b+4*j+1}')
                a(f'v_cvt_pk_bf16_f32 v{o+2*q+1}, v{b+4*j+2}, v{b+4*j+3}')
            a(f'buffer_store_dwordx4 {vr(o,4)}, v8, s[12:15], s28 offen')
            a(f'buffer_store_dwordx2 {vr(o+4,2)}, v8, s[12:15], s29 offen')
            if tt < 3:
                a('s_add_u32 s28, s28, 49152')
                a('s_add_u32 s29, s29, 49152')
        stamp_end(a, 2)
        a('s_endpgm')
    a.label('K3_END')
    a('s_endpgm')
    return a
```

```python
from common import *
K4_GRID = 256
STG4 = 10240
KPS = 2
NS4 = 6
NK4 = 24
LAG4 = 4
K4_LDS = NS4 * STG4

def gen_k4(rot_on=True):
    a = Asm()
    a(f's_cmp_ge_u32 s2, {K4_GRID}')
    a('s_cbranch_scc1 K4_END')
    stamp_init(a)
    t0_mark(a, 3)
    a(f's_load_dwordx2 s[6:7], s[0:1], {KA["out"]}')
    a(f's_load_dwordx2 s[16:17], s[0:1], {KA["ws"]}')
    a('v_lshrrev_b32 v1, 6, v0')
    a('v_and_b32 v2, 63, v0')
    a('v_readfirstlane_b32 s22, v1')
    a('s_and_b32 s3, s2, 7')
    a('s_lshr_b32 s18, s2, 3')
    a('s_lshr_b32 s19, s18, 3')
    a('s_and_b32 s24, s18, 7')
    a('s_lshl_b32 s23, s3, 2')
    a('s_add_u32 s23, s23, s19')
    a('s_lshl_b32 s23, s23, 2')
    a('s_add_u32 s23, s23, s22')
    if rot_on:
        a('s_mul_i32 s25, s19, 6')
        a('s_mul_i32 s26, s24, 3')
        a('s_add_u32 s25, s25, s26')
        a('s_cmp_ge_u32 s25, 24')
        a('s_cselect_b32 s26, 24, 0')
        a('s_sub_u32 s25, s25, s26')
    else:
        a('s_mov_b32 s25, 0')
    a('v_lshlrev_b32 v13, 4, v2')
    a('s_mul_i32 s27, s24, 245760')
    a('s_lshl_b32 s29, s22, 10')
    a('s_add_u32 s27, s27, s29')
    a('s_mul_i32 s28, s23, 49152')
    a('s_lshl_b32 s30, s22, 9')
    a('s_add_u32 s30, s30, 8192')
    a('s_mul_i32 s35, s24, 245760')
    a('s_add_u32 s35, s35, s30')
    a('s_waitcnt lgkmcnt(0)')
    srd(a, 8, 16, W2F_BYTES, WS_W2F)
    srd(a, 12, 16, L*F*2, WS_HID)
    vm = Cnt(a, 'vmcnt', 63); lg = Cnt(a, 'lgkmcnt', 15)
    HB = 64
    def load(s):
        slot = (s % NS4)
        a(f's_mul_i32 s33, s25, {STG4}')
        a('s_add_u32 s31, s33, s27')
        a('s_add_u32 s33, s33, s35')
        a('s_lshl_b32 s32, s25, 11')
        a('s_add_u32 s32, s32, s28')
        for q in range(KPS):
            a(f'buffer_load_dwordx4 {vr(HB+4*KPS*slot+4*q,4)}, v13, s[12:15], s32 offen offset:{1024*q}'); vm.issue()
        a(f's_add_u32 m0, s29, {slot*STG4}')
        a(f'buffer_load_dwordx4 v13, s[8:11], s31 offen lds'); vm.issue()
        a(f's_add_u32 m0, s29, {slot*STG4+4096}')
        a('s_add_u32 s31, s31, 4096')
        a(f'buffer_load_dwordx4 v13, s[8:11], s31 offen lds'); vm.issue()
        a(f's_add_u32 m0, s30, {slot*STG4}')
        a('s_mov_b32 exec_hi, 0')
        a(f'buffer_load_dwordx4 v13, s[8:11], s33 offen lds'); vm.issue(('st', s))
        a('s_mov_b32 exec_hi, -1')
        a('s_add_u32 s25, s25, 1')
        a(f's_cmp_eq_u32 s25, {NK4}')
        a('s_cselect_b32 s25, 0, s25')
    stamp(a, 1)
    for s in range(LAG4): load(s)
    stamp(a, 2)
    a('v_lshrrev_b32 v3, 4, v2')
    a('v_and_b32 v4, 15, v2')
    a('v_lshlrev_b32 v17, 10, v3')
    a('v_lshl_add_u32 v17, v4, 1, v17')
    a('v_mul_u32_u24 v18, 1280, v4')
    a('v_lshl_add_u32 v18, v3, 3, v18')
    a('v_mul_u32_u24 v19, 81920, v3')
    a('v_lshl_add_u32 v19, v4, 3, v19')
    srd(a, 36, 16, 0x280000, WS_HT)
    srd(a, 40, 16, 20*L*8, WS_SP)
    srd(a, 44, 6, L*D*2)
    ACC = 20
    HR = 40
    SPR = 120
    WB = 132
    for r in range(20): a(f'v_mov_b32 v{HR+r}, 0')
    def reads(n):
        s, ks = n // KPS, n % KPS
        off = (s % NS4) * STG4 + ks * 5120
        wb = WB + 20 * (n % 2)
        l = []
        for tau in range(5):
            def f(tau=tau):
                a(f'ds_read_b128 {vr(wb+4*tau,4)}, v13 offset:{off + tau*1024}'); lg.issue((n, tau))
            l.append(f)
        return l
    issued = LAG4
    def resid():
        a('s_lshr_b32 s33, s23, 3')
        a('s_mul_i32 s33, s33, 163840')
        a('s_mul_i32 s34, s24, 20480')
        a('s_add_u32 s33, s33, s34')
        a('s_and_b32 s34, s23, 7')
        a('s_lshl_b32 s34, s34, 5')
        a('s_add_u32 s33, s33, s34')
        for tau in range(5):
            for r in range(4):
                a(f'buffer_load_short_d16_hi v{HR+4*tau+r}, v17, s[36:39], s33 offen offset:{r*256}'); vm.issue()
            a('s_add_u32 s33, s33, 4096')
        a('s_lshl_b32 s34, s23, 7')
        for i in range(5):
            a(f'buffer_load_dwordx2 {vr(SPR+2*i,2)}, v19, s[40:43], s34 offen'); vm.issue('res')
            a('s_add_u32 s34, s34, 16384')
    vm.wait(('st', 0))
    a('s_barrier')
    stamp(a, 3)
    load(issued); issued += 1
    for f in reads(0): f()
    for n in range(KPS*NK4):
        s, ks = n // KPS, n % KPS
        wb = WB + 20 * (n % 2)
        last = n + 1 == KPS*NK4
        nxt = reads(n+1) if not last else []
        need_bar = ks == KPS-1 and not last
        if need_bar:
            lg.wait_all()
        if n in (16, 32): stamp(a, 3 + n//16)
        for tau in range(5):
            lg.wait((n, tau))
            acc = ACC + 4*tau
            a(f'v_mfma_f32_16x16x32_bf16 {vr(acc,4)}, {vr(wb+4*tau,4)}, {vr(HB+4*KPS*(s%NS4)+4*ks,4)}, {"0" if n == 0 else vr(acc,4)}')
            if tau == 0 and need_bar:
                vm.wait(('st', s+1))
                a('s_barrier')
            if nxt: nxt.pop(0)()
        if need_bar:
            if issued < NK4:
                load(issued); issued += 1
                if issued == NK4: resid()
    stamp(a, 6)
    vm.wait('res')
    for i in (1, 2, 3, 4):
        a(f'v_pk_add_f32 {vr(SPR,2)}, {vr(SPR,2)}, {vr(SPR+2*i,2)}')
    for sw in ('32', '16'):
        a(f'v_mov_b32 v{SPR+2}, v{SPR}')
        a(f'v_mov_b32 v{SPR+3}, v{SPR+1}')
        a(f'v_permlane{sw}_swap_b32 v{SPR}, v{SPR+2}')
        a(f'v_permlane{sw}_swap_b32 v{SPR+1}, v{SPR+3}')
        a(f'v_pk_add_f32 {vr(SPR,2)}, {vr(SPR,2)}, {vr(SPR+2,2)}')
    a(f'v_mul_f32 v{SPR}, {f2u(1.0/640)}, v{SPR}')
    a(f'v_mul_f32 v60, {f2u(1.0/640)}, v{SPR+1}')
    a(f'v_fma_f32 v60, -v{SPR}, v{SPR}, v60')
    a('v_max_f32 v60, 0, v60')
    round_bf16(a, 60, 60)
    a(f'v_add_f32 v60, {f2u(1e-5)}, v60')
    round_bf16(a, 60, 60)
    a('v_sqrt_f32 v60, v60')
    round_bf16(a, 60, 60)
    a('v_rcp_f32 v60, v60')
    a('v_mul_f32 v60, v60, v60')
    a(f's_mul_i32 s33, s23, {16*1280}')
    a('s_mul_i32 s34, s24, 160')
    a('s_add_u32 s33, s33, s34')
    for tau in range(5):
        for r in range(4):
            a(f'v_fma_f32 v{ACC+4*tau+r}, v{ACC+4*tau+r}, v60, v{HR+4*tau+r}')
        a(f'v_cvt_pk_bf16_f32 v{HR+4*tau}, v{ACC+4*tau}, v{ACC+4*tau+1}')
        a(f'v_cvt_pk_bf16_f32 v{HR+4*tau+1}, v{ACC+4*tau+2}, v{ACC+4*tau+3}')
        a(f'buffer_store_dwordx2 {vr(HR+4*tau,2)}, v18, s[44:47], s33 offen offset:{32*tau}')
    stamp_end(a, 3)
    a.label('K4_END')
    a('s_endpgm')
    return a
```

```python
import sys
sys.path.insert(0, 'gen')
from common import *
import k1, k2, k34, k12
def build(path):
    ks = [('k1_kernel', k1.gen_k1(), k1.K1_GRID, 256, k1.K1_LDS),
          ('k2_kernel', k2.gen_k2(), k2.K2_GRID, 256, k2.K2_LDS),
          ('k3_kernel', k34.gen_k34(), k34.K3_GRID, 512, k34.K3_LDS)]
    if OPT.get('merged', 1): ks = [('k1_kernel', k12.gen_k12(), k12.K12_GRID, 256, k12.K12_LDS), ks[2]]
    if OPT.get('spin'): ks.append(('sp_kernel', gen_spin(OPT['spin']), 1, 64, 0))
    if 'mk' in OPT: ks.append(('sp_kernel', gen_meas(OPT['mk'], OPT['ms'], OPT['mw0'], OPT['mw1'], OPT.get('mv0',0), OPT.get('mv1',4), OPT.get('mm',0)), 1, 64, 0))
    hdr = open('sequential_preLN__ssm_conv_s4__glu_gated_reglu__prompt.s.ref').read().split('; Override launch')[0]
    s = hdr
    for n, a, g, b, l in ks:
        s += f'; @launch kernel={n} grid=({g},1,1) block=({b},1,1) lds={l}\n'
    s += '.amdgcn_target "amdgcn-amd-amdhsa--gfx950"\n.text\n'
    kds = ''
    for n, a, g, b, l in ks:
        body, kd, info = kernel_text(n, a)
        fl = ['', ' sc1', ' nt', ' sc0 sc1'][OPT.get('st'+n[1], 0)]
        if fl:
            body = '\n'.join((l + fl) if l.strip().startswith('buffer_store') else l for l in body.split('\n'))
        print(n, 'vgpr,sgpr', info, 'instrs', len(a.ins), 'lds', l)
        s += body; kds += kd
    s += 'CODE_END:\n    s_endpgm\n' + kds
    open(path, 'w').write(s)
if __name__ == '__main__':
    for kv in sys.argv[3:]:
        k, v = kv.split('='); OPT[k] = int(v)
    if len(sys.argv) > 2 and sys.argv[2] == 'stamp': STAMP_ON[0] = True
    if len(sys.argv) > 2 and sys.argv[2] == 'cyc': STAMP_ON[0] = True; STAMP_OP[0] = 's_memtime'
    if len(sys.argv) > 2 and sys.argv[2] == 'dbg': STAMP_ON[0] = 'dbg'
    build(sys.argv[1] if len(sys.argv) > 1 else 'sequential_preLN__ssm_conv_s4__glu_gated_reglu__prompt.s')
```

```python
from asmlib import *
L, D, N, F = 2048, 640, 192, 1536
OPT = dict(pf=1, rot3=0, rot4=0)
KA = dict(x=0, Are=8, Aim=16, Bre=24, Bim=32, Cre=40, Cim=48, logdt=56, dskip=64, bx=72, Wg=80, Wu=88, Wd=96, out=104, dbg=112, ws=120)
WS_UP = 0x000000
WS_XT = 0x280000
WS_KW = 0x500000
WS_HT = 0x780000
WS_HID = 0xA00000
WS_CS = 0x1000000
WS_END = 0x1100000
def f2u(x):
    import struct
    return '0x%08x' % struct.unpack('<I', struct.pack('<f', x))[0]
def srd(a, s, base_s, nbytes, off=0):
    if off:
        a(f's_add_u32 s{s}, s{base_s}, {hex(off)}')
        a(f's_addc_u32 s{s+1}, s{base_s+1}, 0')
    else:
        a(f's_mov_b32 s{s}, s{base_s}')
        a(f's_mov_b32 s{s+1}, s{base_s+1}')
    a(f's_mov_b32 s{s+2}, {hex(nbytes)}')
    a(f's_mov_b32 s{s+3}, 0x20000')
def cmul(a, r, x, y):
    a(f'v_pk_mul_f32 {vr(r,2)}, {vr(x,2)}, {vr(y,2)} op_sel:[0,0] op_sel_hi:[0,1]')
    a(f'v_pk_fma_f32 {vr(r,2)}, {vr(x,2)}, {vr(y,2)}, {vr(r,2)} op_sel:[1,1,0] op_sel_hi:[1,0,1] neg_lo:[0,1,0]')
def interleave(*seqs):
    out = []
    seqs = [list(s) for s in seqs]
    while any(seqs):
        for s in seqs:
            if s: out.append(s.pop(0))
    return out
class Rec:
    def __init__(self): self.l = []
    def __call__(self, t):
        for line in t.split('\n'):
            if line.strip(): self.l.append(line.strip())

class Cnt:
    def __init__(self, a, name, maxv):
        self.a, self.name, self.maxv = a, name, maxv
        self.n = 0
        self.done = 0
        self.tags = {}
    def issue(self, tag=None):
        self.n += 1
        if tag is not None: self.tags[tag] = self.n
    def wait(self, tag):
        k = self.tags[tag]
        if k <= self.done: return
        out = min(self.n - k, self.maxv)
        self.a(f's_waitcnt {self.name}({out})')
        self.done = self.n - out
    def wait_all(self):
        if self.done < self.n:
            self.a(f's_waitcnt {self.name}(0)'); self.done = self.n
WS_R2 = 0x1010000
def round_bf16(a, d, s):
    a(f'v_cvt_pk_bf16_f32 v{d}, v{s}, v{s}')
    a(f'v_and_b32 v{d}, 0xffff0000, v{d}')

WS_STAMP = 0x2000000
STAMP_ON = [False]
STAMP_OP = ['s_memrealtime']
def stamp(a, i):
    if STAMP_ON[0]:
        a(f'{STAMP_OP[0]} s[{80+2*i}:{81+2*i}]')
def stamp_init(a):
    if STAMP_ON[0]:
        for i in range(8): a(f's_mov_b32 s{80+2*i}, 0')
        a('s_mov_b32 s98, s2')
        a('v_lshrrev_b32 v1, 6, v0')
        a('v_readfirstlane_b32 s99, v1')
        stamp(a, 0)
def stamp_end(a, kidx):
    if not STAMP_ON[0]: return
    stamp(a, 7)
    if STAMP_ON[0] == 'dbg':
        sel = DBG_SEL[kidx]
        import random
        lab = f'DBGSKIP_{kidx}_{len(a.ins)}'
        a(f's_load_dwordx2 s[60:61], s[0:1], {KA["dbg"]}')
        a('s_waitcnt lgkmcnt(0)')
        a(f's_add_u32 s64, s60, {512*(DBG_LAST[0]-kidx)}')
        a('s_addc_u32 s65, s61, 0')
        a('s_mov_b32 s66, 256')
        a('s_mov_b32 s67, 0x20000')
        a('s_and_b32 s62, s98, 15')
        a('s_or_b32 s62, s62, s99')
        a('s_cmp_lg_u32 s62, 0')
        a(f's_cbranch_scc1 {lab}')
        a('s_mov_b64 exec, 1')
        a('v_mov_b32 v0, 0')
        a('s_not_b32 s80, s80')
        for j, i in enumerate(sel):
            a(f'v_mov_b32 v{2+j}, s{80+2*i}')
            a(f'buffer_atomic_umax v{2+j}, v0, s[64:67], 0 offen offset:{16*kidx+4*j}')
        a.label(lab)
        return
    a(f's_load_dwordx2 s[60:61], s[0:1], {KA["ws"]}')
    a('s_waitcnt lgkmcnt(0)')
    srd(a, 64, 60, 0x100000, WS_STAMP + kidx*0x100000)
    a('s_lshl_b32 s62, s98, 4')
    a('s_add_u32 s62, s62, s99')
    a('s_lshl_b32 s62, s62, 5')
    a('s_mov_b64 exec, 1')
    for i in range(8): a(f'v_mov_b32 v{2+i}, s{80+2*i}')
    a('v_mov_b32 v0, 0')
    a('buffer_store_dwordx4 v[2:5], v0, s[64:67], s62 offen')
    a('buffer_store_dwordx4 v[6:9], v0, s[64:67], s62 offen offset:16')

DBG_SEL = {0: (0, 3, 4, 7), 1: (0, 4, 5, 7), 2: (0, 2, 5, 7), 3: (0, 3, 6, 7)}
DBG_LAST = [3]

WS_W1F = 0x1200000
WS_W2F = 0x1600000
WS_SP  = 0x1020000
WS_CNT = 0x1080000
W1F_BYTES = 16*20*12*1024
W2F_BYTES = 8*48*5*1024

def prep_unit(a, pfx, su, sW, sws, v0lane, vb, sb, end_label):
    R = vb; O = vb + 32; va = vb + 64
    S0, S1 = sb, sb + 4
    t = sb + 8
    a(f'v_and_b32 v{va}, 15, v{v0lane}')
    a(f'v_lshrrev_b32 v{va+1}, 4, v{v0lane}')
    a(f's_mov_b32 s{t+8}, 0x05040100')
    a(f's_mov_b32 s{t+9}, 0x07060302')
    a(f's_cmp_ge_u32 s{su}, 480')
    a(f's_cbranch_scc1 {pfx}_W2')
    a(f's_cmp_ge_u32 s{su}, 240')
    a(f's_cselect_b32 s{S0}, s{sW+2}, s{sW}')
    a(f's_cselect_b32 s{S0+1}, s{sW+3}, s{sW+1}')
    a(f's_cselect_b32 s{t}, 240, 0')
    a(f's_cselect_b32 s{t+4}, 6144, 0')
    a(f's_mov_b32 s{S0+2}, {D*F*2}')
    a(f's_mov_b32 s{S0+3}, 0x20000')
    a(f's_sub_u32 s{t}, s{su}, s{t}')
    a(f's_mul_i32 s{t+1}, s{t}, 0x5556')
    a(f's_lshr_b32 s{t+1}, s{t+1}, 18')
    a(f's_mul_i32 s{t+2}, s{t+1}, 12')
    a(f's_sub_u32 s{t+2}, s{t}, s{t+2}')
    a(f'v_mul_u32_u24 v{va+2}, {4*3072}, v{va+1}')
    a(f'v_lshl_add_u32 v{va+2}, v{va}, 4, v{va+2}')
    a(f's_mul_i32 s{t+3}, s{t+1}, {32*3072}')
    a(f's_lshl_b32 s{t+5}, s{t+2}, 8')
    a(f's_add_u32 s{t+3}, s{t+3}, s{t+5}')
    for jj in range(8):
        hh, r = jj >> 2, jj & 3
        a(f's_add_u32 s{t+5}, s{t+3}, {(16*hh+r)*3072}')
        a(f'buffer_load_dwordx4 {vr(R+4*jj,4)}, v{va+2}, {sr(S0,4)}, s{t+5} offen')
    srd(a, S1, sws, W1F_BYTES, WS_W1F)
    a(f'v_lshlrev_b32 v{va+3}, 4, v{v0lane}')
    a(f's_mul_i32 s{t+3}, s{t+1}, 12288')
    a(f's_add_u32 s{t+3}, s{t+3}, s{t+4}')
    a(f's_lshl_b32 s{t+2}, s{t+2}, 3')
    a('s_waitcnt vmcnt(0)')
    for j in range(8):
        for q in range(4):
            a(f'v_perm_b32 v{O+4*j+q}, v{R+4*(2*q+1)+(j>>1)}, v{R+4*(2*q)+(j>>1)}, s{t+8+(j&1)}')
        a(f's_add_u32 s{t+5}, s{t+2}, {j}')
        a(f's_mul_i32 s{t+6}, s{t+5}, 0xaaab')
        a(f's_lshr_b32 s{t+6}, s{t+6}, 18')
        a(f's_mul_i32 s{t+7}, s{t+6}, {245760-6*1024}')
        a(f's_lshl_b32 s{t+5}, s{t+5}, 10')
        a(f's_add_u32 s{t+5}, s{t+5}, s{t+7}')
        a(f's_add_u32 s{t+5}, s{t+5}, s{t+3}')
        a(f'buffer_store_dwordx4 {vr(O+4*j,4)}, v{va+3}, {sr(S1,4)}, s{t+5} offen')
    a(f's_branch {end_label}')
    a.label(f'{pfx}_W2')
    srd(a, S0, sW+4, F*D*2)
    a(f's_sub_u32 s{t}, s{su}, 480')
    a(f's_mul_i32 s{t+1}, s{t}, 0xcccd')
    a(f's_lshr_b32 s{t+1}, s{t+1}, 18')
    a(f's_mul_i32 s{t+2}, s{t+1}, 5')
    a(f's_sub_u32 s{t+2}, s{t}, s{t+2}')
    a(f'v_mul_u32_u24 v{va+2}, {32*1280}, v{va+1}')
    a(f'v_lshl_add_u32 v{va+2}, v{va}, 4, v{va+2}')
    a(f's_lshr_b32 s{t+3}, s{t+1}, 2')
    a(f's_lshl_b32 s{t+3}, s{t+3}, 7')
    a(f's_and_b32 s{t+5}, s{t+1}, 3')
    a(f's_lshl_b32 s{t+5}, s{t+5}, 1')
    a(f's_add_u32 s{t+3}, s{t+3}, s{t+5}')
    a(f's_mul_i32 s{t+3}, s{t+3}, 1280')
    a(f's_lshl_b32 s{t+5}, s{t+2}, 8')
    a(f's_add_u32 s{t+3}, s{t+3}, s{t+5}')
    for jj in range(8):
        hh, r = jj >> 2, jj & 3
        a(f's_add_u32 s{t+5}, s{t+3}, {(8*r+hh)*1280}')
        a(f'buffer_load_dwordx4 {vr(R+4*jj,4)}, v{va+2}, {sr(S0,4)}, s{t+5} offen')
    srd(a, S1, sws, W2F_BYTES, WS_W2F)
    a(f's_lshl_b32 s{t+5}, s{t+2}, 3')
    a(f'v_lshrrev_b32 v{va+3}, 1, v{va}')
    a(f'v_add_u32 v{va+3}, s{t+5}, v{va+3}')
    a(f'v_mul_u32_u24 v{va+4}, 0xcccd, v{va+3}')
    a(f'v_lshrrev_b32 v{va+4}, 18, v{va+4}')
    a(f'v_mul_u32_u24 v{va+4}, {245760-5*1024}, v{va+4}')
    a(f'v_lshl_add_u32 v{va+3}, v{va+3}, 10, v{va+4}')
    a(f'v_lshl_add_u32 v{va+3}, v{va+1}, 8, v{va+3}')
    a(f'v_and_b32 v{va+4}, 1, v{va}')
    a(f'v_lshl_add_u32 v{va+3}, v{va+4}, 7, v{va+3}')
    a(f's_mul_i32 s{t+3}, s{t+1}, 5120')
    a('s_waitcnt vmcnt(0)')
    for j in range(8):
        for q in range(4):
            a(f'v_perm_b32 v{O+4*j+q}, v{R+4*(2*q+1)+(j>>1)}, v{R+4*(2*q)+(j>>1)}, s{t+8+(j&1)}')
        a(f'buffer_store_dwordx4 {vr(O+4*j,4)}, v{va+3}, {sr(S1,4)}, s{t+3} offen offset:{16*j}')
    a(f's_branch {end_label}')

_pf_id = [0]
def code_prefetch(a, start_label, end_label, ninstr, vlane128, vdst, sp):
    _pf_id[0] += 1
    h = f'PFH{_pf_id[0]}'
    a(f's_getpc_b64 s[{sp}:{sp+1}]')
    a.label(h)
    if start_label:
        a(f's_add_u32 s{sp}, s{sp}, {start_label}-{h}')
        a(f's_addc_u32 s{sp+1}, s{sp+1}, 0')
    a(f's_mov_b32 s{sp+2}, {end_label}-{start_label or h}')
    a(f's_mov_b32 s{sp+3}, 0x20000')
    for i in range(ninstr):
        if i == 0:
            a(f'buffer_load_dword v{vdst}, v{vlane128}, s[{sp}:{sp+3}], 0 offen')
        else:
            a(f's_mov_b32 s{sp+4}, {8192*i}')
            a(f'buffer_load_dword v{vdst}, v{vlane128}, s[{sp}:{sp+3}], s{sp+4} offen')

WS_T0 = 0x1090000
def t0_mark(a, kidx):
    if not OPT.get('spin'): return
    lab = f'T0SKIP{kidx}'
    a('s_memrealtime s[70:71]')
    a(f's_load_dwordx2 s[72:73], s[0:1], {KA["ws"]}')
    a('s_cmp_lg_u32 s2, 0')
    a(f's_cbranch_scc1 {lab}')
    a('s_waitcnt lgkmcnt(0)')
    srd(a, 76, 72, 256, WS_T0)
    a('v_mov_b32 v1, s70')
    a('v_mov_b32 v2, 0')
    a(f'buffer_store_dword v1, v2, s[76:79], 0 offen offset:{4*kidx}')
    a.label(lab)
    a('s_waitcnt lgkmcnt(0)')
def gen_spin(j):
    a = Asm()
    a('s_cmp_lg_u32 s2, 0')
    a('s_cbranch_scc1 SP_END')
    a(f's_load_dwordx2 s[4:5], s[0:1], {KA["ws"]}')
    a('s_waitcnt lgkmcnt(0)')
    a(f's_add_u32 s4, s4, {WS_T0}')
    a('s_addc_u32 s5, s5, 0')
    a(f's_load_dword s8, s[4:5], {4*(j-1)}')
    a('s_mov_b32 s9, 0')
    a.label('SP_LOOP')
    a('s_memrealtime s[10:11]')
    a('s_waitcnt lgkmcnt(0)')
    a('s_sub_u32 s12, s10, s8')
    a('s_add_u32 s9, s9, 1')
    a('s_cmp_ge_u32 s9, 20000')
    a('s_cbranch_scc1 SP_END')
    a('s_cmp_lt_u32 s12, 10000')
    a('s_cbranch_scc1 SP_LOOP')
    a.label('SP_END')
    a('s_endpgm')
    a('v_mov_b32 v0, 0')
    a('s_endpgm')
    return a
```

```python
from asmlib import *
L, D, N, F = 2048, 640, 192, 1536
OPT = dict(pf=1, rot3=0, rot4=0)
KA = dict(x=0, Are=8, Aim=16, Bre=24, Bim=32, Cre=40, Cim=48, logdt=56, dskip=64, bx=72, Wg=80, Wu=88, Wd=96, out=104, dbg=112, ws=120)
WS_UP = 0x000000
WS_XT = 0x280000
WS_KW = 0x500000
WS_HT = 0x780000
WS_HID = 0xA00000
WS_CS = 0x1000000
WS_END = 0x1100000
def f2u(x):
    import struct
    return '0x%08x' % struct.unpack('<I', struct.pack('<f', x))[0]
def srd(a, s, base_s, nbytes, off=0):
    if off:
        a(f's_add_u32 s{s}, s{base_s}, {hex(off)}')
        a(f's_addc_u32 s{s+1}, s{base_s+1}, 0')
    else:
        a(f's_mov_b32 s{s}, s{base_s}')
        a(f's_mov_b32 s{s+1}, s{base_s+1}')
    a(f's_mov_b32 s{s+2}, {hex(nbytes)}')
    a(f's_mov_b32 s{s+3}, 0x20000')
def cmul(a, r, x, y):
    a(f'v_pk_mul_f32 {vr(r,2)}, {vr(x,2)}, {vr(y,2)} op_sel:[0,0] op_sel_hi:[0,1]')
    a(f'v_pk_fma_f32 {vr(r,2)}, {vr(x,2)}, {vr(y,2)}, {vr(r,2)} op_sel:[1,1,0] op_sel_hi:[1,0,1] neg_lo:[0,1,0]')
def interleave(*seqs):
    out = []
    seqs = [list(s) for s in seqs]
    while any(seqs):
        for s in seqs:
            if s: out.append(s.pop(0))
    return out
class Rec:
    def __init__(self): self.l = []
    def __call__(self, t):
        for line in t.split('\n'):
            if line.strip(): self.l.append(line.strip())

class Cnt:
    def __init__(self, a, name, maxv):
        self.a, self.name, self.maxv = a, name, maxv
        self.n = 0
        self.done = 0
        self.tags = {}
    def issue(self, tag=None):
        self.n += 1
        if tag is not None: self.tags[tag] = self.n
    def wait(self, tag):
        k = self.tags[tag]
        if k <= self.done: return
        out = min(self.n - k, self.maxv)
        self.a(f's_waitcnt {self.name}({out})')
        self.done = self.n - out
    def wait_all(self):
        if self.done < self.n:
            self.a(f's_waitcnt {self.name}(0)'); self.done = self.n
WS_R2 = 0x1010000
def round_bf16(a, d, s):
    a(f'v_cvt_pk_bf16_f32 v{d}, v{s}, v{s}')
    a(f'v_and_b32 v{d}, 0xffff0000, v{d}')

WS_STAMP = 0x2000000
STAMP_ON = [False]
STAMP_OP = ['s_memrealtime']
def stamp(a, i):
    if STAMP_ON[0]:
        a(f'{STAMP_OP[0]} s[{80+2*i}:{81+2*i}]')
def stamp_init(a):
    if STAMP_ON[0]:
        for i in range(8): a(f's_mov_b32 s{80+2*i}, 0')
        a('s_mov_b32 s98, s2')
        a('v_lshrrev_b32 v1, 6, v0')
        a('v_readfirstlane_b32 s99, v1')
        stamp(a, 0)
def stamp_end(a, kidx):
    if not STAMP_ON[0]: return
    stamp(a, 7)
    if STAMP_ON[0] == 'dbg':
        sel = DBG_SEL[kidx]
        import random
        lab = f'DBGSKIP_{kidx}_{len(a.ins)}'
        a(f's_load_dwordx2 s[60:61], s[0:1], {KA["dbg"]}')
        a('s_waitcnt lgkmcnt(0)')
        a(f's_add_u32 s64, s60, {512*(DBG_LAST[0]-kidx)}')
        a('s_addc_u32 s65, s61, 0')
        a('s_mov_b32 s66, 256')
        a('s_mov_b32 s67, 0x20000')
        a('s_and_b32 s62, s98, 15')
        a('s_or_b32 s62, s62, s99')
        a('s_cmp_lg_u32 s62, 0')
        a(f's_cbranch_scc1 {lab}')
        a('s_mov_b64 exec, 1')
        a('v_mov_b32 v0, 0')
        a('s_not_b32 s80, s80')
        for j, i in enumerate(sel):
            a(f'v_mov_b32 v{2+j}, s{80+2*i}')
            a(f'buffer_atomic_umax v{2+j}, v0, s[64:67], 0 offen offset:{16*kidx+4*j}')
        a.label(lab)
        return
    a(f's_load_dwordx2 s[60:61], s[0:1], {KA["ws"]}')
    a('s_waitcnt lgkmcnt(0)')
    srd(a, 64, 60, 0x100000, WS_STAMP + kidx*0x100000)
    a('s_lshl_b32 s62, s98, 4')
    a('s_add_u32 s62, s62, s99')
    a('s_lshl_b32 s62, s62, 5')
    a('s_mov_b64 exec, 1')
    for i in range(8): a(f'v_mov_b32 v{2+i}, s{80+2*i}')
    a('v_mov_b32 v0, 0')
    a('buffer_store_dwordx4 v[2:5], v0, s[64:67], s62 offen')
    a('buffer_store_dwordx4 v[6:9], v0, s[64:67], s62 offen offset:16')

DBG_SEL = {0: (0, 3, 4, 7), 1: (0, 4, 5, 7), 2: (0, 2, 5, 7), 3: (0, 3, 6, 7)}
DBG_LAST = [3]

WS_W1F = 0x1200000
WS_W2F = 0x1600000
WS_SP  = 0x1020000
WS_CNT = 0x1080000
W1F_BYTES = 16*20*12*1024
W2F_BYTES = 8*48*5*1024

def prep_unit(a, pfx, su, sW, sws, v0lane, vb, sb, end_label):
    R = vb; O = vb + 32; va = vb + 64
    S0, S1 = sb, sb + 4
    t = sb + 8
    a(f'v_and_b32 v{va}, 15, v{v0lane}')
    a(f'v_lshrrev_b32 v{va+1}, 4, v{v0lane}')
    a(f's_mov_b32 s{t+8}, 0x05040100')
    a(f's_mov_b32 s{t+9}, 0x07060302')
    a(f's_cmp_ge_u32 s{su}, 480')
    a(f's_cbranch_scc1 {pfx}_W2')
    a(f's_cmp_ge_u32 s{su}, 240')
    a(f's_cselect_b32 s{S0}, s{sW+2}, s{sW}')
    a(f's_cselect_b32 s{S0+1}, s{sW+3}, s{sW+1}')
    a(f's_cselect_b32 s{t}, 240, 0')
    a(f's_cselect_b32 s{t+4}, 6144, 0')
    a(f's_mov_b32 s{S0+2}, {D*F*2}')
    a(f's_mov_b32 s{S0+3}, 0x20000')
    a(f's_sub_u32 s{t}, s{su}, s{t}')
    a(f's_mul_i32 s{t+1}, s{t}, 0x5556')
    a(f's_lshr_b32 s{t+1}, s{t+1}, 18')
    a(f's_mul_i32 s{t+2}, s{t+1}, 12')
    a(f's_sub_u32 s{t+2}, s{t}, s{t+2}')
    a(f'v_mul_u32_u24 v{va+2}, {4*3072}, v{va+1}')
    a(f'v_lshl_add_u32 v{va+2}, v{va}, 4, v{va+2}')
    a(f's_mul_i32 s{t+3}, s{t+1}, {32*3072}')
    a(f's_lshl_b32 s{t+5}, s{t+2}, 8')
    a(f's_add_u32 s{t+3}, s{t+3}, s{t+5}')
    for jj in range(8):
        hh, r = jj >> 2, jj & 3
        a(f's_add_u32 s{t+5}, s{t+3}, {(16*hh+r)*3072}')
        a(f'buffer_load_dwordx4 {vr(R+4*jj,4)}, v{va+2}, {sr(S0,4)}, s{t+5} offen')
    srd(a, S1, sws, W1F_BYTES, WS_W1F)
    a(f'v_lshlrev_b32 v{va+3}, 4, v{v0lane}')
    a(f's_mul_i32 s{t+3}, s{t+1}, 12288')
    a(f's_add_u32 s{t+3}, s{t+3}, s{t+4}')
    a(f's_lshl_b32 s{t+2}, s{t+2}, 3')
    a('s_waitcnt vmcnt(0)')
    for j in range(8):
        for q in range(4):
            a(f'v_perm_b32 v{O+4*j+q}, v{R+4*(2*q+1)+(j>>1)}, v{R+4*(2*q)+(j>>1)}, s{t+8+(j&1)}')
        a(f's_add_u32 s{t+5}, s{t+2}, {j}')
        a(f's_mul_i32 s{t+6}, s{t+5}, 0xaaab')
        a(f's_lshr_b32 s{t+6}, s{t+6}, 18')
        a(f's_mul_i32 s{t+7}, s{t+6}, {245760-6*1024}')
        a(f's_lshl_b32 s{t+5}, s{t+5}, 10')
        a(f's_add_u32 s{t+5}, s{t+5}, s{t+7}')
        a(f's_add_u32 s{t+5}, s{t+5}, s{t+3}')
        a(f'buffer_store_dwordx4 {vr(O+4*j,4)}, v{va+3}, {sr(S1,4)}, s{t+5} offen')
    a(f's_branch {end_label}')
    a.label(f'{pfx}_W2')
    srd(a, S0, sW+4, F*D*2)
    a(f's_sub_u32 s{t}, s{su}, 480')
    a(f's_mul_i32 s{t+1}, s{t}, 0xcccd')
    a(f's_lshr_b32 s{t+1}, s{t+1}, 18')
    a(f's_mul_i32 s{t+2}, s{t+1}, 5')
    a(f's_sub_u32 s{t+2}, s{t}, s{t+2}')
    a(f'v_mul_u32_u24 v{va+2}, {32*1280}, v{va+1}')
    a(f'v_lshl_add_u32 v{va+2}, v{va}, 4, v{va+2}')
    a(f's_lshr_b32 s{t+3}, s{t+1}, 2')
    a(f's_lshl_b32 s{t+3}, s{t+3}, 7')
    a(f's_and_b32 s{t+5}, s{t+1}, 3')
    a(f's_lshl_b32 s{t+5}, s{t+5}, 1')
    a(f's_add_u32 s{t+3}, s{t+3}, s{t+5}')
    a(f's_mul_i32 s{t+3}, s{t+3}, 1280')
    a(f's_lshl_b32 s{t+5}, s{t+2}, 8')
    a(f's_add_u32 s{t+3}, s{t+3}, s{t+5}')
    for jj in range(8):
        hh, r = jj >> 2, jj & 3
        a(f's_add_u32 s{t+5}, s{t+3}, {(8*r+hh)*1280}')
        a(f'buffer_load_dwordx4 {vr(R+4*jj,4)}, v{va+2}, {sr(S0,4)}, s{t+5} offen')
    srd(a, S1, sws, W2F_BYTES, WS_W2F)
    a(f's_lshl_b32 s{t+5}, s{t+2}, 3')
    a(f'v_lshrrev_b32 v{va+3}, 1, v{va}')
    a(f'v_add_u32 v{va+3}, s{t+5}, v{va+3}')
    a(f'v_mul_u32_u24 v{va+4}, 0xcccd, v{va+3}')
    a(f'v_lshrrev_b32 v{va+4}, 18, v{va+4}')
    a(f'v_mul_u32_u24 v{va+4}, {245760-5*1024}, v{va+4}')
    a(f'v_lshl_add_u32 v{va+3}, v{va+3}, 10, v{va+4}')
    a(f'v_lshl_add_u32 v{va+3}, v{va+1}, 8, v{va+3}')
    a(f'v_and_b32 v{va+4}, 1, v{va}')
    a(f'v_lshl_add_u32 v{va+3}, v{va+4}, 7, v{va+3}')
    a(f's_mul_i32 s{t+3}, s{t+1}, 5120')
    a('s_waitcnt vmcnt(0)')
    for j in range(8):
        for q in range(4):
            a(f'v_perm_b32 v{O+4*j+q}, v{R+4*(2*q+1)+(j>>1)}, v{R+4*(2*q)+(j>>1)}, s{t+8+(j&1)}')
        a(f'buffer_store_dwordx4 {vr(O+4*j,4)}, v{va+3}, {sr(S1,4)}, s{t+3} offen offset:{16*j}')
    a(f's_branch {end_label}')

_pf_id = [0]
def code_prefetch(a, start_label, end_label, ninstr, vlane128, vdst, sp):
    _pf_id[0] += 1
    h = f'PFH{_pf_id[0]}'
    a(f's_getpc_b64 s[{sp}:{sp+1}]')
    a.label(h)
    if start_label:
        a(f's_add_u32 s{sp}, s{sp}, {start_label}-{h}')
        a(f's_addc_u32 s{sp+1}, s{sp+1}, 0')
    a(f's_mov_b32 s{sp+2}, {end_label}-{start_label or h}')
    a(f's_mov_b32 s{sp+3}, 0x20000')
    for i in range(ninstr):
        if i == 0:
            a(f'buffer_load_dword v{vdst}, v{vlane128}, s[{sp}:{sp+3}], 0 offen')
        else:
            a(f's_mov_b32 s{sp+4}, {8192*i}')
            a(f'buffer_load_dword v{vdst}, v{vlane128}, s[{sp}:{sp+3}], s{sp+4} offen')

WS_T0 = 0x1090000
def t0_mark(a, kidx):
    if not OPT.get('spin'): return
    lab = f'T0SKIP{kidx}'
    a('s_memrealtime s[70:71]')
    a(f's_load_dwordx2 s[72:73], s[0:1], {KA["ws"]}')
    a('s_cmp_lg_u32 s2, 0')
    a(f's_cbranch_scc1 {lab}')
    a('s_waitcnt lgkmcnt(0)')
    srd(a, 76, 72, 256, WS_T0)
    a('v_mov_b32 v1, s70')
    a('v_mov_b32 v2, 0')
    a(f'buffer_store_dword v1, v2, s[76:79], 0 offen offset:{4*kidx}')
    a.label(lab)
    a('s_waitcnt lgkmcnt(0)')
def gen_spin(j):
    a = Asm()
    a('s_cmp_lg_u32 s2, 0')
    a('s_cbranch_scc1 SP_END')
    a(f's_load_dwordx2 s[4:5], s[0:1], {KA["ws"]}')
    a('s_waitcnt lgkmcnt(0)')
    a(f's_add_u32 s4, s4, {WS_T0}')
    a('s_addc_u32 s5, s5, 0')
    a(f's_load_dword s8, s[4:5], {4*(j-1)}')
    a('s_mov_b32 s9, 0')
    a.label('SP_LOOP')
    a('s_memrealtime s[10:11]')
    a('s_waitcnt lgkmcnt(0)')
    a('s_sub_u32 s12, s10, s8')
    a('s_add_u32 s9, s9, 1')
    a('s_cmp_ge_u32 s9, 20000')
    a('s_cbranch_scc1 SP_END')
    a('s_cmp_lt_u32 s12, 10000')
    a('s_cbranch_scc1 SP_LOOP')
    a.label('SP_END')
    a('s_endpgm')
    a('v_mov_b32 v0, 0')
    a('s_endpgm')
    return a

WS_CP = 0x10A0000
CP_BYTES = 24*8*16*8*4

def colsum_unit(a, pfx, su, sW, sws, vlane, vb, sb, end_label):
    R = vb; S = vb + 40; va = vb + 48
    S0, S1 = sb, sb + 4
    t = sb + 8
    a(f's_cmp_ge_u32 s{su}, 384')
    a(f's_cbranch_scc1 {pfx}_T')
    a(f's_and_b32 s{t}, s{su}, 7')
    a(f's_lshr_b32 s{t+1}, s{su}, 3')
    a(f's_cmp_ge_u32 s{t+1}, 24')
    a(f's_cselect_b32 s{S0}, s{sW+2}, s{sW}')
    a(f's_cselect_b32 s{S0+1}, s{sW+3}, s{sW+1}')
    a(f's_cselect_b32 s{t+2}, 24, 0')
    a(f's_mov_b32 s{S0+2}, {D*F*2}')
    a(f's_mov_b32 s{S0+3}, 0x20000')
    a(f's_sub_u32 s{t+2}, s{t+1}, s{t+2}')
    a(f's_lshl_b32 s{t+2}, s{t+2}, 7')
    a(f's_mul_i32 s{t+3}, s{t}, {80*3072}')
    a(f's_add_u32 s{t+3}, s{t+3}, s{t+2}')
    a(f'v_and_b32 v{va}, 7, v{vlane}')
    a(f'v_lshrrev_b32 v{va+1}, 3, v{vlane}')
    a(f'v_mul_u32_u24 v{va+2}, 3072, v{va+1}')
    a(f'v_lshl_add_u32 v{va+2}, v{va}, 4, v{va+2}')
    for i in range(10):
        a(f'buffer_load_dwordx4 {vr(R+4*i,4)}, v{va+2}, {sr(S0,4)}, s{t+3} offen')
        a(f's_add_u32 s{t+3}, s{t+3}, {8*3072}')
    srd(a, S1, sws, CP_BYTES, WS_CP)
    a(f's_mov_b32 s{t+4}, 0x00003f80')
    a(f's_mov_b32 s{t+5}, 0x3f800000')
    for j in range(8): a(f'v_mov_b32 v{S+j}, 0')
    a(f'v_and_b32 v{va+3}, 1, v{va}')
    a(f'v_lshl_add_u32 v{va+3}, v{va+3}, 3, v{va+1}')
    a(f'v_lshlrev_b32 v{va+3}, 5, v{va+3}')
    a(f'v_lshrrev_b32 v{va+4}, 1, v{va}')
    a(f'v_lshl_add_u32 v{va+3}, v{va+4}, 2, v{va+3}')
    a(f's_lshr_b32 s{t+2}, s{t+1}, 1')
    a(f's_lshl_b32 s{t+2}, s{t+2}, 12')
    a(f's_lshl_b32 s{t+3}, s{t}, 9')
    a(f's_add_u32 s{t+2}, s{t+2}, s{t+3}')
    a(f's_and_b32 s{t+3}, s{t+1}, 1')
    a(f's_lshl_b32 s{t+3}, s{t+3}, 4')
    a(f's_add_u32 s{t+2}, s{t+2}, s{t+3}')
    a(f's_mov_b32 s{t+6}, 0xff00ff00')
    a(f's_mov_b32 s{t+7}, 0xff00ff00')
    for i in range(10):
        a(f's_waitcnt vmcnt({9-i})')
        for w in range(4):
            a(f'v_dot2_f32_bf16 v{S+2*w}, v{R+4*i+w}, s{t+4}, v{S+2*w}')
            a(f'v_dot2_f32_bf16 v{S+2*w+1}, v{R+4*i+w}, s{t+5}, v{S+2*w+1}')
    for j in range(4): a(f'v_permlane32_swap_b32 v{S+j}, v{S+4+j}')
    for j in range(4): a(f'v_add_f32 v{S+j}, v{S+j}, v{S+4+j}')
    for j in range(2): a(f'v_permlane16_swap_b32 v{S+j}, v{S+2+j}')
    for j in range(2): a(f'v_add_f32 v{S+j}, v{S+j}, v{S+2+j}')
    for j in range(2): a(f'v_add_f32_dpp v{S+j}, v{S+j}, v{S+j} row_ror:8 row_mask:0xf bank_mask:0xf')
    a(f'v_cndmask_b32 v{S}, v{S}, v{S+1}, {sr(t+6,2)}')
    a(f'buffer_store_dword v{S}, v{va+3}, {sr(S1,4)}, s{t+2} offen')
    a(f's_branch {end_label}')
    a.label(f'{pfx}_T')
    srd(a, S0, sW+4, F*D*2)
    a(f's_sub_u32 s{t}, s{su}, 384')
    a(f's_lshl_b32 s{t}, s{t}, 13')
    a(f'v_lshlrev_b32 v{va}, 7, v{vlane}')
    a(f'buffer_load_dword v{vb+60}, v{va}, {sr(S0,4)}, s{t} offen')
    a(f's_branch {end_label}')
```

```python
from common import *
K2_CONV = 160
K2_GRID = 256
KREG = 4128
UPS = 1152
WREG = KREG + 4*UPS
XTO = 4 * WREG
K2_LDS = 84 * 1024

def gen_k2():
    a = Asm()
    a(f's_cmp_ge_u32 s2, {K2_GRID}')
    a('s_cbranch_scc1 K2_END')
    stamp_init(a)
    t0_mark(a, 1)
    a(f's_cmp_ge_u32 s2, {K2_CONV}')
    a('s_cbranch_scc1 K2_CS')
    a(f's_load_dwordx2 s[4:5], s[0:1], {KA["ws"]}')
    a('v_lshrrev_b32 v1, 6, v0')
    a('v_and_b32 v2, 63, v0')
    a('v_readfirstlane_b32 s22, v1')
    a('s_lshl_b32 s3, s2, 2')
    a('s_add_u32 s3, s3, s22')
    a(f's_mul_i32 s23, s22, {WREG}')
    a('v_lshlrev_b32 v3, 4, v2')
    a('v_lshrrev_b32 v4, 3, v2')
    a('v_mul_u32_u24 v4, 20480, v4')
    a('v_and_b32 v5, 7, v2')
    a('v_lshl_add_u32 v4, v5, 4, v4')
    a('s_lshl_b32 s24, s3, 12')
    a('s_lshl_b32 s25, s2, 7')
    a(f's_mul_i32 s26, s22, {32*20480}')
    a('s_add_u32 s25, s25, s26')
    a('s_lshl_b32 s27, s22, 12')
    a('s_waitcnt lgkmcnt(0)')
    stamp(a, 1)
    srd(a, 8, 4, 0x280000, WS_UP)
    srd(a, 12, 4, 0x280000, WS_KW)
    vm = Cnt(a, 'vmcnt', 63); lg = Cnt(a, 'lgkmcnt', 15)
    ST = 176
    for i in range(4):
        a(f's_add_u32 s26, s25, {8*20480*i}')
        a(f'buffer_load_dwordx4 {vr(ST+4*i,4)}, v4, s[8:11], s26 offen'); vm.issue(('up', i))
    a(f's_add_u32 m0, s23, 32')
    for i in range(4):
        a(f'buffer_load_dwordx4 v3, s[12:15], s24 offen offset:{1024*i} lds'); vm.issue(('k', i))
    srd(a, 16, 4, 0x280000, WS_XT)
    for i in range(4):
        a(f's_add_u32 m0, s27, {XTO+1024*i}')
        a(f's_add_u32 s26, s25, {8*20480*i}')
        a(f'buffer_load_dwordx4 v4, s[16:19], s26 offen lds'); vm.issue(('xt', i))
    srd(a, 28, 4, 0x280000, WS_HT)
    a('v_and_b32 v6, 15, v2')
    a('v_lshrrev_b32 v7, 4, v2')
    a('v_lshlrev_b32 v8, 7, v6')
    a('v_lshl_add_u32 v8, v7, 3, v8')
    a('s_lshl_b32 s26, s22, 5')
    a('v_add_u32 v8, s26, v8')
    XT = 192
    a('v_mov_b32 v10, 0'); a('v_mov_b32 v11, 0')
    a(f'v_mul_u32_u24 v9, {UPS}, v7')
    a('v_lshl_add_u32 v9, v6, 3, v9')
    a('v_add_u32 v9, s23, v9')
    a(f'ds_write_b64 v9, v[10:11] offset:{KREG}'); lg.issue()
    a('v_and_b32 v9, 3, v2')
    a('v_lshlrev_b32 v9, 3, v9')
    a('v_add_u32 v9, s23, v9')
    a('ds_write_b64 v9, v[10:11]'); lg.issue()
    a('v_lshrrev_b32 v9, 1, v5')
    a(f'v_mul_u32_u24 v9, {WREG}, v9')
    a('v_and_b32 v12, 1, v2')
    a(f'v_mul_u32_u24 v12, {2*UPS}, v12')
    a('v_add_u32 v9, v9, v12')
    a('v_and_b32 v12, 0x38, v2')
    a('v_add_u32 v9, v9, v12')
    a('s_lshl_b32 s26, s22, 8')
    a('v_add_u32 v9, s26, v9')
    a('v_and_b32 v12, 3, v2')
    a('v_bfe_u32 v13, v2, 2, 2')
    a('v_sub_u32 v12, v12, v13')
    a('v_lshlrev_b32 v12, 3, v12')
    a('v_lshlrev_b32 v13, 6, v7')
    a('v_sub_u32 v12, v12, v13')
    a('v_add_u32 v12, 224, v12')
    a('v_add_u32 v12, s23, v12')
    a('v_lshlrev_b32 v13, 3, v6')
    a('v_lshl_add_u32 v13, v7, 4, v13')
    a('v_add_u32 v13, s23, v13')
    a('v_add_u32 v14, 47, v2')
    a('v_cmp_eq_u32 vcc, 0, v2')
    a('v_cndmask_b32 v14, v14, 63, vcc')
    a('v_subrev_u32 v15, 16, v2')
    a('v_cmp_gt_u32 vcc, 16, v2')
    a('v_cndmask_b32 v14, v15, v14, vcc')
    a('v_lshlrev_b32 v14, 2, v14')
    a('v_lshrrev_b32 v15, 3, v6')
    a('v_mul_u32_u24 v15, 163840, v15')
    a('v_and_b32 v10, 7, v6')
    a('v_lshl_add_u32 v15, v10, 5, v15')
    a('v_lshl_add_u32 v15, v7, 3, v15')
    a('s_lshl_b32 s34, s3, 8')
    a('s_mov_b32 s32, 0')
    a('s_brev_b32 s33, 1')
    AF = 16
    ACC = 80
    for t in range(8):
        for r in (4, 5, 10, 11): a(f'v_mov_b32 v{ACC+12*t+r}, 0')
    stamp(a, 2)
    for i in range(4):
        vm.wait(('up', i))
        a(f'ds_write_b64 v9, {vr(ST+4*i,2)} offset:{KREG+128+64*i}'); lg.issue()
        a(f'ds_write_b64 v9, {vr(ST+4*i+2,2)} offset:{KREG+128+64*i+UPS}'); lg.issue()
    lg.wait_all()
    a('s_barrier')
    stamp(a, 3)
    BR = 208; NB = 8
    groups = [(b, ph) for b in range(-1, 15) for ph in range(4)]
    def rdB(gi):
        b, ph = groups[gi]
        r = BR + 4*(gi % NB)
        off = KREG + 8 + ph*UPS + 64*(b+1)
        a(f'ds_read_b64 {vr(r,2)}, v13 offset:{off}'); lg.issue()
        a(f'ds_read_b64 {vr(r+2,2)}, v13 offset:{off+8}'); lg.issue(('B', gi))
    def rdA(m):
        a(f'ds_read_b64_tr_b16 {vr(AF+4*m,2)}, v12 offset:{256*m+32}'); lg.issue()
        a(f'ds_read_b64_tr_b16 {vr(AF+4*m+2,2)}, v12 offset:{256*m}'); lg.issue(('A', m))
    PD = 5
    for n in range(PD+1): rdB(n)
    for m in range(1, 16, 2):
        vm.wait(('k', (m*256+288) // 1024 if m < 15 else 3))
        rdA(m)
    stamp(a, 4)
    nextB = PD+1
    pendA = list(range(0, 16, 2))
    TMP = ST
    def epi1(t):
        E = ACC + 12*t; O = E + 6
        l = []
        def rx():
            a(f'ds_read_b64 {vr(XT+2*t,2)}, v8 offset:{XTO+2048*t}'); lg.issue(('x', t))
        l.append(rx)
        for p in (4, 5, 1, 2, 3):
            l.append(lambda p=p: a(f'v_add_f32 v{E+p}, v{E+p}, v{O+p-1}'))
        cur = [E+4, E+5, O+5]
        prev = [E-12+4, E-12+5, O-12+5]
        tb = TMP + 8*(t & 1)
        for r in range(3):
            if t == 0:
                l.append(lambda r=r: a(f'v_cndmask_b32 v{tb+r}, v{cur[r]}, 0, s[32:33]'))
            else:
                l.append(lambda r=r: a(f'v_cndmask_b32 v{tb+r}, v{cur[r]}, v{prev[r]}, s[32:33]'))
        for r in range(3):
            def f(r=r):
                a(f'ds_bpermute_b32 v{tb+r}, v14, v{tb+r}'); lg.issue(('bp', t, r))
            l.append(f)
        return l
    def epi2(t):
        E = ACC + 12*t
        tb = TMP + 8*(t & 1)
        l = []
        def w():
            lg.wait(('x', t))
            a(f'v_lshlrev_b32 v{tb+4}, 16, v{XT+2*t}')
        l.append(w)
        l.append(lambda: a(f'v_and_b32 v{tb+5}, 0xffff0000, v{XT+2*t}'))
        l.append(lambda: a(f'v_lshlrev_b32 v{tb+6}, 16, v{XT+2*t+1}'))
        l.append(lambda: a(f'v_and_b32 v{tb+7}, 0xffff0000, v{XT+2*t+1}'))
        for r in range(4):
            l.append(lambda r=r: a(f'v_add_f32 v{tb+4+r}, v{tb+4+r}, v{E+r}'))
        def w2():
            lg.wait(('bp', t, 2))
            a(f'v_add_f32 v{tb+4}, v{tb+4}, v{tb}')
        l.append(w2)
        l.append(lambda: a(f'v_add_f32 v{tb+5}, v{tb+5}, v{tb+1}'))
        l.append(lambda: a(f'v_add_f32 v{tb+6}, v{tb+6}, v{tb+2}'))
        l.append(lambda: a(f'v_cvt_pk_bf16_f32 v{XT+2*t}, v{tb+4}, v{tb+5}'))
        l.append(lambda: a(f'v_cvt_pk_bf16_f32 v{XT+2*t+1}, v{tb+6}, v{tb+7}'))
        def st():
            a(f'buffer_store_dwordx2 {vr(XT+2*t,2)}, v15, s[28:31], s34 offen'); vm.issue()
            a('s_add_u32 s34, s34, 327680')
        l.append(st)
        return l
    side = []
    delay = 0
    rdq = []
    for gi, (b, ph) in enumerate(groups):
        while nextB < len(groups) and nextB <= gi + PD:
            if gi == 0:
                rdB(nextB)
            else:
                rdq.append(lambda n=nextB: rdB(n))
            nextB += 1
        if gi >= 1 and pendA:
            for _ in range(3):
                if pendA: rdq.append(lambda m=pendA.pop(0): rdA(m))
        ms = [m for m in range(16) if (m + b) % 2 == 0 and 0 <= (m + b)//2 <= 7]
        while ('B', gi) not in lg.tags: rdq.pop(0)()
        lg.wait(('B', gi))
        r = BR + 4*(gi % NB)
        for m in ms:
            t = (m + b)//2
            while ('A', m) not in lg.tags: rdq.pop(0)()
            lg.wait(('A', m))
            acc = ACC + 12*t + (6 if ph & 1 else 0) + (2 if ph & 2 else 0)
            first = (b == -1 and ph < 2)
            a(f'v_mfma_f32_16x16x32_bf16 {vr(acc,4)}, {vr(AF+4*m,4)}, {vr(r,4)}, {"0" if first else vr(acc,4)}')
            if rdq: rdq.pop(0)()
            elif delay > 0: delay -= 1
            elif side:
                side.pop(0)()
                if side and len(side) > 20: side.pop(0)()
        if ph == 3 and b >= 0 and b % 2 == 0:
            t = b // 2
            if t == 0:
                vm.wait(('xt', 3))
                a('s_barrier')
            if not side: delay = 2
            side += epi1(t) + epi2(t)
    stamp(a, 5)
    for f in side: f()
    stamp_end(a, 1)
    a('s_endpgm')

    a.label('K2_CS')
    a(f's_load_dwordx4 s[4:7], s[0:1], {KA["Wg"]}')
    a(f's_load_dwordx2 s[8:9], s[0:1], {KA["Wd"]}')
    a(f's_load_dwordx2 s[16:17], s[0:1], {KA["ws"]}')
    if OPT['pf']:
        a('s_cmp_lt_u32 s2, 240')
        a('s_cbranch_scc1 K2_NOPF')
        a('v_lshlrev_b32 v1, 7, v0')
        code_prefetch(a, 'k3_kernel', 'CODE_END', 1, 1, 120, 64)
        a.label('K2_NOPF')
    a('v_lshrrev_b32 v1, 6, v0')
    a('v_and_b32 v2, 63, v0')
    a('v_readfirstlane_b32 s22, v1')
    a(f's_sub_u32 s3, s2, {K2_CONV}')
    a('s_lshl_b32 s3, s3, 2')
    a('s_add_u32 s3, s3, s22')
    a('s_cmp_ge_u32 s3, 360')
    a('s_cbranch_scc1 K2_MISC')
    a('v_lshrrev_b32 v7, 4, v2')
    a('v_and_b32 v6, 15, v2')
    a('s_mul_i32 s23, s22, 16896')
    a('v_bfe_u32 v3, v2, 2, 3')
    a('v_mul_u32_u24 v10, 1056, v3')
    a('v_lshrrev_b32 v3, 5, v2')
    a('v_lshl_add_u32 v10, v3, 8, v10')
    a('v_and_b32 v3, 3, v2')
    a('v_lshl_add_u32 v10, v3, 3, v10')
    a('v_add_u32 v10, s23, v10')
    a('v_add_u32 v11, 512, v10')
    a('v_lshlrev_b32 v9, 4, v2')
    a('s_cmp_ge_u32 s3, 240')
    a('s_cbranch_scc1 K2_W2')
    a('s_mul_i32 s24, s3, 0x6667')
    a('s_lshr_b32 s24, s24, 18')
    a('s_mul_i32 s25, s24, 10')
    a('s_sub_u32 s25, s3, s25')
    a('s_lshl_b32 s25, s25, 1')
    a(f'v_mul_u32_u24 v8, {8*3072}, v7')
    a('v_lshl_add_u32 v8, v6, 4, v8')
    a('s_waitcnt lgkmcnt(0)')
    a('s_cmp_ge_u32 s24, 12')
    a('s_cselect_b32 s12, s6, s4')
    a('s_cselect_b32 s13, s7, s5')
    a('s_cselect_b32 s26, 12, 0')
    a('s_cselect_b32 s31, 6144, 0')
    a(f's_mov_b32 s14, {D*F*2}')
    a('s_mov_b32 s15, 0x20000')
    a('s_sub_u32 s26, s24, s26')
    a(f's_mul_i32 s27, s25, {32*3072}')
    a('s_lshl_b32 s28, s26, 8')
    a('s_add_u32 s27, s27, s28')
    srd(a, 36, 16, CP_BYTES, WS_CP)
    a('v_lshlrev_b32 v4, 10, v7')
    a('v_lshl_add_u32 v4, v6, 5, v4')
    a('s_lshl_b32 s28, s24, 12')
    for pp in range(2):
        for hf in range(2):
            a(f'buffer_load_dwordx4 {vr(96+8*pp+4*hf,4)}, v4, s[36:39], s28 offen offset:{512*pp+16*hf}')
    for u in range(2):
        for i in range(8):
            a(f's_add_u32 m0, s23, {8448*u+1056*i}')
            a(f's_add_u32 s28, s27, {(32*u+i)*3072}')
            a('buffer_load_dwordx4 v8, s[12:15], s28 offen lds')
    srd(a, 40, 16, W1F_BYTES, WS_W1F)
    a('s_waitcnt vmcnt(16)')
    for j in range(0, 8, 2): a(f'v_pk_add_f32 {vr(96+j,2)}, {vr(96+j,2)}, {vr(104+j,2)}')
    for sw in ('32', '16'):
        for j in range(8): a(f'v_mov_b32 v{104+j}, v{96+j}')
        for j in range(8): a(f'v_permlane{sw}_swap_b32 v{96+j}, v{104+j}')
        for j in range(0, 8, 2): a(f'v_pk_add_f32 {vr(96+j,2)}, {vr(96+j,2)}, {vr(104+j,2)}')
    for j in range(8): a(f'v_mul_f32 v{96+j}, {f2u(1.0/640)}, v{96+j}')
    a('s_mul_i32 s30, s25, 12288')
    a('s_add_u32 s30, s30, s31')
    a('s_lshl_b32 s26, s26, 3')
    for j in range(8):
        a(f's_add_u32 s28, s26, {j}')
        a('s_mul_i32 s29, s28, 0xaaab')
        a('s_lshr_b32 s29, s29, 18')
        a(f's_mul_i32 s29, s29, {245760-6*1024}')
        a('s_lshl_b32 s28, s28, 10')
        a('s_add_u32 s28, s28, s29')
        a(f's_add_u32 s{44+j}, s28, s30')
    for u in range(2):
        a(f's_waitcnt vmcnt({8 if u == 0 else 8})')
        for j in range(8):
            r = 16 + 32*u + 4*j
            a(f'ds_read_b64_tr_b16 {vr(r,2)}, v10 offset:{8448*u+32*j}')
            a(f'ds_read_b64_tr_b16 {vr(r+2,2)}, v11 offset:{8448*u+32*j}')
        for j in range(8):
            r = 16 + 32*u + 4*j
            a(f's_waitcnt lgkmcnt({14-2*j})')
            for w in range(4):
                t = 80 + 2*w
                a(f'v_lshlrev_b32 v{t}, 16, v{r+w}')
                a(f'v_and_b32 v{t+1}, 0xffff0000, v{r+w}')
            for w in range(4):
                t = 80 + 2*w
                a(f'v_sub_f32 v{t}, v{t}, v{96+j}')
                a(f'v_sub_f32 v{t+1}, v{t+1}, v{96+j}')
            for w in range(4):
                t = 80 + 2*w
                a(f'v_cvt_pk_bf16_f32 v{r+w}, v{t}, v{t+1}')
            a(f'buffer_store_dwordx4 {vr(r,4)}, v9, s[40:43], s{44+j} offen {"sc1" if OPT.get("prepsc1",1) else ""}')
            if u == 0: a(f's_add_u32 s{44+j}, s{44+j}, 12288')
    a.label('K2_CSEND')
    stamp_end(a, 1)
    a.label('K2_END')
    a('s_endpgm')
    a.label('K2_W2')
    a('s_sub_u32 s3, s3, 240')
    a('s_mul_i32 s25, s3, 0xcccd')
    a('s_lshr_b32 s25, s25, 18')
    a('s_mul_i32 s26, s25, 5')
    a('s_sub_u32 s26, s3, s26')
    a(f'v_mul_u32_u24 v8, {8*1280}, v7')
    a('v_lshl_add_u32 v8, v6, 4, v8')
    a(f's_mul_i32 s27, s25, {64*1280}')
    a('s_lshl_b32 s28, s26, 8')
    a('s_add_u32 s27, s27, s28')
    a('s_waitcnt lgkmcnt(0)')
    srd(a, 12, 8, F*D*2)
    for u in range(2):
        for i in range(8):
            a(f's_add_u32 m0, s23, {8448*u+1056*i}')
            a(f's_add_u32 s28, s27, {(32*u+i)*1280}')
            a('buffer_load_dwordx4 v8, s[12:15], s28 offen lds')
    srd(a, 40, 16, W2F_BYTES, WS_W2F)
    a('v_bfe_u32 v3, v2, 2, 2')
    a('v_mul_u32_u24 v12, 1056, v3')
    a('v_lshl_add_u32 v12, v7, 8, v12')
    a('v_and_b32 v3, 3, v2')
    a('v_lshl_add_u32 v12, v3, 3, v12')
    a('v_add_u32 v12, s23, v12')
    a('v_add_u32 v13, 4224, v12')
    a('s_mul_i32 s29, s25, 0x5556')
    a('s_lshr_b32 s29, s29, 16')
    a('s_mul_i32 s29, s29, 3')
    a('s_sub_u32 s29, s25, s29')
    a('s_mul_i32 s30, s25, 10240')
    a('s_lshl_b32 s26, s26, 3')
    for j in range(8):
        a(f's_add_u32 s28, s26, {j}')
        a('s_mul_i32 s31, s28, 0xcccd')
        a('s_lshr_b32 s31, s31, 18')
        a(f's_mul_i32 s31, s31, {245760-5*1024}')
        a('s_lshl_b32 s28, s28, 10')
        a('s_add_u32 s28, s28, s31')
        a(f's_add_u32 s{44+j}, s28, s30')
    for u in range(2):
        a(f's_cmp_eq_u32 s29, {2 if u == 0 else 0}')
        a('s_cselect_b64 s[32:33], -1, 0')
        a('v_cndmask_b32 v14, v10, v12, s[32:33]')
        a('v_cndmask_b32 v15, v11, v13, s[32:33]')
        a('s_waitcnt vmcnt(8)')
        for j in range(8):
            r = 16 + 32*u + 4*j
            a(f'ds_read_b64_tr_b16 {vr(r,2)}, v14 offset:{8448*u+32*j}')
            a(f'ds_read_b64_tr_b16 {vr(r+2,2)}, v15 offset:{8448*u+32*j}')
        for j in range(8):
            r = 16 + 32*u + 4*j
            a(f's_waitcnt lgkmcnt({14-2*j})')
            a(f'buffer_store_dwordx4 {vr(r,4)}, v9, s[40:43], s{44+j} offen {"sc1" if OPT.get("prepsc1",1) else ""}')
            if u == 0: a(f's_add_u32 s{44+j}, s{44+j}, 5120')
    a('s_branch K2_CSEND')
    a.label('K2_MISC')
    a('s_waitcnt lgkmcnt(0)')
    srd(a, 12, 16, 256*128, WS_CNT)
    a('v_lshlrev_b32 v3, 4, v2')
    for r in range(4): a(f'v_mov_b32 v{4+r}, 0')
    a('s_sub_u32 s3, s3, 360')
    a('s_lshl_b32 s3, s3, 11')
    a('buffer_store_dwordx4 v[4:7], v3, s[12:15], s3 offen')
    a('buffer_store_dwordx4 v[4:7], v3, s[12:15], s3 offen offset:1024')
    a('s_branch K2_CSEND')
    return a
```

```python
from common import *
K3_GRID = 256
HIMG = 8*1056
STG = HIMG + 12288
NS = 4
NK = 20
LAG = 3
R0 = 15 * 5120
K3_LDS = 163840
SPIN_MAX = 200000

def gen_k34():
    a = Asm()
    a(f's_cmp_ge_u32 s2, {K3_GRID}')
    a('s_cbranch_scc1 K3_END')
    stamp_init(a)
    t0_mark(a, 2)
    a(f's_load_dwordx2 s[16:17], s[0:1], {KA["ws"]}')
    a(f's_load_dwordx2 s[6:7], s[0:1], {KA["out"]}')
    a('v_lshrrev_b32 v1, 6, v0')
    a('v_and_b32 v2, 63, v0')
    a('v_readfirstlane_b32 s22, v1')
    a('s_and_b32 s3, s2, 7')
    a('s_lshr_b32 s18, s2, 3')
    a('s_lshr_b32 s19, s18, 2')
    a('s_and_b32 s21, s18, 3')
    if OPT.get('map1', 1):
        a('s_lshr_b32 s23, s3, 2')
        a('s_lshl_b32 s23, s23, 3')
        a('s_add_u32 s23, s23, s19')
        a('s_and_b32 s24, s3, 3')
        a('s_lshl_b32 s24, s24, 2')
        a('s_add_u32 s24, s24, s21')
    else:
        a('s_lshr_b32 s23, s3, 1')
        a('s_lshl_b32 s23, s23, 2')
        a('s_add_u32 s23, s23, s21')
        a('s_and_b32 s24, s3, 1')
        a('s_lshl_b32 s24, s24, 3')
        a('s_add_u32 s24, s24, s19')
    M2 = OPT.get('map2', 1)
    if M2:
        a('s_and_b32 s20, s3, 1')
        a('s_lshl_b32 s20, s20, 2')
        a('s_add_u32 s20, s20, s21')
        a('s_lshr_b32 s5, s3, 1')
        a('s_lshl_b32 s5, s5, 3')
        a('s_add_u32 s5, s5, s19')
        a('s_mov_b32 s4, s19')
        a('s_mov_b32 s63, s21')
    else:
        a('s_mov_b32 s20, s19')
        a('s_lshl_b32 s5, s3, 2')
        a('s_add_u32 s5, s5, s21')
        a('s_mov_b32 s4, s21')
        a('s_mov_b32 s63, s19')
    RK = (12 if M2 else 6) * OPT.get('rot2', 0)
    PFL = 60 if M2 else 120
    a('s_cmp_lt_u32 s22, 4')
    a('s_cbranch_scc1 K3_COMP')
    a('s_sub_u32 s22, s22, 4')
    a('v_lshrrev_b32 v7, 4, v2')
    a('v_and_b32 v9, 15, v2')
    a('v_lshlrev_b32 v8, 11, v7')
    a('v_lshl_add_u32 v8, v9, 4, v8')
    a('v_lshlrev_b32 v10, 4, v2')
    a('s_mul_i32 s27, s23, 163840')
    a('s_lshl_b32 s26, s22, 9')
    a('s_add_u32 s27, s27, s26')
    a('s_mul_i32 s28, s24, 245760')
    a('s_mul_i32 s26, s22, 3072')
    a('s_add_u32 s28, s28, s26')
    a('s_mul_i32 s29, s22, 2112')
    a(f's_add_u32 s29, s29, {R0}')
    a(f's_add_u32 s30, s26, {R0+HIMG}')
    a('s_waitcnt lgkmcnt(0)')
    srd(a, 12, 16, 0x280000, WS_HT)
    srd(a, 8, 16, W1F_BYTES, WS_W1F)
    vm = Cnt(a, 'vmcnt', 63)
    def dma(s):
        slot = (s % NS) * STG
        for i in range(2):
            a(f's_add_u32 m0, s29, {slot+1056*i}')
            a(f's_add_u32 s31, s27, {8192*s+256*i}')
            a('buffer_load_dwordx4 v8, s[12:15], s31 offen lds'); vm.issue()
        a(f's_add_u32 m0, s30, {slot}')
        a(f's_add_u32 s31, s28, {12288*s}')
        for i in range(3):
            a(f'buffer_load_dwordx4 v10, s[8:11], s31 offen offset:{1024*i} lds'); vm.issue(('st', s))
    stamp(a, 1)
    for s in range(LAG): dma(s)
    stamp(a, 2)
    srd(a, 44, 16, W2F_BYTES, WS_W2F)
    a('s_mul_i32 s48, s20, 245760')
    a('s_lshl_b32 s49, s22, 10')
    a(f's_mul_i32 s50, s63, {RK*5120}')
    a('s_add_u32 s50, s50, s49')
    def w2(q):
        a(f's_add_u32 m0, s49, {(4096*q) % 163840}')
        a('s_add_u32 s31, s48, s50')
        a('buffer_load_dwordx4 v10, s[44:47], s31 offen lds'); vm.issue(('w2', q))
        a('s_add_u32 s50, s50, 4096')
        a('s_sub_u32 s51, s50, 245760')
        a('s_cselect_b32 s50, s50, s51')
    a('v_bfe_u32 v3, v2, 2, 3')
    a('v_mul_u32_u24 v12, 1056, v3')
    a('v_lshrrev_b32 v3, 5, v2')
    a('v_lshl_add_u32 v12, v3, 8, v12')
    a('v_and_b32 v3, 3, v2')
    a('v_lshl_add_u32 v12, v3, 3, v12')
    a('s_lshl_b32 s26, s22, 6')
    a('v_add_u32 v12, s26, v12')
    a('s_mov_b32 s33, 0x3f803f80')
    srd(a, 36, 16, 20*L*8, WS_SP)
    srd(a, 52, 16, 256*128, WS_CNT)
    a('v_and_b32 v13, 31, v2')
    a('s_lshl_b32 s26, s22, 8')
    a('v_lshl_add_u32 v13, v13, 3, s26')
    a('s_lshl_b32 s26, s4, 2')
    a('s_add_u32 s26, s26, s22')
    a('s_lshl_b32 s26, s26, 7')
    a('s_add_u32 s26, s26, s48')
    a('s_add_u32 s60, s44, s26')
    a('s_addc_u32 s61, s45, 0')
    npf = 0
    issued = LAG
    q = 0
    QA = 18
    for s in range(NK):
        vm.wait(('st', s))
        if s in (0, 7, 14): stamp(a, 3 + s//7)
        a('s_barrier')
        if issued < NK:
            dma(issued); issued += 1
        a(f's_cmp_lg_u32 s24, {s & 15}')
        a(f's_cbranch_scc1 K3_NOST{s}')
        a(f's_mov_b32 s35, {R0 + (s % NS) * STG}')
        a(f's_mov_b32 s34, {s << 14}')
        a('s_getpc_b64 s[42:43]')
        a(f's_branch K3_STATS')
        a.label(f'K3_NOST{s}')
        for _ in range(OPT.get('spf', 0)):
            if npf < PFL: a(f's_load_dword s62, s[60:61], {(245760//PFL)*npf}'); npf += 1
        e0 = OPT.get('w2s0', 12); ne = OPT.get('w2ne', 0)
        lim = {17: q+5, 18: q+5, 19: q+5}.get(s, min(ne, max(0, s - e0 + 1)))
        assert lim <= {17: 23, 18: 28, 19: 33}.get(s, 18)
        while q < lim: w2(q); q += 1
    a('s_barrier')
    xq = OPT.get('xq', 32)
    while q < min(xq, 40): w2(q); q += 1
    assert q >= 20
    vm.wait(('w2', 19))
    a('v_add_u32 v18, s49, v10')
    a('s_barrier')
    while q < 40: w2(q); q += 1
    RG = 32
    while q < 60:
        a('s_add_u32 s31, s48, s50')
        a(f'buffer_load_dwordx4 {vr(RG+4*(q-40),4)}, v10, s[44:47], s31 offen'); vm.issue(('w2', q))
        a('s_add_u32 s50, s50, 4096')
        a('s_sub_u32 s51, s50, 245760')
        a('s_cselect_b32 s50, s50, s51')
        q += 1
    stamp(a, 6)
    a('v_add_u32 v19, 0xa000, v18')
    a('s_barrier')
    for qq in range(40, 50):
        vm.wait(('w2', qq))
        a(f'ds_write_b128 v18, {vr(RG+4*(qq-40),4)} offset:{4096*(qq-40)}')
    a('s_barrier')
    for qq in range(50, 60):
        vm.wait(('w2', qq))
        a(f'ds_write_b128 v19, {vr(RG+4*(qq-40),4)} offset:{4096*(qq-50)}')
    a('s_waitcnt lgkmcnt(0)')
    a('s_barrier')
    stamp_end(a, 2)
    a('s_endpgm')
    a.label('K3_STATS')
    a('v_add_u32 v14, s35, v12')
    for T in range(2):
        for hh in range(2):
            a(f'ds_read_b64_tr_b16 {vr(20+4*T+2*hh,2)}, v14 offset:{hh*512+T*32}')
    for r in range(16, 20): a(f'v_mov_b32 v{r}, 0')
    a('s_waitcnt lgkmcnt(0)')
    for j in range(4):
        for T in range(2):
            r = 20 + 4*T + j
            a(f'v_dot2_f32_bf16 v{16+2*T}, v{r}, s33, v{16+2*T}')
            a(f'v_dot2_f32_bf16 v{17+2*T}, v{r}, v{r}, v{17+2*T}')
    a('v_permlane16_swap_b32 v16, v18')
    a('v_permlane16_swap_b32 v17, v19')
    a('v_add_f32 v16, v16, v18')
    a('v_add_f32 v17, v17, v19')
    a('v_mov_b32 v18, v16')
    a('v_mov_b32 v19, v17')
    a('v_permlane32_swap_b32 v16, v18')
    a('v_permlane32_swap_b32 v17, v19')
    a('v_add_f32 v16, v16, v18')
    a('v_add_f32 v17, v17, v19')
    a('s_lshl_b32 s35, s23, 10')
    a('s_add_u32 s26, s34, s35')
    a('s_mov_b32 exec_hi, 0')
    a('buffer_store_dwordx2 v[16:17], v13, s[36:39], s26 offen sc1')
    a('s_mov_b32 exec_hi, -1')
    a('s_add_u32 s42, s42, 4')
    a('s_addc_u32 s43, s43, 0')
    a('s_setpc_b64 s[42:43]')

    a.label('K3_COMP')
    a('s_and_b32 s25, s22, 1')
    a('s_lshr_b32 s26, s22, 1')
    HA = 4; WA = 6
    a('v_bfe_u32 v3, v2, 2, 3')
    a('v_mul_u32_u24 v4, 1056, v3')
    a('v_lshrrev_b32 v3, 5, v2')
    a('v_lshl_add_u32 v4, v3, 8, v4')
    a('v_and_b32 v3, 3, v2')
    a('v_lshl_add_u32 v4, v3, 3, v4')
    a('s_lshl_b32 s29, s25, 7')
    a(f's_add_u32 s29, s29, {R0}')
    a('v_add_u32 v4, s29, v4')
    a(f'v_add_u32 v5, {2*STG}, v4')
    a('s_mul_i32 s29, s26, 3072')
    a(f's_add_u32 s29, s29, {R0+HIMG}')
    a('v_lshl_add_u32 v6, v2, 4, s29')
    a(f'v_add_u32 v7, {2*STG}, v6')
    a('v_lshlrev_b32 v8, 4, v2')
    a('v_bfe_u32 v3, v2, 4, 1')
    a('v_mul_u32_u24 v9, 49152, v3')
    a('v_lshrrev_b32 v3, 5, v2')
    a('v_lshl_add_u32 v9, v3, 8, v9')
    a('v_and_b32 v3, 15, v2')
    a('v_lshl_add_u32 v9, v3, 4, v9')
    a('s_waitcnt lgkmcnt(0)')
    srd(a, 12, 16, L*F*2, WS_HID)
    srd(a, 52, 16, 256*128, WS_CNT)
    ACC = 16
    FB = 112
    lg = Cnt(a, 'lgkmcnt', 15)
    def reads(s):
        sl = s % NS; st = sl // 2; off = (sl % 2) * STG
        fb = FB + 40 * (s % 2)
        l = []
        def W(w):
            fr = (w % 3) + 6 * (w // 3)
            def f():
                a(f'ds_read_b128 {vr(fb+4*w,4)}, v{WA+st} offset:{off + fr*1024}'); lg.issue((s, 'W', w))
            l.append(f)
        def H(tt):
            for hh in range(2):
                def f(hh=hh):
                    a(f'ds_read_b64_tr_b16 {vr(fb+24+4*tt+2*hh,2)}, v{HA+st} offset:{off + hh*512 + tt*32}'); lg.issue((s, 'H', tt))
                l.append(f)
        H(0); W(0); W(1); W(2); W(3); W(4); W(5); H(1); H(2); H(3)
        return l
    order = [(tt, w if tt % 2 == 0 else 5 - w) for tt in range(4) for w in range(6)]
    stamp(a, 1)
    a('s_barrier')
    stamp(a, 2)
    for f in reads(0): f()
    if OPT.get('vpf', 0):
        srd(a, 44, 16, W2F_BYTES, WS_W2F)
        a('s_lshl_b32 s27, s19, 2')
        a('s_add_u32 s27, s27, s22')
        a('s_mul_i32 s27, s27, 7680')
        a('s_mul_i32 s28, s20, 245760')
        a('s_add_u32 s27, s27, s28')
        a('v_lshlrev_b32 v3, 7, v2')
        a('buffer_load_dword v15, v3, s[44:47], s27 offen')
    BARPOS = OPT.get('barpos', 6)
    for s in range(NK):
        fb = FB + 40 * (s % 2)
        last = s + 1 == NK
        nxt = reads(s+1) if not last else []
        if s == 10: stamp(a, 3)
        for k, (tt, w) in enumerate(order):
            lg.wait((s, 'W', w)); lg.wait((s, 'H', tt))
            acc = ACC + 4*(6*tt+w)
            if k == BARPOS:
                lg.wait_all()
            a(f'v_mfma_f32_16x16x32_bf16 {vr(acc,4)}, {vr(fb+4*w,4)}, {vr(fb+24+4*tt,4)}, {"0" if s == 0 else vr(acc,4)}')
            if k == BARPOS: a('s_barrier')
            if k >= BARPOS and nxt: nxt.pop(0)()
        assert not nxt
    stamp(a, 4)
    a('s_lshl_b32 s27, s23, 1')
    a('s_add_u32 s30, s27, s25')
    a(f's_mul_i32 s27, s30, {4*49152}')
    a('s_mul_i32 s28, s24, 3072')
    a('s_add_u32 s27, s27, s28')
    a('s_lshl_b32 s28, s26, 11')
    a('s_lshl_b32 s29, s26, 9')
    a('s_add_u32 s29, s29, 1024')
    a('s_add_u32 s28, s28, s27')
    a('s_add_u32 s29, s29, s27')
    a('s_cmp_eq_u32 s26, 0')
    a('s_cbranch_scc1 K3_EPI0')
    HST = ['sc1', '', 'sc0 sc1', 'nt'][OPT.get('x_hst', 0)]
    SG = FB
    for fh in (1, 0):
        if fh == 0: a.label('K3_EPI0')
        pair = (0, 1) if fh == 0 else (1, 2)
        single = 2 if fh == 0 else 0
        for tt in range(4):
            b = ACC + 24*tt
            for p in range(12): a(f'v_max_f32 v{b+p}, 0, v{b+p}')
            for p in range(6): a(f'v_pk_mul_f32 {vr(b+2*p,2)}, {vr(b+2*p,2)}, {vr(b+12+2*p,2)}')
            o = b + 12
            sg_ = SG + 4*(tt >> 1) + 2*(tt & 1)
            a(f'v_cvt_pk_bf16_f32 v{sg_}, v{b+4*single}, v{b+4*single+1}')
            a(f'v_cvt_pk_bf16_f32 v{sg_+1}, v{b+4*single+2}, v{b+4*single+3}')
            for q_, j in enumerate(pair):
                a(f'v_cvt_pk_bf16_f32 v{o+2*q_}, v{b+4*j}, v{b+4*j+1}')
                a(f'v_cvt_pk_bf16_f32 v{o+2*q_+1}, v{b+4*j+2}, v{b+4*j+3}')
            if not OPT.get('x_nost'): a(f'buffer_store_dwordx4 {vr(o,4)}, v8, s[12:15], s28 offen {HST}')
            a('s_add_u32 s28, s28, 49152')
            if tt & 1:
                g4 = SG + 4*(tt >> 1)
                a(f'v_permlane16_swap_b32 v{g4}, v{g4+2}')
                a(f'v_permlane16_swap_b32 v{g4+1}, v{g4+3}')
                if not OPT.get('x_nost'): a(f'buffer_store_dwordx4 {vr(g4,4)}, v9, s[12:15], s29 offen {HST}')
                a(f's_add_u32 s29, s29, {2*49152}')
        if fh == 1: a('s_branch K3_EPID')
    a.label('K3_EPID')
    a('s_mov_b32 s31, s5')
    a('s_lshl_b32 s32, s31, 2')
    a('s_lshl_b32 s27, s25, 1')
    a('s_add_u32 s32, s32, s27')
    a('s_add_u32 s32, s32, s26')
    a('s_xor_b32 s27, s32, 1')
    a('s_mul_i32 s33, s32, 49152')
    a('s_mul_i32 s58, s27, 49152')
    a('s_mul_i32 s27, s26, 5120')
    a('v_add_u32 v14, s27, v8')
    a('v_add_u32 v4, 0x10000, v14')
    a('v_add_u32 v5, 0x20000, v14')
    a('v_lshrrev_b32 v3, 4, v2')
    a('v_and_b32 v12, 15, v2')
    a('v_lshlrev_b32 v6, 10, v3')
    a('v_lshl_add_u32 v6, v12, 1, v6')
    a('v_mul_u32_u24 v7, 1280, v12')
    a('v_lshl_add_u32 v7, v3, 3, v7')
    a('v_mul_u32_u24 v9, 81920, v3')
    a('v_lshl_add_u32 v9, v12, 3, v9')
    srd(a, 36, 16, 0x280000, WS_HT)
    srd(a, 40, 16, 20*L*8, WS_SP)
    srd(a, 44, 6, L*D*2)
    a('v_mov_b32 v10, 1')
    a('v_lshlrev_b32 v13, 7, v2')
    a('s_lshl_b32 s30, s23, 11')
    a('s_lshl_b32 s27, s24, 2')
    a('s_add_u32 s30, s30, s27')
    a('s_lshl_b32 s34, s31, 3')
    a('s_add_u32 s34, s34, s20')
    a('s_lshl_b32 s34, s34, 7')
    a('v_lshlrev_b32 v11, 2, v2')
    a(f's_mul_i32 s56, s63, {RK*1024}')
    a('s_lshl_b32 s27, s26, 10')
    a('s_add_u32 s56, s56, s27')
    AC2 = 16; HR = 56; SPR = 76; WB = 88; NWB = 2; HB = 128; NHB = 8
    a('s_waitcnt vmcnt(0)')
    stamp(a, 5)
    a('s_barrier')
    a('s_cmp_lg_u32 s22, 0')
    a('s_cbranch_scc1 K3_NOSIG')
    a('s_mov_b64 exec, 0xffff')
    a('buffer_store_dword v10, v13, s[52:55], s30 offen sc1')
    a('s_mov_b64 exec, -1')
    a.label('K3_NOSIG')
    vm = Cnt(a, 'vmcnt', 63); lg = Cnt(a, 'lgkmcnt', 15)
    HD = OPT.get('hd', 6)
    def hload(n):
        a('s_add_u32 s57, s33, s56')
        a('s_add_u32 s59, s58, s56')
        fl = "sc1" if OPT.get("hsc1",1) else ""
        a(f'buffer_load_dwordx4 {vr(HB+8*(n%NHB),4)}, v8, s[12:15], s57 offen {fl}'); vm.issue()
        a(f'buffer_load_dwordx4 {vr(HB+8*(n%NHB)+4,4)}, v8, s[12:15], s59 offen {fl}'); vm.issue(('h', n))
        a('s_add_u32 s56, s56, 2048')
        a('s_sub_u32 s57, s56, 49152')
        a('s_cselect_b32 s56, s56, s57')
    def wreads(n):
        pos = ((2*n) % 32) * 5120
        l = []
        for tau in range(5):
            off = pos + tau*1024
            base = (14, 4, 5)[off >> 16]
            def f(tau=tau, off=off, base=base):
                a(f'ds_read_b128 {vr(WB+20*(n%NWB)+4*tau,4)}, v{base} offset:{off & 0xffff}'); lg.issue((n, tau))
            l.append(f)
        return l
    def resid():
        a('s_lshr_b32 s27, s32, 3')
        a('s_mul_i32 s27, s27, 163840')
        a('s_mul_i32 s28, s20, 20480')
        a('s_add_u32 s27, s27, s28')
        a('s_and_b32 s28, s32, 7')
        a('s_lshl_b32 s28, s28, 5')
        a('s_add_u32 s27, s27, s28')
        l = []
        for tau in range(5):
            for r in range(4):
                def f(tau=tau, r=r):
                    a(f'buffer_load_short_d16_hi v{HR+4*tau+r}, v6, s[36:39], s27 offen offset:{r*256}'); vm.issue('res')
                    if r == 3: a('s_add_u32 s27, s27, 4096')
                l.append(f)
        return l
    for f in wreads(0): f()
    for r in range(20): a(f'v_mov_b32 v{HR+r}, 0')
    for f in resid(): f()
    a('s_mov_b64 exec, 0xffff')
    a('s_mov_b32 s35, 0')
    a.label('K3_POLL')
    a(f's_sleep {OPT.get("sleep", 8)}')
    a('buffer_load_dword v12, v11, s[52:55], s34 offen sc1')
    a('s_add_u32 s35, s35, 1')
    a(f's_cmp_ge_u32 s35, {SPIN_MAX}')
    a('s_cbranch_scc1 K3_POLLD')
    a('s_waitcnt vmcnt(0)')
    a('v_cmp_ne_u32 vcc, 1, v12')
    if not OPT.get('x_nopoll'): a('s_cbranch_vccnz K3_POLL')
    a.label('K3_POLLD')
    a('s_mov_b64 exec, -1')
    stamp(a, 6)
    for n in range(HD): hload(n)
    extra = []
    NI = 24
    for n in range(NI):
        nx = n + 1
        nxt = wreads(nx) if nx < NI else []
        vm.wait(('h', n))
        if OPT.get('x_st') and n in (4, 12, 20): stamp(a, {4:1, 12:2, 20:3}[n])
        for k in range(10):
            tau, tl = k >> 1, (k & 1) ^ ((k >> 1) & 1)
            lg.wait((n, tau))
            acc = AC2 + 20*tl + 4*tau
            if k == 0 and nx in (4, 8): lg.wait_all()
            a(f'v_mfma_f32_16x16x32_bf16 {vr(acc,4)}, {vr(WB+20*(n%NWB)+4*tau,4)}, {vr(HB+8*(n%NHB)+4*tl,4)}, {"0" if n == 0 else vr(acc,4)}')
            if k == 0 and nx in (4, 8, 16): a('s_barrier')
            if k < 5 and nxt: nxt.pop(0)()
            if k == 5 and n + HD < NI:
                if OPT.get('x_nohl'): vm.tags[('h', n + HD)] = 0
                else: hload(n + HD)
            if k >= 6 and extra: extra.pop(0)()
        if n == 2:
            a('s_lshl_b32 s29, s32, 7')
            for i in range(5):
                a(f'buffer_load_dwordx2 {vr(SPR+2*i,2)}, v9, s[40:43], s29 offen sc1'); vm.issue('sp')
                a('s_add_u32 s29, s29, 16384')
        if n == 12:
            vm.wait('sp')
            r = Rec()
            for i in (1, 2, 3, 4):
                r(f'v_pk_add_f32 {vr(SPR,2)}, {vr(SPR,2)}, {vr(SPR+2*i,2)}')
            for sw in ('32', '16'):
                r(f'v_mov_b32 v{SPR+2}, v{SPR}')
                r(f'v_mov_b32 v{SPR+3}, v{SPR+1}')
                r(f'v_permlane{sw}_swap_b32 v{SPR}, v{SPR+2}')
                r(f'v_permlane{sw}_swap_b32 v{SPR+1}, v{SPR+3}')
                r(f'v_pk_add_f32 {vr(SPR,2)}, {vr(SPR,2)}, {vr(SPR+2,2)}')
            r(f'v_mul_f32 v{SPR}, {f2u(1.0/640)}, v{SPR}')
            r(f'v_mul_f32 v13, {f2u(1.0/640)}, v{SPR+1}')
            r(f'v_fma_f32 v13, -v{SPR}, v{SPR}, v13')
            r('v_max_f32 v13, 0, v13')
            round_bf16(r, 13, 13)
            r(f'v_add_f32 v13, {f2u(1e-5)}, v13')
            round_bf16(r, 13, 13)
            r('v_sqrt_f32 v13, v13')
            round_bf16(r, 13, 13)
            r('v_rcp_f32 v13, v13')
            r('v_mul_f32 v13, v13, v13')
            extra = [(lambda t=t: a(t)) for t in r.l]
    for f in extra: f()
    a('s_mul_i32 s27, s22, 5120')
    a('s_add_u32 s27, s27, 81920')
    a('v_add_u32 v4, s27, v8')
    a('s_xor_b32 s28, s22, 2')
    a('s_mul_i32 s28, s28, 5120')
    a('s_add_u32 s28, s28, 81920')
    a('v_add_u32 v5, s28, v8')
    for tau in range(5):
        a(f'ds_write_b128 v4, {vr(AC2+20+4*tau,4)} offset:{1024*tau}')
    a('s_waitcnt lgkmcnt(0)')
    a('s_barrier')
    for tau in range(5):
        a(f'ds_read_b128 {vr(WB+4*tau,4)}, v5 offset:{1024*tau}')
    a(f's_mul_i32 s27, s32, {16*1280}')
    a('s_mul_i32 s28, s20, 160')
    a('s_add_u32 s27, s27, s28')
    for tau in range(5):
        a(f's_waitcnt lgkmcnt({4-tau})')
        for r in range(0, 4, 2):
            a(f'v_pk_add_f32 {vr(AC2+4*tau+r,2)}, {vr(AC2+4*tau+r,2)}, {vr(WB+4*tau+r,2)}')
        for r in range(4):
            a(f'v_fma_f32 v{AC2+4*tau+r}, v{AC2+4*tau+r}, v13, v{HR+4*tau+r}')
        a(f'v_cvt_pk_bf16_f32 v{HR+4*tau}, v{AC2+4*tau}, v{AC2+4*tau+1}')
        a(f'v_cvt_pk_bf16_f32 v{HR+4*tau+1}, v{AC2+4*tau+2}, v{AC2+4*tau+3}')
        a(f'buffer_store_dwordx2 {vr(HR+4*tau,2)}, v7, s[44:47], s27 offen offset:{32*tau}')
    stamp_end(a, 2)
    a.label('K3_END')
    a('s_endpgm')
    return a
```

```python
from asmlib import *
L, D, N, F = 2048, 640, 192, 1536
OPT = dict(pf=1, rot3=0, rot4=0)
KA = dict(x=0, Are=8, Aim=16, Bre=24, Bim=32, Cre=40, Cim=48, logdt=56, dskip=64, bx=72, Wg=80, Wu=88, Wd=96, out=104, dbg=112, ws=120)
WS_UP = 0x000000
WS_XT = 0x280000
WS_KW = 0x500000
WS_HT = 0x780000
WS_HID = 0xA00000
WS_CS = 0x1000000
WS_END = 0x1100000
def f2u(x):
    import struct
    return '0x%08x' % struct.unpack('<I', struct.pack('<f', x))[0]
def srd(a, s, base_s, nbytes, off=0):
    if off:
        a(f's_add_u32 s{s}, s{base_s}, {hex(off)}')
        a(f's_addc_u32 s{s+1}, s{base_s+1}, 0')
    else:
        a(f's_mov_b32 s{s}, s{base_s}')
        a(f's_mov_b32 s{s+1}, s{base_s+1}')
    a(f's_mov_b32 s{s+2}, {hex(nbytes)}')
    a(f's_mov_b32 s{s+3}, 0x20000')
def cmul(a, r, x, y):
    a(f'v_pk_mul_f32 {vr(r,2)}, {vr(x,2)}, {vr(y,2)} op_sel:[0,0] op_sel_hi:[0,1]')
    a(f'v_pk_fma_f32 {vr(r,2)}, {vr(x,2)}, {vr(y,2)}, {vr(r,2)} op_sel:[1,1,0] op_sel_hi:[1,0,1] neg_lo:[0,1,0]')
def interleave(*seqs):
    out = []
    seqs = [list(s) for s in seqs]
    while any(seqs):
        for s in seqs:
            if s: out.append(s.pop(0))
    return out
class Rec:
    def __init__(self): self.l = []
    def __call__(self, t):
        for line in t.split('\n'):
            if line.strip(): self.l.append(line.strip())

class Cnt:
    def __init__(self, a, name, maxv):
        self.a, self.name, self.maxv = a, name, maxv
        self.n = 0
        self.done = 0
        self.tags = {}
    def issue(self, tag=None):
        self.n += 1
        if tag is not None: self.tags[tag] = self.n
    def wait(self, tag):
        k = self.tags[tag]
        if k <= self.done: return
        out = min(self.n - k, self.maxv)
        self.a(f's_waitcnt {self.name}({out})')
        self.done = self.n - out
    def wait_all(self):
        if self.done < self.n:
            self.a(f's_waitcnt {self.name}(0)'); self.done = self.n
WS_R2 = 0x1010000
def round_bf16(a, d, s):
    a(f'v_cvt_pk_bf16_f32 v{d}, v{s}, v{s}')
    a(f'v_and_b32 v{d}, 0xffff0000, v{d}')

WS_STAMP = 0x2000000
STAMP_ON = [False]
STAMP_OP = ['s_memrealtime']
def stamp(a, i):
    if STAMP_ON[0]:
        a(f'{STAMP_OP[0]} s[{80+2*i}:{81+2*i}]')
def stamp_init(a):
    if STAMP_ON[0]:
        for i in range(8): a(f's_mov_b32 s{80+2*i}, 0')
        a('s_mov_b32 s98, s2')
        a('v_lshrrev_b32 v1, 6, v0')
        a('v_readfirstlane_b32 s99, v1')
        stamp(a, 0)
def stamp_end(a, kidx):
    if not STAMP_ON[0]: return
    stamp(a, 7)
    if STAMP_ON[0] == 'dbg':
        sel = DBG_SEL[kidx]
        import random
        lab = f'DBGSKIP_{kidx}_{len(a.ins)}'
        a(f's_load_dwordx2 s[60:61], s[0:1], {KA["dbg"]}')
        a('s_waitcnt lgkmcnt(0)')
        a(f's_add_u32 s64, s60, {512*(DBG_LAST[0]-kidx)}')
        a('s_addc_u32 s65, s61, 0')
        a('s_mov_b32 s66, 256')
        a('s_mov_b32 s67, 0x20000')
        a('s_and_b32 s62, s98, 15')
        a('s_or_b32 s62, s62, s99')
        a('s_cmp_lg_u32 s62, 0')
        a(f's_cbranch_scc1 {lab}')
        a('s_mov_b64 exec, 1')
        a('v_mov_b32 v0, 0')
        a('s_not_b32 s80, s80')
        for j, i in enumerate(sel):
            a(f'v_mov_b32 v{2+j}, s{80+2*i}')
            a(f'buffer_atomic_umax v{2+j}, v0, s[64:67], 0 offen offset:{16*kidx+4*j}')
        a.label(lab)
        return
    a(f's_load_dwordx2 s[60:61], s[0:1], {KA["ws"]}')
    a('s_waitcnt lgkmcnt(0)')
    srd(a, 64, 60, 0x100000, WS_STAMP + kidx*0x100000)
    a('s_lshl_b32 s62, s98, 4')
    a('s_add_u32 s62, s62, s99')
    a('s_lshl_b32 s62, s62, 5')
    a('s_mov_b64 exec, 1')
    for i in range(8): a(f'v_mov_b32 v{2+i}, s{80+2*i}')
    a('v_mov_b32 v0, 0')
    a('buffer_store_dwordx4 v[2:5], v0, s[64:67], s62 offen')
    a('buffer_store_dwordx4 v[6:9], v0, s[64:67], s62 offen offset:16')

DBG_SEL = {0: (0, 3, 4, 7), 1: (0, 4, 5, 7), 2: (0, 2, 5, 7), 3: (0, 3, 6, 7)}
DBG_LAST = [3]

WS_W1F = 0x1200000
WS_W2F = 0x1600000
WS_SP  = 0x1020000
WS_CNT = 0x1100000
W1F_BYTES = 16*20*12*1024
W2F_BYTES = 8*48*5*1024

def prep_unit(a, pfx, su, sW, sws, v0lane, vb, sb, end_label):
    R = vb; O = vb + 32; va = vb + 64
    S0, S1 = sb, sb + 4
    t = sb + 8
    a(f'v_and_b32 v{va}, 15, v{v0lane}')
    a(f'v_lshrrev_b32 v{va+1}, 4, v{v0lane}')
    a(f's_mov_b32 s{t+8}, 0x05040100')
    a(f's_mov_b32 s{t+9}, 0x07060302')
    a(f's_cmp_ge_u32 s{su}, 480')
    a(f's_cbranch_scc1 {pfx}_W2')
    a(f's_cmp_ge_u32 s{su}, 240')
    a(f's_cselect_b32 s{S0}, s{sW+2}, s{sW}')
    a(f's_cselect_b32 s{S0+1}, s{sW+3}, s{sW+1}')
    a(f's_cselect_b32 s{t}, 240, 0')
    a(f's_cselect_b32 s{t+4}, 6144, 0')
    a(f's_mov_b32 s{S0+2}, {D*F*2}')
    a(f's_mov_b32 s{S0+3}, 0x20000')
    a(f's_sub_u32 s{t}, s{su}, s{t}')
    a(f's_mul_i32 s{t+1}, s{t}, 0x5556')
    a(f's_lshr_b32 s{t+1}, s{t+1}, 18')
    a(f's_mul_i32 s{t+2}, s{t+1}, 12')
    a(f's_sub_u32 s{t+2}, s{t}, s{t+2}')
    a(f'v_mul_u32_u24 v{va+2}, {4*3072}, v{va+1}')
    a(f'v_lshl_add_u32 v{va+2}, v{va}, 4, v{va+2}')
    a(f's_mul_i32 s{t+3}, s{t+1}, {32*3072}')
    a(f's_lshl_b32 s{t+5}, s{t+2}, 8')
    a(f's_add_u32 s{t+3}, s{t+3}, s{t+5}')
    for jj in range(8):
        hh, r = jj >> 2, jj & 3
        a(f's_add_u32 s{t+5}, s{t+3}, {(16*hh+r)*3072}')
        a(f'buffer_load_dwordx4 {vr(R+4*jj,4)}, v{va+2}, {sr(S0,4)}, s{t+5} offen')
    srd(a, S1, sws, W1F_BYTES, WS_W1F)
    a(f'v_lshlrev_b32 v{va+3}, 4, v{v0lane}')
    a(f's_mul_i32 s{t+3}, s{t+1}, 12288')
    a(f's_add_u32 s{t+3}, s{t+3}, s{t+4}')
    a(f's_lshl_b32 s{t+2}, s{t+2}, 3')
    a('s_waitcnt vmcnt(0)')
    for j in range(8):
        for q in range(4):
            a(f'v_perm_b32 v{O+4*j+q}, v{R+4*(2*q+1)+(j>>1)}, v{R+4*(2*q)+(j>>1)}, s{t+8+(j&1)}')
        a(f's_add_u32 s{t+5}, s{t+2}, {j}')
        a(f's_mul_i32 s{t+6}, s{t+5}, 0xaaab')
        a(f's_lshr_b32 s{t+6}, s{t+6}, 18')
        a(f's_mul_i32 s{t+7}, s{t+6}, {245760-6*1024}')
        a(f's_lshl_b32 s{t+5}, s{t+5}, 10')
        a(f's_add_u32 s{t+5}, s{t+5}, s{t+7}')
        a(f's_add_u32 s{t+5}, s{t+5}, s{t+3}')
        a(f'buffer_store_dwordx4 {vr(O+4*j,4)}, v{va+3}, {sr(S1,4)}, s{t+5} offen')
    a(f's_branch {end_label}')
    a.label(f'{pfx}_W2')
    srd(a, S0, sW+4, F*D*2)
    a(f's_sub_u32 s{t}, s{su}, 480')
    a(f's_mul_i32 s{t+1}, s{t}, 0xcccd')
    a(f's_lshr_b32 s{t+1}, s{t+1}, 18')
    a(f's_mul_i32 s{t+2}, s{t+1}, 5')
    a(f's_sub_u32 s{t+2}, s{t}, s{t+2}')
    a(f'v_mul_u32_u24 v{va+2}, {32*1280}, v{va+1}')
    a(f'v_lshl_add_u32 v{va+2}, v{va}, 4, v{va+2}')
    a(f's_lshr_b32 s{t+3}, s{t+1}, 2')
    a(f's_lshl_b32 s{t+3}, s{t+3}, 7')
    a(f's_and_b32 s{t+5}, s{t+1}, 3')
    a(f's_lshl_b32 s{t+5}, s{t+5}, 1')
    a(f's_add_u32 s{t+3}, s{t+3}, s{t+5}')
    a(f's_mul_i32 s{t+3}, s{t+3}, 1280')
    a(f's_lshl_b32 s{t+5}, s{t+2}, 8')
    a(f's_add_u32 s{t+3}, s{t+3}, s{t+5}')
    for jj in range(8):
        hh, r = jj >> 2, jj & 3
        a(f's_add_u32 s{t+5}, s{t+3}, {(8*r+hh)*1280}')
        a(f'buffer_load_dwordx4 {vr(R+4*jj,4)}, v{va+2}, {sr(S0,4)}, s{t+5} offen')
    srd(a, S1, sws, W2F_BYTES, WS_W2F)
    a(f's_lshl_b32 s{t+5}, s{t+2}, 3')
    a(f'v_lshrrev_b32 v{va+3}, 1, v{va}')
    a(f'v_add_u32 v{va+3}, s{t+5}, v{va+3}')
    a(f'v_mul_u32_u24 v{va+4}, 0xcccd, v{va+3}')
    a(f'v_lshrrev_b32 v{va+4}, 18, v{va+4}')
    a(f'v_mul_u32_u24 v{va+4}, {245760-5*1024}, v{va+4}')
    a(f'v_lshl_add_u32 v{va+3}, v{va+3}, 10, v{va+4}')
    a(f'v_lshl_add_u32 v{va+3}, v{va+1}, 8, v{va+3}')
    a(f'v_and_b32 v{va+4}, 1, v{va}')
    a(f'v_lshl_add_u32 v{va+3}, v{va+4}, 7, v{va+3}')
    a(f's_mul_i32 s{t+3}, s{t+1}, 5120')
    a('s_waitcnt vmcnt(0)')
    for j in range(8):
        for q in range(4):
            a(f'v_perm_b32 v{O+4*j+q}, v{R+4*(2*q+1)+(j>>1)}, v{R+4*(2*q)+(j>>1)}, s{t+8+(j&1)}')
        a(f'buffer_store_dwordx4 {vr(O+4*j,4)}, v{va+3}, {sr(S1,4)}, s{t+3} offen offset:{16*j}')
    a(f's_branch {end_label}')

_pf_id = [0]
def code_prefetch(a, start_label, end_label, ninstr, vlane128, vdst, sp):
    _pf_id[0] += 1
    h = f'PFH{_pf_id[0]}'
    a(f's_getpc_b64 s[{sp}:{sp+1}]')
    a.label(h)
    if start_label:
        a(f's_add_u32 s{sp}, s{sp}, {start_label}-{h}')
        a(f's_addc_u32 s{sp+1}, s{sp+1}, 0')
    a(f's_mov_b32 s{sp+2}, {end_label}-{start_label or h}')
    a(f's_mov_b32 s{sp+3}, 0x20000')
    for i in range(ninstr):
        if i == 0:
            a(f'buffer_load_dword v{vdst}, v{vlane128}, s[{sp}:{sp+3}], 0 offen')
        else:
            a(f's_mov_b32 s{sp+4}, {8192*i}')
            a(f'buffer_load_dword v{vdst}, v{vlane128}, s[{sp}:{sp+3}], s{sp+4} offen')

WS_T0 = 0x1090000
def t0_mark(a, kidx):
    if not OPT.get('spin'): return
    lab = f'T0SKIP{kidx}'
    a('s_memrealtime s[70:71]')
    a(f's_load_dwordx2 s[72:73], s[0:1], {KA["ws"]}')
    a('s_cmp_lg_u32 s2, 0')
    a(f's_cbranch_scc1 {lab}')
    a('s_waitcnt lgkmcnt(0)')
    srd(a, 76, 72, 256, WS_T0)
    a('v_mov_b32 v1, s70')
    a('v_mov_b32 v2, 0')
    a(f'buffer_store_dword v1, v2, s[76:79], 0 offen offset:{4*kidx}')
    a.label(lab)
    a('s_waitcnt lgkmcnt(0)')
def gen_spin(j):
    a = Asm()
    a('s_cmp_lg_u32 s2, 0')
    a('s_cbranch_scc1 SP_END')
    a(f's_load_dwordx2 s[4:5], s[0:1], {KA["ws"]}')
    a('s_waitcnt lgkmcnt(0)')
    a(f's_add_u32 s4, s4, {WS_T0}')
    a('s_addc_u32 s5, s5, 0')
    a(f's_load_dword s8, s[4:5], {4*(j-1)}')
    a('s_mov_b32 s9, 0')
    a.label('SP_LOOP')
    a('s_memrealtime s[10:11]')
    a('s_waitcnt lgkmcnt(0)')
    a('s_sub_u32 s12, s10, s8')
    a('s_add_u32 s9, s9, 1')
    a('s_cmp_ge_u32 s9, 20000')
    a('s_cbranch_scc1 SP_END')
    a(f's_cmp_lt_u32 s12, {OPT.get("spinlen", 10000)}')
    a('s_cbranch_scc1 SP_LOOP')
    a.label('SP_END')
    a('s_endpgm')
    a('v_mov_b32 v0, 0')
    a('s_endpgm')
    return a

WS_CP = 0x10A0000
CP_BYTES = 24*8*16*8*4

def colsum_unit(a, pfx, su, sW, sws, vlane, vb, sb, end_label):
    R = vb; S = vb + 40; va = vb + 48
    S0, S1 = sb, sb + 4
    t = sb + 8
    a(f's_cmp_ge_u32 s{su}, 384')
    a(f's_cbranch_scc1 {pfx}_T')
    a(f's_and_b32 s{t}, s{su}, 7')
    a(f's_lshr_b32 s{t+1}, s{su}, 3')
    a(f's_cmp_ge_u32 s{t+1}, 24')
    a(f's_cselect_b32 s{S0}, s{sW+2}, s{sW}')
    a(f's_cselect_b32 s{S0+1}, s{sW+3}, s{sW+1}')
    a(f's_cselect_b32 s{t+2}, 24, 0')
    a(f's_mov_b32 s{S0+2}, {D*F*2}')
    a(f's_mov_b32 s{S0+3}, 0x20000')
    a(f's_sub_u32 s{t+2}, s{t+1}, s{t+2}')
    a(f's_lshl_b32 s{t+2}, s{t+2}, 7')
    a(f's_mul_i32 s{t+3}, s{t}, {80*3072}')
    a(f's_add_u32 s{t+3}, s{t+3}, s{t+2}')
    a(f'v_and_b32 v{va}, 7, v{vlane}')
    a(f'v_lshrrev_b32 v{va+1}, 3, v{vlane}')
    a(f'v_mul_u32_u24 v{va+2}, 3072, v{va+1}')
    a(f'v_lshl_add_u32 v{va+2}, v{va}, 4, v{va+2}')
    for i in range(10):
        a(f'buffer_load_dwordx4 {vr(R+4*i,4)}, v{va+2}, {sr(S0,4)}, s{t+3} offen')
        a(f's_add_u32 s{t+3}, s{t+3}, {8*3072}')
    srd(a, S1, sws, CP_BYTES, WS_CP)
    a(f's_mov_b32 s{t+4}, 0x00003f80')
    a(f's_mov_b32 s{t+5}, 0x3f800000')
    for j in range(8): a(f'v_mov_b32 v{S+j}, 0')
    a(f'v_and_b32 v{va+3}, 1, v{va}')
    a(f'v_lshl_add_u32 v{va+3}, v{va+3}, 3, v{va+1}')
    a(f'v_lshlrev_b32 v{va+3}, 5, v{va+3}')
    a(f'v_lshrrev_b32 v{va+4}, 1, v{va}')
    a(f'v_lshl_add_u32 v{va+3}, v{va+4}, 2, v{va+3}')
    a(f's_lshr_b32 s{t+2}, s{t+1}, 1')
    a(f's_lshl_b32 s{t+2}, s{t+2}, 12')
    a(f's_lshl_b32 s{t+3}, s{t}, 9')
    a(f's_add_u32 s{t+2}, s{t+2}, s{t+3}')
    a(f's_and_b32 s{t+3}, s{t+1}, 1')
    a(f's_lshl_b32 s{t+3}, s{t+3}, 4')
    a(f's_add_u32 s{t+2}, s{t+2}, s{t+3}')
    a(f's_mov_b32 s{t+6}, 0xff00ff00')
    a(f's_mov_b32 s{t+7}, 0xff00ff00')
    for i in range(10):
        a(f's_waitcnt vmcnt({9-i})')
        for w in range(4):
            a(f'v_dot2_f32_bf16 v{S+2*w}, v{R+4*i+w}, s{t+4}, v{S+2*w}')
            a(f'v_dot2_f32_bf16 v{S+2*w+1}, v{R+4*i+w}, s{t+5}, v{S+2*w+1}')
    for j in range(4): a(f'v_permlane32_swap_b32 v{S+j}, v{S+4+j}')
    for j in range(4): a(f'v_add_f32 v{S+j}, v{S+j}, v{S+4+j}')
    for j in range(2): a(f'v_permlane16_swap_b32 v{S+j}, v{S+2+j}')
    for j in range(2): a(f'v_add_f32 v{S+j}, v{S+j}, v{S+2+j}')
    for j in range(2): a(f'v_add_f32_dpp v{S+j}, v{S+j}, v{S+j} row_ror:8 row_mask:0xf bank_mask:0xf')
    a(f'v_cndmask_b32 v{S}, v{S}, v{S+1}, {sr(t+6,2)}')
    a(f'buffer_store_dword v{S}, v{va+3}, {sr(S1,4)}, s{t+2} offen')
    a(f's_branch {end_label}')
    a.label(f'{pfx}_T')
    srd(a, S0, sW+4, F*D*2)
    a(f's_sub_u32 s{t}, s{su}, 384')
    a(f's_lshl_b32 s{t}, s{t}, 13')
    a(f'v_lshlrev_b32 v{va}, 7, v{vlane}')
    a(f'buffer_load_dword v{vb+60}, v{va}, {sr(S0,4)}, s{t} offen')
    a(f's_branch {end_label}')

WS_REC = 0x000000
REC_BYTES = 128*640*64
WS_F1 = 0x10C0000
WS_F2 = 0x10C8000
FL_BYTES = 36*1024
WS_CP2 = 0x10A0000
```

```python
from common import *
import math
NLN = 128
K1_GRID = NLN + 640
HS = 6272
GT = 8 * HS
K1_LDS = GT + 3072
RS = 1296

def gen_k1():
    a = Asm()
    a(f's_cmp_ge_u32 s2, {K1_GRID}')
    a('s_cbranch_scc1 K1_END')
    stamp_init(a)
    t0_mark(a, 0)
    a(f's_cmp_ge_u32 s2, {NLN}')
    a('s_cbranch_scc1 K1_KGEN')
    a(f's_load_dwordx2 s[4:5], s[0:1], {KA["x"]}')
    a(f's_load_dwordx2 s[6:7], s[0:1], {KA["ws"]}')
    a(f's_load_dwordx4 s[56:59], s[0:1], {KA["Wg"]}')
    a(f's_load_dwordx2 s[60:61], s[0:1], {KA["Wd"]}')
    if OPT['pf']:
        a('s_cmp_ge_u32 s2, 16')
        a('s_cbranch_scc1 K1_NOPF')
        a('v_lshlrev_b32 v1, 7, v0')
        code_prefetch(a, None, 'k3_kernel', 1, 1, 135, 64)
        a.label('K1_NOPF')
    a('v_lshrrev_b32 v1, 4, v0')
    a('v_and_b32 v2, 15, v0')
    a('v_mul_u32_u24 v3, 1280, v1')
    a('v_lshl_add_u32 v3, v2, 4, v3')
    a('s_mul_i32 s3, s2, 20480')
    a(f'v_mul_u32_u24 v4, {RS}, v1')
    a('v_lshl_add_u32 v4, v2, 4, v4')
    a('s_waitcnt lgkmcnt(0)')
    stamp(a, 1)
    srd(a, 8, 4, L*D*2)
    X = 8
    for i in range(5):
        a(f'buffer_load_dwordx4 {vr(X+4*i,4)}, v3, s[8:11], s3 offen offset:{256*i}')
    srd(a, 12, 6, 0x280000, WS_UP)
    srd(a, 16, 6, 0x280000, WS_XT)
    a('v_bfe_u32 v30, v0, 4, 1')
    a('v_bfe_u32 v31, v0, 5, 1')
    a('v_bfe_u32 v32, v0, 2, 2')
    a('v_and_b32 v33, 3, v0')
    a('v_lshrrev_b32 v34, 6, v0')
    a('v_readfirstlane_b32 s22, v34')
    a('v_mul_u32_u24 v35, 320, v34')
    a('v_lshl_add_u32 v35, v31, 5, v35')
    a('v_lshl_add_u32 v35, v33, 3, v35')
    a('v_lshlrev_b32 v36, 1, v30')
    a('v_lshl_add_u32 v36, v32, 2, v36')
    a(f'v_mul_u32_u24 v36, {RS}, v36')
    a('v_add_u32 v36, v36, v35')
    a('v_lshl_add_u32 v37, v30, 3, v32')
    a(f'v_mul_u32_u24 v37, {RS}, v37')
    a('v_add_u32 v37, v37, v35')
    a('v_mul_u32_u24 v38, 160, v34')
    a('v_lshl_add_u32 v38, v31, 4, v38')
    a('v_add_u32 v38, v38, v2')
    a('v_lshlrev_b32 v38, 5, v38')
    a('v_lshl_add_u32 v38, v30, 4, v38')
    a('v_add_u32 v39, 4096, v38')
    a('s_mov_b32 s20, 0x3f803f80')
    a('v_mov_b32 v5, 0'); a('v_mov_b32 v6, 0'); a('v_mov_b32 v28, 0'); a('v_mov_b32 v29, 0')
    a('s_lshl_b32 s21, s2, 2')
    a('s_add_u32 s21, s21, s22')
    a('v_and_b32 v7, 63, v0')
    R = 72; S = 112; va = 120; S0 = 24; S1 = 28; t = 32
    a(f's_and_b32 s{t}, s21, 7')
    a(f's_lshr_b32 s{t+1}, s21, 3')
    a(f's_cmp_ge_u32 s{t+1}, 24')
    a(f's_cselect_b32 s{S0}, s58, s56')
    a(f's_cselect_b32 s{S0+1}, s59, s57')
    a(f's_cselect_b32 s{t+2}, 24, 0')
    a(f's_mov_b32 s{S0+2}, {D*F*2}')
    a(f's_mov_b32 s{S0+3}, 0x20000')
    a(f's_sub_u32 s{t+2}, s{t+1}, s{t+2}')
    a(f's_lshl_b32 s{t+2}, s{t+2}, 7')
    a(f's_mul_i32 s{t+3}, s{t}, {80*3072}')
    a(f's_add_u32 s{t+3}, s{t+3}, s{t+2}')
    a(f'v_and_b32 v{va}, 7, v7')
    a(f'v_lshrrev_b32 v{va+1}, 3, v7')
    a(f'v_mul_u32_u24 v{va+2}, 3072, v{va+1}')
    a(f'v_lshl_add_u32 v{va+2}, v{va}, 4, v{va+2}')
    srd(a, S1, 6, CP_BYTES, WS_CP)
    srd(a, 44, 60, F*D*2)
    a(f'v_and_b32 v{va+3}, 1, v{va}')
    a(f'v_lshl_add_u32 v{va+3}, v{va+3}, 3, v{va+1}')
    a(f'v_lshlrev_b32 v{va+3}, 5, v{va+3}')
    a(f'v_lshrrev_b32 v{va+4}, 1, v{va}')
    a(f'v_lshl_add_u32 v{va+3}, v{va+4}, 2, v{va+3}')
    a(f'v_lshlrev_b32 v{va+5}, 7, v7')
    a(f's_lshr_b32 s{t+2}, s{t+1}, 1')
    a(f's_lshl_b32 s{t+2}, s{t+2}, 12')
    a(f's_lshl_b32 s{t+8}, s{t}, 9')
    a(f's_add_u32 s{t+2}, s{t+2}, s{t+8}')
    a(f's_and_b32 s{t+8}, s{t+1}, 1')
    a(f's_lshl_b32 s{t+8}, s{t+8}, 4')
    a(f's_add_u32 s{t+2}, s{t+2}, s{t+8}')
    a(f's_mov_b32 s{t+4}, 0x00003f80')
    a(f's_mov_b32 s{t+5}, 0x3f800000')
    a(f's_mov_b32 s{t+6}, 0xff00ff00')
    a(f's_mov_b32 s{t+7}, 0xff00ff00')
    for j in range(8): a(f'v_mov_b32 v{S+j}, 0')
    for i in range(5):
        a(f's_waitcnt vmcnt({4-i})')
        a(f'ds_write_b128 v4, {vr(X+4*i,4)} offset:{16*RS+256*i}')
        for j in range(4):
            r = X+4*i+j
            a(f'v_dot2_f32_bf16 v{5 if j&1 else 28}, v{r}, s20, v{5 if j&1 else 28}')
            a(f'v_dot2_f32_bf16 v{6 if j&1 else 29}, v{r}, v{r}, v{6 if j&1 else 29}')
    stamp(a, 2)
    if OPT.get('x_now'): a('s_branch K1_SIDE')
    a('s_cmp_ge_u32 s21, 384')
    a('s_cbranch_scc1 K1_TOUCH')
    for i in range(10):
        a(f'buffer_load_dwordx4 {vr(R+4*i,4)}, v{va+2}, {sr(S0,4)}, s{t+3} offen')
        a(f's_add_u32 s{t+3}, s{t+3}, {8*3072}')
    a('s_branch K1_SIDE')
    a.label('K1_TOUCH')
    a(f's_sub_u32 s{t+8}, s21, 384')
    a(f's_lshl_b32 s{t+8}, s{t+8}, 14')
    a(f'buffer_load_dword v{R}, v{va+5}, s[44:47], s{t+8} offen')
    a(f's_add_u32 s{t+8}, s{t+8}, 8192')
    a(f'buffer_load_dword v{R+1}, v{va+5}, s[44:47], s{t+8} offen')
    a.label('K1_SIDE')
    a('v_add_f32 v5, v5, v28')
    a('v_add_f32 v6, v6, v29')
    for sh in (8, 4, 2, 1):
        a(f'v_add_f32_dpp v5, v5, v5 row_ror:{sh} row_mask:0xf bank_mask:0xf')
        a(f'v_add_f32_dpp v6, v6, v6 row_ror:{sh} row_mask:0xf bank_mask:0xf')
    a(f'v_mul_f32 v5, {f2u(1.0/640)}, v5')
    a(f'v_mul_f32 v6, {f2u(1.0/640)}, v6')
    a('v_fma_f32 v6, -v5, v5, v6')
    a('v_max_f32 v6, 0, v6')
    round_bf16(a, 5, 5)
    round_bf16(a, 6, 6)
    a(f'v_add_f32 v6, {f2u(1e-5)}, v6')
    round_bf16(a, 6, 6)
    a('v_sqrt_f32 v6, v6')
    round_bf16(a, 6, 6)
    a('v_rcp_f32 v6, v6')
    U = 40
    for i in range(5):
        for j in range(4):
            r = X+4*i+j; tt = 60 + 2*j
            a(f'v_lshlrev_b32 v{tt}, 16, v{r}')
            a(f'v_and_b32 v{tt+1}, 0xffff0000, v{r}')
        for j in range(4):
            tt = 60 + 2*j
            a(f'v_sub_f32 v{tt}, v{tt}, v5')
            a(f'v_sub_f32 v{tt+1}, v{tt+1}, v5')
        for j in range(4):
            tt = 60 + 2*j
            a(f'v_cvt_pk_bf16_f32 v{tt+1}, v{tt}, v{tt+1}')
        for j in range(4):
            tt = 60 + 2*j
            a(f'v_lshlrev_b32 v{tt}, 16, v{tt+1}')
            a(f'v_and_b32 v{tt+1}, 0xffff0000, v{tt+1}')
        for j in range(4):
            tt = 60 + 2*j
            a(f'v_mul_f32 v{tt}, v{tt}, v6')
            a(f'v_mul_f32 v{tt+1}, v{tt+1}, v6')
        for j in range(4):
            tt = 60 + 2*j
            a(f'v_cvt_pk_bf16_f32 v{U+4*i+j}, v{tt}, v{tt+1}')
        a(f'ds_write_b128 v4, {vr(U+4*i,4)} offset:{256*i}')
    a('s_waitcnt lgkmcnt(0)')
    a('s_barrier')
    stamp(a, 3)
    LS = 'sc1' if OPT.get('lnsc1', 0) else ''
    for i in range(5):
        a(f'ds_read_b64_tr_b16 {vr(U+4*i,2)}, v36 offset:{64*i}')
        a(f'ds_read_b64_tr_b16 {vr(U+4*i+2,2)}, v36 offset:{64*i+RS}')
    for i in range(5):
        a(f'ds_read_b64_tr_b16 {vr(X+4*i,2)}, v37 offset:{16*RS+64*i}')
        a(f'ds_read_b64_tr_b16 {vr(X+4*i+2,2)}, v37 offset:{16*RS+64*i+4*RS}')
        a('s_waitcnt lgkmcnt(10)')
        a(f'buffer_store_dwordx4 {vr(U+4*i,4)}, v{38 if i < 4 else 39}, s[12:15], s3 offen offset:{1024*(i%4)} {LS}')
    for i in range(5):
        a(f's_waitcnt lgkmcnt({2*(4-i)})')
        if not OPT.get('x_noxt'): a(f'buffer_store_dwordx4 {vr(X+4*i,4)}, v{38 if i < 4 else 39}, s[16:19], s3 offen offset:{1024*(i%4)} {LS}')
    stamp(a, 4)
    a('s_cmp_ge_u32 s21, 384')
    a('s_cbranch_scc1 K1_LNEND')
    for i in range(10):
        a(f's_waitcnt vmcnt({19-i})')
        for w in range(4):
            a(f'v_dot2_f32_bf16 v{S+2*w}, v{R+4*i+w}, s{t+4}, v{S+2*w}')
            a(f'v_dot2_f32_bf16 v{S+2*w+1}, v{R+4*i+w}, s{t+5}, v{S+2*w+1}')
    for j in range(4): a(f'v_permlane32_swap_b32 v{S+j}, v{S+4+j}')
    for j in range(4): a(f'v_add_f32 v{S+j}, v{S+j}, v{S+4+j}')
    for j in range(2): a(f'v_permlane16_swap_b32 v{S+j}, v{S+2+j}')
    for j in range(2): a(f'v_add_f32 v{S+j}, v{S+j}, v{S+2+j}')
    for j in range(2): a(f'v_add_f32_dpp v{S+j}, v{S+j}, v{S+j} row_ror:8 row_mask:0xf bank_mask:0xf')
    a(f'v_cndmask_b32 v{S}, v{S}, v{S+1}, {sr(t+6,2)}')
    a(f'buffer_store_dword v{S}, v{va+3}, {sr(S1,4)}, s{t+2} offen')
    a.label('K1_LNEND')
    stamp_end(a, 0)
    a('s_endpgm')

    a.label('K1_KGEN')
    a(f's_load_dwordx8 s[4:11], s[0:1], {KA["Are"]}')
    a(f's_load_dwordx8 s[12:19], s[0:1], {KA["Cre"]}')
    a(f's_load_dwordx2 s[20:21], s[0:1], {KA["ws"]}')
    a(f's_sub_u32 s3, s2, {NLN}')
    a('v_lshrrev_b32 v1, 6, v0')
    a('v_lshlrev_b32 v2, 1, v0')
    a('v_readfirstlane_b32 s22, v1')
    a('s_mul_i32 s23, s3, 384')
    a('s_lshl_b32 s24, s3, 1')
    a('s_and_b32 s24, s24, 0xfffffffc')
    a('v_and_b32 v4, 63, v0')
    a('v_lshlrev_b32 v7, 1, v4')
    a('s_waitcnt lgkmcnt(0)')
    stamp(a, 1)
    a('s_load_dword s25, s[16:17], s24')
    a('s_load_dword s26, s[18:19], s24')
    PRM = 8
    for i in range(2): srd(a, 28 + 4*i, 4 + 2*i, D*N*2)
    a('s_cmp_eq_u32 s22, 3')
    a('s_cbranch_scc1 K1_LDQ')
    for i in range(6):
        s = 28 + 4*i
        if i >= 2: srd(a, s, 4 + 2*i, D*N*2)
        a(f'buffer_load_short_d16_hi v{PRM+i}, v2, {sr(s,4)}, s23 offen')
    a('s_branch K1_LDD')
    a.label('K1_LDQ')
    for c in range(3):
        for i in range(2):
            a(f'buffer_load_short_d16_hi v{PRM+2*c+i}, v7, {sr(28+4*i,4)}, s23 offen offset:{128*c}')
    a.label('K1_LDD')
    srd(a, 52, 20, 0x280000, WS_KW)
    EX = 100
    a('v_lshlrev_b32 v3, 3, v0')
    for e in range(8): a(f'v_add_u32 v{EX+e}, {e}, v3')
    for e in range(8): a(f'v_cvt_f32_u32 v{20+e}, v{EX+e}')
    for e in range(0, 8, 2): a(f'v_cvt_pk_bf16_f32 v{20+e}, v{20+e}, v{21+e}')
    for e in range(0, 8, 2):
        a(f'v_lshrrev_b32 v{21+e}, 16, v{20+e}')
        a(f'v_and_b32 v{20+e}, 0xffff, v{20+e}')
    for e in range(8): a(f'v_subrev_u32 v{20+e}, {0x4300-128}, v{20+e}')
    a('v_mov_b32 v5, 128')
    for e in range(8): a(f'v_med3_i32 v{EX+e}, v{EX+e}, v{20+e}, v5')
    for e in range(8): a(f'v_lshlrev_b32 v{EX+e}, 2, v{EX+e}')
    a('v_bfe_u32 v5, v0, 1, 1')
    a(f'v_mul_u32_u24 v108, {HS}, v5')
    a('v_lshrrev_b32 v5, 2, v4')
    a('v_lshl_add_u32 v108, v5, 4, v108')
    a('v_and_b32 v5, 1, v0')
    a('v_lshl_add_u32 v108, v5, 3, v108')
    a(f's_mul_i32 s27, s22, {2*HS}')
    a(f's_add_u32 s27, s27, {2*HS}')
    a('v_add_u32 v109, s27, v108')
    a('v_and_b32 v5, 15, v0')
    a('v_bfe_u32 v6, v0, 4, 2')
    a('v_lshlrev_b32 v110, 4, v5')
    a('v_lshl_add_u32 v110, v6, 2, v110')
    a('v_add_u32 v111, 2, v110')
    a('s_cmp_eq_u32 s22, 0')
    a('s_cbranch_scc1 K1_GA')
    a('v_lshlrev_b32 v110, 1, v5')
    a('v_lshl_add_u32 v110, v6, 6, v110')
    a('v_add_u32 v110, 512, v110')
    a('v_add_u32 v111, 32, v110')
    a('s_cmp_lg_u32 s22, 1')
    a('s_cbranch_scc1 K1_GA')
    a('v_lshlrev_b32 v110, 3, v5')
    a('v_lshl_add_u32 v110, v6, 2, v110')
    a('v_add_u32 v110, 256, v110')
    a('v_lshlrev_b32 v111, 2, v5')
    a('v_lshl_add_u32 v111, v6, 6, v111')
    a('v_add_u32 v111, 256, v111')
    a('v_cmp_gt_u32 vcc, 2, v6')
    a('v_cndmask_b32 v110, v111, v110, vcc')
    a('v_add_u32 v111, 2, v110')
    a.label('K1_GA')
    a('v_lshlrev_b32 v110, 2, v110')
    a('v_lshlrev_b32 v111, 2, v111')
    a('v_lshlrev_b32 v112, 4, v0')
    a('s_waitcnt lgkmcnt(0)')
    a('s_bitcmp1_b32 s3, 0')
    a('s_cselect_b32 s24, 0, 16')
    a('s_lshl_b32 s25, s25, s24')
    a('s_and_b32 s25, s25, 0xffff0000')
    a('s_lshl_b32 s26, s26, s24')
    a('s_and_b32 s26, s26, 0xffff0000')
    a('v_mov_b32 v5, s26')
    a('v_cmp_eq_u32 vcc, 0, v0')
    a('v_cndmask_b32 v113, 0, v5, vcc')
    a(f'v_mov_b32 v5, {f2u(math.log2(math.e))}')
    a('v_mul_f32 v5, s25, v5')
    a('v_exp_f32 v5, v5')
    round_bf16(a, 5, 5)
    stamp(a, 2)
    a('s_waitcnt vmcnt(0)')
    stamp(a, 3)
    for i in range(6):
        a(f'v_and_b32 v{PRM+i}, 0xffff0000, v{PRM+i}')
    a('s_cmp_eq_u32 s22, 3')
    a('s_cbranch_scc1 K1_Q')
    LOG2E = math.log2(math.e); I2PI = 1/(2*math.pi)
    def anchors(lst):
        for k, (r, ra, ia, v, sg_) in enumerate(lst):
            tt = 20 + 3*k
            a(f'v_mul_f32 v{tt}, {f2u(v)}, v{ra}')
            a(f'v_mul_f32 v{tt+1}, {f2u(v*sg_)}, v{ia}')
        for k in range(len(lst)): a(f'v_fract_f32 v{21+3*k}, v{21+3*k}')
        for k in range(len(lst)):
            tt = 20 + 3*k
            a(f'v_exp_f32 v{tt}, v{tt}')
            a(f'v_cos_f32 v{tt+2}, v{tt+1}')
            a(f'v_sin_f32 v{tt+1}, v{tt+1}')
        for k, (r, ra, ia, v, sg_) in enumerate(lst):
            tt = 20 + 3*k
            a(f'v_mul_f32 v{r}, v{tt}, v{tt+2}')
            a(f'v_mul_f32 v{r+1}, v{tt}, v{tt+1}')
    def pack(rec, base, pk, hidx, addr=112, off=0):
        for j in range(4):
            rec(f'v_cvt_pk_bf16_f32 v{pk+j}, v{base+4*j}, v{base+4*j+2}')
            rec(f'v_cvt_pk_bf16_f32 v{pk+4+j}, v{base+4*j+1}, v{base+4*j+3}')
        rec(f'ds_write_b128 v{addr}, {vr(pk,4)} offset:{hidx*HS+off}')
        rec(f'ds_write_b128 v{addr}, {vr(pk+4,4)} offset:{hidx*HS+3072+off}')
    for i in range(4): a(f'v_mul_f32 v{PRM+i}, v5, v{PRM+i}')
    a(f'v_mul_f32 v8, {f2u(LOG2E)}, v8')
    a(f'v_mul_f32 v9, {f2u(I2PI)}, v9')
    P0 = 32
    cmul(a, P0, 10, 12)
    anchors([(14, 8, 9, 1.0, 1), (18, 8, 9, 256.0, 1)])
    Q = 64; PK = 20; PK2 = 114; W = 122
    def Wr(k): return 18 if k == 1 else W + 2*(k-2)
    rp, rw = Rec(), Rec()
    for b in range(1, 16):
        cmul(rp, P0+2*b, P0+2*(b-1), 14)
        if b == 7: pack(rp, P0, PK, 2)
    pack(rp, P0+16, PK, 3)
    for k in range(2, 9): cmul(rw, Wr(k), Wr(k-1), 18)
    for aa in range(4): cmul(rw, Q+2*(2*aa), P0, Wr(4+aa))
    cmul(rw, Q+16, P0, Wr(8))
    rw(f'v_cvt_pk_bf16_f32 v{PK2}, v{Q+16}, v{Q+16}')
    rw(f'v_cvt_pk_bf16_f32 v{PK2+1}, v{Q+17}, v{Q+17}')
    rw(f'ds_write_b32 v112, v{PK2} offset:{7*HS}')
    rw(f'ds_write_b32 v112, v{PK2+1} offset:{7*HS+3072}')
    for aa in range(4): cmul(rw, Q+2*(2*aa+1), P0+16, Wr(4+aa))
    pack(rw, Q, PK2, 6)
    for tt in interleave(rp.l, rw.l): a(tt)
    r1, r2 = Rec(), Rec()
    for b in range(8): cmul(r1, Q+2*b, P0+4*b, 18)
    pack(r1, Q, PK, 4)
    for b in range(4): cmul(r2, Q+16+2*b, P0+8*b, Wr(2))
    for b in range(4): cmul(r2, Q+24+2*b, P0+8*b, Wr(3))
    pack(r2, Q+16, PK2, 5)
    for tt in interleave(r1.l, r2.l): a(tt)
    a('s_branch K1_TBLDONE')
    a.label('K1_Q')
    for i in range(6): a(f'v_mul_f32 v{PRM+i}, v5, v{PRM+i}')
    for c in range(3):
        a(f'v_mul_f32 v{8+2*c}, {f2u(LOG2E)}, v{8+2*c}')
        a(f'v_mul_f32 v{9+2*c}, {f2u(I2PI)}, v{9+2*c}')
    anchors([(14+2*c, 8+2*c, 9+2*c, 16.0, -1) for c in range(3)])
    a('v_lshlrev_b32 v6, 4, v4')
    recs = []
    for c in range(3):
        r = Rec(); qb = 32 + 16*c; z = 14 + 2*c; pk = (80, 88, 114)[c]
        r(f'v_mov_b32 v{qb}, 1.0'); r(f'v_mov_b32 v{qb+1}, 0')
        r(f'v_mov_b32 v{qb+2}, v{z}'); r(f'v_mov_b32 v{qb+3}, v{z+1}')
        for b in range(2, 8): cmul(r, qb+2*b, qb+2*(b-1), z)
        pack(r, qb, pk, 0, 6, 1024*c)
        for b in range(8): cmul(r, qb+2*b, qb+2*((b-1) % 8), z)
        pack(r, qb, pk, 1, 6, 1024*c)
        recs.append(r.l)
    for tt in interleave(*recs): a(tt)
    a.label('K1_TBLDONE')
    a('s_waitcnt lgkmcnt(0)')
    a('s_barrier')
    stamp(a, 4)
    a('s_cmp_eq_u32 s22, 3')
    a('s_cbranch_scc1 K1_MFMADONE')
    FR = 4
    def rd(s):
        b = FR + 8*s
        a(f'ds_read_b64_tr_b16 {vr(b,2)}, v109 offset:{512*s}')
        a(f'ds_read_b64_tr_b16 {vr(b+2,2)}, v109 offset:{512*s+256}')
        a(f'ds_read_b64_tr_b16 {vr(b+4,2)}, v108 offset:{512*s}')
        a(f'ds_read_b64_tr_b16 {vr(b+6,2)}, v108 offset:{512*s+256}')
    for s in range(4): rd(s)
    for s in range(12):
        a(f's_waitcnt lgkmcnt({min(12, 4*(11-s))})')
        b = FR + 8*s
        a(f'v_mfma_f32_16x16x32_bf16 v[114:117], {vr(b,4)}, {vr(b+4,4)}, {"0" if s == 0 else "v[114:117]"}')
        if s + 4 < 12: rd(s+4)
    a(f'ds_write_b64 v110, v[114:115] offset:{GT}')
    a(f'ds_write_b64 v111, v[116:117] offset:{GT}')
    a.label('K1_MFMADONE')
    a('s_waitcnt lgkmcnt(0)')
    a('s_barrier')
    stamp(a, 5)
    for e in range(8):
        a(f'ds_read_b32 v{8+e}, v{EX+e} offset:{GT}')
    a('s_lshl_b32 s23, s3, 12')
    a('s_waitcnt lgkmcnt(0)')
    a('v_add_f32 v8, v8, v113')
    for j in range(4):
        a(f'v_cvt_pk_bf16_f32 v{16+j}, v{8+2*j}, v{9+2*j}')
    a(f'buffer_store_dwordx4 v[16:19], v112, s[52:55], s23 offen {"sc1" if OPT.get("kwsc1", 0) else ""}')
    stamp_end(a, 0)
    a.label('K1_END')
    a('s_endpgm')
    return a
```

```python
from common import *
import math
NLN = 128
K12_GRID = NLN + 640
HS = 6272
GT = 8 * HS
K12_LDS = 53760
RS = 1296
SPIN_MAX = 200000
NCLR = 36
KC = 4128
UPO = 4 * KC
UPS = 1152
EXO = UPO + 4*UPS

def wait_cleared(a, lab, vtmp, vzero, sdbg, scnt):
    a(f's_mov_b32 s{scnt}, 0')
    a.label(lab)
    a(f'v_cmp_eq_u32 vcc, {NCLR}, v{vtmp}')
    a(f's_cbranch_vccnz {lab}D')
    a(f's_add_u32 s{scnt}, s{scnt}, 1')
    a(f's_cmp_ge_u32 s{scnt}, {SPIN_MAX}')
    a(f's_cbranch_scc1 {lab}D')
    a('s_sleep 4')
    a(f'buffer_load_dword v{vtmp}, v{vzero}, {sr(sdbg,4)}, 0 offen sc1')
    a('s_waitcnt vmcnt(0)')
    a(f's_branch {lab}')
    a.label(lab + 'D')

def gen_k12():
    a = Asm()
    a(f's_cmp_ge_u32 s2, {K12_GRID}')
    a('s_cbranch_scc1 K1_END')
    stamp_init(a)
    t0_mark(a, 0)
    a(f's_cmp_ge_u32 s2, {NLN}')
    a('s_cbranch_scc1 K1_KGEN')
    a('s_setprio 3')
    a(f's_load_dwordx2 s[4:5], s[0:1], {KA["x"]}')
    a(f's_load_dwordx4 s[52:55], s[0:1], {KA["dbg"]}')
    a(f's_load_dwordx4 s[56:59], s[0:1], {KA["Wg"]}')
    a(f's_load_dwordx2 s[60:61], s[0:1], {KA["Wd"]}')
    if OPT['pf']:
        a('s_cmp_lt_u32 s2, 112')
        a('s_cbranch_scc1 K1_NOPF')
        a('v_lshlrev_b32 v1, 7, v0')
        code_prefetch(a, None, 'k3_kernel', 1, 1, 135, 64)
        a.label('K1_NOPF')
    a('v_lshrrev_b32 v1, 4, v0')
    a('v_and_b32 v2, 15, v0')
    a('v_mul_u32_u24 v3, 1280, v1')
    a('v_lshl_add_u32 v3, v2, 4, v3')
    a('s_mul_i32 s3, s2, 20480')
    a(f'v_mul_u32_u24 v4, {RS}, v1')
    a('v_lshl_add_u32 v4, v2, 4, v4')
    a('v_lshrrev_b32 v34, 6, v0')
    a('v_and_b32 v7, 63, v0')
    a('v_readfirstlane_b32 s22, v34')
    a('v_lshlrev_b32 v70, 4, v7')
    a('s_lshl_b32 s21, s2, 2')
    a('s_add_u32 s21, s21, s22')
    a('s_waitcnt lgkmcnt(0)')
    stamp(a, 1)
    srd(a, 8, 4, L*D*2)
    X = 8
    for i in range(5):
        a(f'buffer_load_dwordx4 {vr(X+4*i,4)}, v3, s[8:11], s3 offen offset:{256*i}')
    srd(a, 24, 52, 256)
    for r in range(4): a(f'v_mov_b32 v{72+r}, 0')
    srd(a, 12, 54, REC_BYTES, WS_REC)
    a('v_bfe_u32 v30, v0, 4, 1')
    a('v_bfe_u32 v31, v0, 5, 1')
    a('v_bfe_u32 v32, v0, 2, 2')
    a('v_and_b32 v33, 3, v0')
    a('v_mul_u32_u24 v35, 320, v34')
    a('v_lshl_add_u32 v35, v31, 5, v35')
    a('v_lshl_add_u32 v35, v33, 3, v35')
    a('v_lshlrev_b32 v36, 1, v30')
    a('v_lshl_add_u32 v36, v32, 2, v36')
    a(f'v_mul_u32_u24 v36, {RS}, v36')
    a('v_add_u32 v36, v36, v35')
    a('v_lshl_add_u32 v37, v30, 3, v32')
    a(f'v_mul_u32_u24 v37, {RS}, v37')
    a('v_add_u32 v37, v37, v35')
    a('s_mul_i32 s23, s22, 3072')
    a('s_add_u32 s23, s23, 41472')
    a('v_lshl_add_u32 v38, v31, 4, v2')
    a('v_mul_u32_u24 v38, 48, v38')
    a('v_lshl_add_u32 v38, v30, 4, v38')
    a('v_add_u32 v38, s23, v38')
    a('v_lshrrev_b32 v39, 1, v7')
    a('v_mul_u32_u24 v39, 48, v39')
    a('v_and_b32 v69, 1, v7')
    a('v_lshl_add_u32 v39, v69, 4, v39')
    a('v_add_u32 v39, s23, v39')
    a('s_mov_b32 s20, 0x3f803f80')
    a('v_mov_b32 v5, 0'); a('v_mov_b32 v6, 0'); a('v_mov_b32 v28, 0'); a('v_mov_b32 v29, 0')
    a('v_mov_b32 v71, 1')
    for i in range(5):
        a(f's_waitcnt vmcnt({4-i})')
        a(f'ds_write_b128 v4, {vr(X+4*i,4)} offset:{16*RS+256*i}')
        for j in range(4):
            r = X+4*i+j
            a(f'v_dot2_f32_bf16 v{5 if j&1 else 28}, v{r}, s20, v{5 if j&1 else 28}')
            a(f'v_dot2_f32_bf16 v{6 if j&1 else 29}, v{r}, v{r}, v{6 if j&1 else 29}')
    stamp(a, 2)
    a('v_add_f32 v5, v5, v28')
    a('v_add_f32 v6, v6, v29')
    for sh in (8, 4, 2, 1):
        a(f'v_add_f32_dpp v5, v5, v5 row_ror:{sh} row_mask:0xf bank_mask:0xf')
        a(f'v_add_f32_dpp v6, v6, v6 row_ror:{sh} row_mask:0xf bank_mask:0xf')
    a(f'v_mul_f32 v5, {f2u(1.0/640)}, v5')
    a(f'v_mul_f32 v6, {f2u(1.0/640)}, v6')
    a('v_fma_f32 v6, -v5, v5, v6')
    a('v_max_f32 v6, 0, v6')
    round_bf16(a, 5, 5)
    round_bf16(a, 6, 6)
    a(f'v_add_f32 v6, {f2u(1e-5)}, v6')
    round_bf16(a, 6, 6)
    a('v_sqrt_f32 v6, v6')
    round_bf16(a, 6, 6)
    a('v_rcp_f32 v6, v6')
    U = 40
    for i in range(5):
        for j in range(4):
            r = X+4*i+j; tt = 60 + 2*j
            a(f'v_lshlrev_b32 v{tt}, 16, v{r}')
            a(f'v_and_b32 v{tt+1}, 0xffff0000, v{r}')
        for j in range(4):
            tt = 60 + 2*j
            a(f'v_sub_f32 v{tt}, v{tt}, v5')
            a(f'v_sub_f32 v{tt+1}, v{tt+1}, v5')
        for j in range(4):
            tt = 60 + 2*j
            a(f'v_cvt_pk_bf16_f32 v{tt+1}, v{tt}, v{tt+1}')
        for j in range(4):
            tt = 60 + 2*j
            a(f'v_lshlrev_b32 v{tt}, 16, v{tt+1}')
            a(f'v_and_b32 v{tt+1}, 0xffff0000, v{tt+1}')
        for j in range(4):
            tt = 60 + 2*j
            a(f'v_mul_f32 v{tt}, v{tt}, v6')
            a(f'v_mul_f32 v{tt+1}, v{tt+1}, v6')
        for j in range(4):
            tt = 60 + 2*j
            a(f'v_cvt_pk_bf16_f32 v{U+4*i+j}, v{tt}, v{tt+1}')
        a(f'ds_write_b128 v4, {vr(U+4*i,4)} offset:{256*i}')
    a('s_waitcnt lgkmcnt(0)')
    a('s_barrier')
    stamp(a, 3)
    O = 76
    lg = Cnt(a, 'lgkmcnt', 15)
    def trd(i):
        if i < 5:
            a(f'ds_read_b64_tr_b16 {vr(O+4*i,2)}, v36 offset:{64*i}'); lg.issue()
            a(f'ds_read_b64_tr_b16 {vr(O+4*i+2,2)}, v36 offset:{64*i+RS}'); lg.issue(i)
        else:
            a(f'ds_read_b64_tr_b16 {vr(O+4*i,2)}, v37 offset:{16*RS+64*(i-5)}'); lg.issue()
            a(f'ds_read_b64_tr_b16 {vr(O+4*i+2,2)}, v37 offset:{20*RS+64*(i-5)}'); lg.issue(i)
    a('s_mul_i32 s23, s22, 5120')
    a('s_add_u32 s3, s3, s23')
    a('s_add_u32 s23, s3, 4096')
    a('s_add_u32 s28, s3, 0x280000')
    a('s_add_u32 s29, s23, 0x280000')
    for i in range(4): trd(i)
    O2 = 8
    def st(i):
        lg.wait(('r', i))
        so = (3, 23, 28, 29)[2*(i//5) + ((i%5)//4)]
        a(f'buffer_store_dwordx4 {vr(O2+4*(i%5),4)}, v70, s[12:15], s{so} offen offset:{1024*((i%5)%4)} sc1')
    for i in range(10):
        lg.wait(i)
        a(f'ds_write_b128 v38, {vr(O+4*i,4)} offset:{1536*(i&1)}'); lg.issue()
        a(f'ds_read_b128 {vr(O2+4*(i%5),4)}, v39 offset:{1536*(i&1)}'); lg.issue(('r', i))
        if i + 4 < 10: trd(i+4)
        if i >= 2: st(i-2)
    st(8); st(9)
    a('v_lshrrev_b32 v9, 4, v7')
    stamp(a, 1)
    a('s_waitcnt vmcnt(0)')
    stamp(a, 6)
    a('s_barrier')
    a('s_cmp_lg_u32 s22, 0')
    a('s_cbranch_scc1 K1_NOFLAG')
    a('v_mov_b32 v73, 1')
    a('s_mov_b64 exec, 1')
    SH = OPT.get('shards', 2)
    a('s_lshr_b32 s28, s2, 3')
    a(f's_and_b32 s28, s28, {SH-1}')
    a(f's_mul_i32 s29, s28, {128//SH}')
    a('s_lshl_b32 s28, s28, 2')
    a('buffer_atomic_add v73, v72, s[24:27], s29 offen sc0 sc1')
    a('s_waitcnt vmcnt(0)')
    a(f'v_cmp_eq_u32 vcc, {NLN//SH-1}, v73')
    a('s_cbranch_vccz K1_NOFLAG2')
    a('buffer_store_dword v71, v72, s[24:27], s28 offen offset:128 sc1')
    a.label('K1_NOFLAG2')
    a('s_mov_b64 exec, -1')
    a.label('K1_NOFLAG')
    a('s_setprio 0')
    a('s_cmp_ge_u32 s2, 96')
    a('s_cbranch_scc1 K1_W2')
    a('s_and_b32 s28, s2, 7')
    a('s_mul_i32 s28, s28, 12')
    a('s_lshr_b32 s29, s2, 3')
    a('s_add_u32 s28, s28, s29')
    a('s_cmp_ge_u32 s28, 48')
    a('s_cselect_b32 s8, s58, s56')
    a('s_cselect_b32 s9, s59, s57')
    a('s_cselect_b32 s31, 48, 0')
    a('s_cselect_b32 s32, 6144, 0')
    a(f's_mov_b32 s10, {D*F*2}')
    a('s_mov_b32 s11, 0x20000')
    a('s_sub_u32 s31, s28, s31')
    a(f's_mul_i32 s33, s22, {160*3072}')
    a('s_lshl_b32 s34, s31, 6')
    a('s_add_u32 s33, s33, s34')
    a('v_lshrrev_b32 v3, 2, v7')
    a('v_mul_u32_u24 v8, 3072, v3')
    a('v_and_b32 v12, 3, v7')
    a('v_lshl_add_u32 v8, v12, 4, v8')
    a('s_mul_i32 s23, s22, 10240')
    a('v_lshlrev_b32 v10, 6, v3')
    a('v_lshl_add_u32 v10, v12, 3, v10')
    a('v_add_u32 v10, s23, v10')
    a('s_mul_i32 s34, s31, 0x5556')
    a('s_lshr_b32 s34, s34, 16')
    a(f's_mul_i32 s34, s34, {245760-6*1024}')
    a('s_lshl_b32 s35, s31, 11')
    a('s_add_u32 s34, s34, s35')
    a('s_add_u32 s34, s34, s32')
    a(f's_mul_i32 s35, s22, {5*12288}')
    a('s_add_u32 s34, s34, s35')
    srd(a, 40, 54, W1F_BYTES, WS_W1F)
    a('s_barrier')
    stamp(a, 4)
    for i in range(10):
        a(f's_add_u32 m0, s23, {1024*i}')
        a('buffer_load_dwordx4 v8, s[8:11], s33 offen lds')
        a(f's_add_u32 s33, s33, {16*3072}')
    F1 = 16
    a('v_mov_b32 v56, 0'); a('v_mov_b32 v57, 0')
    for kb in range(5):
        a(f's_waitcnt vmcnt({8-2*kb})')
        for fr in range(2):
            for hh in range(2):
                a(f'ds_read_b64_tr_b16 {vr(F1+8*kb+4*fr+2*hh,2)}, v10 offset:{2048*kb+1024*hh+32*fr}')
        if kb > 0:
            a('s_waitcnt lgkmcnt(4)')
            for w in range(4):
                for fr in range(2): a(f'v_dot2_f32_bf16 v{56+fr}, v{F1+8*(kb-1)+4*fr+w}, s20, v{56+fr}')
    a('s_waitcnt lgkmcnt(0)')
    for w in range(4):
        for fr in range(2): a(f'v_dot2_f32_bf16 v{56+fr}, v{F1+32+4*fr+w}, s20, v{56+fr}')
    a('v_lshlrev_b32 v13, 3, v0')
    a('ds_write_b64 v13, v[56:57] offset:40960')
    a('v_lshlrev_b32 v13, 3, v2')
    a('s_waitcnt lgkmcnt(0)')
    a('s_barrier')
    for p in range(16):
        a(f'ds_read_b64 {vr(76+2*p,2)}, v13 offset:{40960+128*p}')
    a('s_waitcnt lgkmcnt(0)')
    for st_ in (8, 4, 2, 1):
        for p in range(st_): a(f'v_pk_add_f32 {vr(76+2*p,2)}, {vr(76+2*p,2)}, {vr(76+2*(p+st_),2)}')
    for fr in range(2): a(f'v_mul_f32 v{76+fr}, {f2u(1.0/640)}, v{76+fr}')
    stamp(a, 5)
    for kb in range(5):
        for fr in range(2):
            r = F1 + 8*kb + 4*fr
            for w in range(4):
                a(f'v_lshlrev_b32 v{60+2*w}, 16, v{r+w}')
                a(f'v_and_b32 v{61+2*w}, 0xffff0000, v{r+w}')
            for w in range(8): a(f'v_sub_f32 v{60+w}, v{60+w}, v{76+fr}')
            for w in range(4): a(f'v_cvt_pk_bf16_f32 v{r+w}, v{60+2*w}, v{61+2*w}')
            a(f'buffer_store_dwordx4 {vr(r,4)}, v70, s[40:43], s34 offen offset:{1024*fr} sc1')
        a('s_add_u32 s34, s34, 12288')
    a.label('K1_LNEND')
    stamp_end(a, 0)
    a('s_endpgm')
    a.label('K1_W2')
    a('s_sub_u32 s21, s21, 384')
    a('s_mul_i32 s23, s22, 8448')
    a('s_mul_i32 s34, s21, 0x3334')
    a('s_lshr_b32 s34, s34, 16')
    a('s_mul_i32 s35, s34, 5')
    a('s_sub_u32 s35, s21, s35')
    srd(a, 8, 60, F*D*2)
    srd(a, 40, 54, W2F_BYTES, WS_W2F)
    a(f'v_mul_u32_u24 v8, {8*1280}, v9')
    a('v_lshl_add_u32 v8, v2, 4, v8')
    a(f's_mul_i32 s36, s34, {64*1280}')
    a('s_lshl_b32 s37, s35, 8')
    a('s_add_u32 s36, s36, s37')
    a('v_and_b32 v12, 3, v7')
    a('v_bfe_u32 v3, v7, 2, 3')
    a('v_mul_u32_u24 v10, 1056, v3')
    a('v_lshrrev_b32 v3, 5, v7')
    a('v_lshl_add_u32 v10, v3, 8, v10')
    a('v_lshl_add_u32 v10, v12, 3, v10')
    a('v_add_u32 v10, s23, v10')
    a('v_add_u32 v11, 512, v10')
    a('v_bfe_u32 v3, v7, 2, 2')
    a('v_mul_u32_u24 v14, 1056, v3')
    a('v_lshl_add_u32 v14, v9, 8, v14')
    a('v_lshl_add_u32 v14, v12, 3, v14')
    a('v_add_u32 v14, s23, v14')
    a('v_add_u32 v15, 4224, v14')
    a('s_mul_i32 s29, s34, 0x5556')
    a('s_lshr_b32 s29, s29, 16')
    a('s_mul_i32 s29, s29, 3')
    a('s_sub_u32 s29, s34, s29')
    a('s_mul_i32 s30, s34, 10240')
    a('s_lshl_b32 s35, s35, 3')
    for j in range(8):
        a(f's_add_u32 s37, s35, {j}')
        a('s_mul_i32 s38, s37, 0xcccd')
        a('s_lshr_b32 s38, s38, 18')
        a(f's_mul_i32 s38, s38, {245760-5*1024}')
        a('s_lshl_b32 s37, s37, 10')
        a('s_add_u32 s37, s37, s38')
        a(f's_add_u32 s{44+j}, s37, s30')
    a('s_barrier')
    stamp(a, 4)
    a('s_cmp_ge_u32 s21, 120')
    a('s_cbranch_scc1 K1_MISC')
    for u in range(2):
        for i in range(8):
            a(f's_add_u32 m0, s23, {1056*i}')
            a(f's_add_u32 s37, s36, {(32*u+i)*1280}')
            a('buffer_load_dwordx4 v8, s[8:11], s37 offen lds')
        if u == 1:
            for j in range(8):
                a(f'buffer_store_dwordx4 {vr(16+4*j,4)}, v70, s[40:43], s{44+j} offen sc1')
                a(f's_add_u32 s{44+j}, s{44+j}, 5120')
        a(f's_cmp_eq_u32 s29, {2 if u == 0 else 0}')
        a('s_cselect_b64 s[38:39], -1, 0')
        a('v_cndmask_b32 v4, v10, v14, s[38:39]')
        a('v_cndmask_b32 v5, v11, v15, s[38:39]')
        a(f's_waitcnt vmcnt({0 if u == 0 else 8})')
        for j in range(8):
            r = (16 if u == 0 else 76) + 4*j
            a(f'ds_read_b64_tr_b16 {vr(r,2)}, v4 offset:{32*j}')
            a(f'ds_read_b64_tr_b16 {vr(r+2,2)}, v5 offset:{32*j}')
        a('s_waitcnt lgkmcnt(0)')
    for j in range(8):
        a(f'buffer_store_dwordx4 {vr(76+4*j,4)}, v70, s[40:43], s{44+j} offen sc1')
    a('s_branch K1_LNEND')
    a.label('K1_MISC')
    srd(a, 12, 54, 256*128, WS_CNT)
    a('s_sub_u32 s23, s21, 120')
    a('s_lshl_b32 s23, s23, 12')
    a('v_mov_b32 v73, 0')
    for i in range(4):
        a(f'buffer_store_dwordx4 v[72:75], v70, s[12:15], s23 offen offset:{1024*i}')
    a('s_branch K1_LNEND')

    a.label('K1_KGEN')
    a(f's_load_dwordx8 s[4:11], s[0:1], {KA["Are"]}')
    a(f's_load_dwordx8 s[12:19], s[0:1], {KA["Cre"]}')
    a(f's_load_dwordx4 s[52:55], s[0:1], {KA["dbg"]}')
    a(f's_load_dwordx4 s[74:77], s[0:1], {KA["Wg"]}' if False else '')
    a(f's_sub_u32 s20, s2, {NLN}')
    a('s_and_b32 s3, s20, 7')
    a('s_mul_i32 s3, s3, 80')
    a('s_lshr_b32 s21, s20, 3')
    a('s_add_u32 s3, s3, s21')
    a('v_lshrrev_b32 v1, 6, v0')
    a('v_lshlrev_b32 v2, 1, v0')
    a('v_readfirstlane_b32 s22, v1')
    a('s_mul_i32 s23, s3, 384')
    a('s_lshl_b32 s24, s3, 1')
    a('s_and_b32 s24, s24, 0xfffffffc')
    a('v_and_b32 v4, 63, v0')
    a('v_lshlrev_b32 v7, 1, v4')
    a('s_waitcnt lgkmcnt(0)')
    stamp(a, 1)
    a('s_load_dword s25, s[16:17], s24')
    a('s_load_dword s26, s[18:19], s24')
    PRM = 8
    for i in range(2): srd(a, 28 + 4*i, 4 + 2*i, D*N*2)
    a('s_cmp_eq_u32 s22, 3')
    a('s_cbranch_scc1 K1_LDQ')
    for i in range(6):
        s = 28 + 4*i
        if i >= 2: srd(a, s, 4 + 2*i, D*N*2)
        a(f'buffer_load_short_d16_hi v{PRM+i}, v2, {sr(s,4)}, s23 offen')
    a('s_branch K1_LDD')
    a.label('K1_LDQ')
    for c in range(3):
        for i in range(2):
            a(f'buffer_load_short_d16_hi v{PRM+2*c+i}, v7, {sr(28+4*i,4)}, s23 offen offset:{128*c}')
    a(f's_load_dwordx4 s[4:7], s[0:1], {KA["Wg"]}')
    a(f's_load_dwordx2 s[8:9], s[0:1], {KA["Wd"]}')
    a.label('K1_LDD')
    srd(a, 56, 54, REC_BYTES, WS_REC)
    srd(a, 60, 54, 0x280000, WS_HT)
    srd(a, 68, 52, 256)
    EX = 136
    a('v_lshlrev_b32 v3, 3, v0')
    for e in range(11): a(f'v_add_u32 v{EX+e}, {e-3}, v3')
    for e in range(3): a(f'v_max_i32 v{EX+e}, 0, v{EX+e}')
    for e in range(11): a(f'v_cvt_f32_u32 v{20+e}, v{EX+e}')
    for e in range(0, 12, 2): a(f'v_cvt_pk_bf16_f32 v{20+e}, v{20+e}, v{21+e}')
    for e in range(0, 12, 2):
        a(f'v_lshrrev_b32 v{21+e}, 16, v{20+e}')
        a(f'v_and_b32 v{20+e}, 0xffff, v{20+e}')
    for e in range(11): a(f'v_subrev_u32 v{20+e}, {0x4300-128}, v{20+e}')
    a('v_mov_b32 v5, 128')
    for e in range(11): a(f'v_med3_i32 v{EX+e}, v{EX+e}, v{20+e}, v5')
    for e in range(11): a(f'v_lshlrev_b32 v{EX+e}, 2, v{EX+e}')
    a('v_bfe_u32 v5, v0, 1, 1')
    a(f'v_mul_u32_u24 v108, {HS}, v5')
    a('v_lshrrev_b32 v5, 2, v4')
    a('v_lshl_add_u32 v108, v5, 4, v108')
    a('v_and_b32 v5, 1, v0')
    a('v_lshl_add_u32 v108, v5, 3, v108')
    a(f's_mul_i32 s27, s22, {2*HS}')
    a(f's_add_u32 s27, s27, {2*HS}')
    a('v_add_u32 v109, s27, v108')
    a('v_and_b32 v5, 15, v0')
    a('v_bfe_u32 v6, v0, 4, 2')
    a('v_lshlrev_b32 v110, 4, v5')
    a('v_lshl_add_u32 v110, v6, 2, v110')
    a('v_add_u32 v111, 2, v110')
    a('s_cmp_eq_u32 s22, 0')
    a('s_cbranch_scc1 K1_GA')
    a('v_lshlrev_b32 v110, 1, v5')
    a('v_lshl_add_u32 v110, v6, 6, v110')
    a('v_add_u32 v110, 512, v110')
    a('v_add_u32 v111, 32, v110')
    a('s_cmp_lg_u32 s22, 1')
    a('s_cbranch_scc1 K1_GA')
    a('v_lshlrev_b32 v110, 3, v5')
    a('v_lshl_add_u32 v110, v6, 2, v110')
    a('v_add_u32 v110, 256, v110')
    a('v_lshlrev_b32 v111, 2, v5')
    a('v_lshl_add_u32 v111, v6, 6, v111')
    a('v_add_u32 v111, 256, v111')
    a('v_cmp_gt_u32 vcc, 2, v6')
    a('v_cndmask_b32 v110, v111, v110, vcc')
    a('v_add_u32 v111, 2, v110')
    a.label('K1_GA')
    a('v_lshlrev_b32 v110, 2, v110')
    a('v_lshlrev_b32 v111, 2, v111')
    a('v_lshlrev_b32 v112, 4, v0')
    a('v_and_b32 v14, 3, v4')
    a('v_bfe_u32 v15, v4, 2, 2')
    a('v_sub_u32 v14, v14, v15')
    a('v_lshlrev_b32 v14, 3, v14')
    a('v_lshlrev_b32 v15, 6, v6')
    a('v_sub_u32 v14, v14, v15')
    a(f's_mul_i32 s27, s22, {KC}')
    a('s_add_u32 s27, s27, 224')
    a('v_add_u32 v147, s27, v14')
    a('v_lshlrev_b32 v14, 3, v5')
    a('v_lshl_add_u32 v14, v6, 4, v14')
    a(f's_mul_i32 s27, s22, {UPS}')
    a(f's_add_u32 s27, s27, {UPO+8}')
    a('v_add_u32 v148, s27, v14')
    a('v_mul_u32_u24 v149, 20480, v5')
    a('v_lshl_add_u32 v149, v6, 3, v149')
    a('v_lshrrev_b32 v150, 3, v5')
    a('v_mul_u32_u24 v150, 163840, v150')
    a('v_and_b32 v14, 7, v5')
    a('v_lshl_add_u32 v150, v14, 5, v150')
    a('v_lshl_add_u32 v150, v6, 3, v150')
    a('v_lshlrev_b32 v151, 4, v4')
    a('v_mov_b32 v152, 0')
    a('s_waitcnt lgkmcnt(0)')
    a('s_bitcmp1_b32 s3, 0')
    a('s_cselect_b32 s24, 0, 16')
    a('s_lshl_b32 s25, s25, s24')
    a('s_and_b32 s25, s25, 0xffff0000')
    a('s_lshl_b32 s26, s26, s24')
    a('s_and_b32 s26, s26, 0xffff0000')
    a('v_mov_b32 v5, s26')
    a('v_cmp_eq_u32 s[72:73], 0, v0')
    a('v_cndmask_b32 v113, 0, v5, s[72:73]')
    a(f'v_mov_b32 v5, {f2u(math.log2(math.e))}')
    a('v_mul_f32 v5, s25, v5')
    a('v_exp_f32 v5, v5')
    round_bf16(a, 5, 5)
    a('s_waitcnt vmcnt(0)')
    stamp(a, 2)
    for i in range(6):
        a(f'v_and_b32 v{PRM+i}, 0xffff0000, v{PRM+i}')
    a('s_cmp_eq_u32 s22, 3')
    a('s_cbranch_scc1 K1_Q')
    LOG2E = math.log2(math.e); I2PI = 1/(2*math.pi)
    def anchors(lst):
        for k, (r, ra, ia, v, sg_) in enumerate(lst):
            tt = 20 + 3*k
            a(f'v_mul_f32 v{tt}, {f2u(v)}, v{ra}')
            a(f'v_mul_f32 v{tt+1}, {f2u(v*sg_)}, v{ia}')
        for k in range(len(lst)): a(f'v_fract_f32 v{21+3*k}, v{21+3*k}')
        for k in range(len(lst)):
            tt = 20 + 3*k
            a(f'v_exp_f32 v{tt}, v{tt}')
            a(f'v_cos_f32 v{tt+2}, v{tt+1}')
            a(f'v_sin_f32 v{tt+1}, v{tt+1}')
        for k, (r, ra, ia, v, sg_) in enumerate(lst):
            tt = 20 + 3*k
            a(f'v_mul_f32 v{r}, v{tt}, v{tt+2}')
            a(f'v_mul_f32 v{r+1}, v{tt}, v{tt+1}')
    def pack(rec, base, pk, hidx, addr=112, off=0):
        for j in range(4):
            rec(f'v_cvt_pk_bf16_f32 v{pk+j}, v{base+4*j}, v{base+4*j+2}')
            rec(f'v_cvt_pk_bf16_f32 v{pk+4+j}, v{base+4*j+1}, v{base+4*j+3}')
        rec(f'ds_write_b128 v{addr}, {vr(pk,4)} offset:{hidx*HS+off}')
        rec(f'ds_write_b128 v{addr}, {vr(pk+4,4)} offset:{hidx*HS+3072+off}')
    for i in range(4): a(f'v_mul_f32 v{PRM+i}, v5, v{PRM+i}')
    a(f'v_mul_f32 v8, {f2u(LOG2E)}, v8')
    a(f'v_mul_f32 v9, {f2u(I2PI)}, v9')
    P0 = 32
    cmul(a, P0, 10, 12)
    anchors([(14, 8, 9, 1.0, 1), (18, 8, 9, 256.0, 1)])
    Q = 64; PK = 20; PK2 = 114; W = 122
    def Wr(k): return 18 if k == 1 else W + 2*(k-2)
    rp, rw = Rec(), Rec()
    for b in range(1, 16):
        cmul(rp, P0+2*b, P0+2*(b-1), 14)
        if b == 7: pack(rp, P0, PK, 2)
    pack(rp, P0+16, PK, 3)
    for k in range(2, 9): cmul(rw, Wr(k), Wr(k-1), 18)
    for aa in range(4): cmul(rw, Q+2*(2*aa), P0, Wr(4+aa))
    cmul(rw, Q+16, P0, Wr(8))
    rw(f'v_cvt_pk_bf16_f32 v{PK2}, v{Q+16}, v{Q+16}')
    rw(f'v_cvt_pk_bf16_f32 v{PK2+1}, v{Q+17}, v{Q+17}')
    rw(f'ds_write_b32 v112, v{PK2} offset:{7*HS}')
    rw(f'ds_write_b32 v112, v{PK2+1} offset:{7*HS+3072}')
    for aa in range(4): cmul(rw, Q+2*(2*aa+1), P0+16, Wr(4+aa))
    pack(rw, Q, PK2, 6)
    for tt in interleave(rp.l, rw.l): a(tt)
    r1, r2 = Rec(), Rec()
    for b in range(8): cmul(r1, Q+2*b, P0+4*b, 18)
    pack(r1, Q, PK, 4)
    for b in range(4): cmul(r2, Q+16+2*b, P0+8*b, Wr(2))
    for b in range(4): cmul(r2, Q+24+2*b, P0+8*b, Wr(3))
    pack(r2, Q+16, PK2, 5)
    for tt in interleave(r1.l, r2.l): a(tt)
    a('s_waitcnt lgkmcnt(0)')
    a('s_barrier')
    stamp(a, 3)
    FR = 4
    def rd(s):
        b = FR + 8*s
        a(f'ds_read_b64_tr_b16 {vr(b,2)}, v109 offset:{512*s}')
        a(f'ds_read_b64_tr_b16 {vr(b+2,2)}, v109 offset:{512*s+256}')
        a(f'ds_read_b64_tr_b16 {vr(b+4,2)}, v108 offset:{512*s}')
        a(f'ds_read_b64_tr_b16 {vr(b+6,2)}, v108 offset:{512*s+256}')
    for s in range(4): rd(s)
    for s in range(12):
        a(f's_waitcnt lgkmcnt({min(12, 4*(11-s))})')
        b = FR + 8*s
        a(f'v_mfma_f32_16x16x32_bf16 v[114:117], {vr(b,4)}, {vr(b+4,4)}, {"0" if s == 0 else "v[114:117]"}')
        if s + 4 < 12: rd(s+4)
    a(f'ds_write_b64 v110, v[114:115] offset:{GT}')
    a(f'ds_write_b64 v111, v[116:117] offset:{GT}')
    a('s_branch K1_B2')
    a.label('K1_Q')
    a('v_lshlrev_b32 v156, 7, v4')
    a('s_bitcmp0_b32 s2, 7')
    a('s_cbranch_scc1 K1_NOPF2')
    a('s_lshr_b32 s16, s2, 8')
    a('s_and_b32 s17, s2, 127')
    a('s_lshl_b32 s17, s17, 14')
    a('s_cmp_eq_u32 s16, 1')
    a('s_cselect_b32 s12, s6, s4')
    a('s_cselect_b32 s13, s7, s5')
    a('s_cmp_eq_u32 s16, 2')
    a('s_cselect_b32 s12, s8, s12')
    a('s_cselect_b32 s13, s9, s13')
    a(f's_mov_b32 s14, {D*F*2}')
    a('s_mov_b32 s15, 0x20000')
    if not OPT.get('x_notouch'):
        a('buffer_load_dword v155, v156, s[12:15], s17 offen')
        a('s_add_u32 s17, s17, 8192')
        a('buffer_load_dword v155, v156, s[12:15], s17 offen')
    if OPT['pf']:
        a('s_cmp_ge_u32 s20, 32')
        a('s_cbranch_scc1 K1_NOPF2')
        a('s_lshr_b32 s16, s20, 3')
        a('s_lshl_b32 s16, s16, 13')
        a('v_add_u32 v156, s16, v156')
        code_prefetch(a, 'k3_kernel', 'CODE_END', 1, 156, 155, 12)
        a.label('K1_NOPF2')
    for i in range(6): a(f'v_mul_f32 v{PRM+i}, v5, v{PRM+i}')
    for c in range(3):
        a(f'v_mul_f32 v{8+2*c}, {f2u(LOG2E)}, v{8+2*c}')
        a(f'v_mul_f32 v{9+2*c}, {f2u(I2PI)}, v{9+2*c}')
    anchors([(14+2*c, 8+2*c, 9+2*c, 16.0, -1) for c in range(3)])
    recs = []
    for c in range(3):
        r = Rec(); qb = 32 + 16*c; z = 14 + 2*c; pk = (80, 88, 114)[c]
        r(f'v_mov_b32 v{qb}, 1.0'); r(f'v_mov_b32 v{qb+1}, 0')
        r(f'v_mov_b32 v{qb+2}, v{z}'); r(f'v_mov_b32 v{qb+3}, v{z+1}')
        for b in range(2, 8): cmul(r, qb+2*b, qb+2*(b-1), z)
        pack(r, qb, pk, 0, 151, 1024*c)
        for b in range(8): cmul(r, qb+2*b, qb+2*((b-1) % 8), z)
        pack(r, qb, pk, 1, 151, 1024*c)
        recs.append(r.l)
    for tt in interleave(*recs): a(tt)
    a('s_waitcnt lgkmcnt(0)')
    a('s_barrier')
    stamp(a, 3)
    a.label('K1_B2')
    a('s_waitcnt lgkmcnt(0)')
    a('s_barrier')
    for e in range(11):
        a(f'ds_read_b32 v{8+e}, v{EX+e} offset:{GT}')
    a('v_mov_b32 v153, 0')
    a('v_and_b32 v5, 3, v0')
    a(f's_mul_i32 s27, s22, {KC}')
    a('v_lshl_add_u32 v5, v5, 3, s27')
    a('ds_write_b64 v5, v[152:153]')
    a('v_and_b32 v5, 15, v0')
    a(f's_mul_i32 s27, s22, {UPS}')
    a('v_lshl_add_u32 v5, v5, 3, s27')
    a(f'ds_write_b64 v5, v[152:153] offset:{UPO}')
    a('s_waitcnt lgkmcnt(2)')
    for e in range(3): a(f'v_cndmask_b32 v{8+e}, v{8+e}, 0, s[72:73]')
    a('v_add_f32 v11, v11, v113')
    for ph in range(4):
        for j in range(4):
            a(f'v_cvt_pk_bf16_f32 v{20+4*ph+j}, v{8+3-ph+2*j}, v{8+4-ph+2*j}')
        a(f'ds_write_b128 v112, {vr(20+4*ph,4)} offset:{KC*ph+32}')
    a('v_lshrrev_b32 v138, 1, v0')
    a('v_mul_u32_u24 v139, 20480, v138')
    a('v_and_b32 v5, 1, v0')
    a('v_lshl_add_u32 v139, v5, 4, v139')
    a(f'v_mul_u32_u24 v154, {2*UPS}, v5')
    a('v_lshl_add_u32 v154, v138, 3, v154')
    a('s_lshl_b32 s30, s3, 5')
    a(f's_mul_i32 s29, s22, {16*20480}')
    a('s_add_u32 s28, s30, s29')
    a('s_add_u32 s28, s28, 0x280000')
    a(f's_add_u32 s29, s28, {64*20480}')
    a('s_waitcnt lgkmcnt(0)')
    a('s_barrier')
    stamp(a, 4)
    lg = Cnt(a, 'lgkmcnt', 15)
    AF = 4; BR = 68; NB = 8; ACC = 104
    def rdB(b):
        r = BR + 4*((b+1) % NB)
        a(f'ds_read_b64 {vr(r,2)}, v148 offset:{64*(b+1)}'); lg.issue()
        a(f'ds_read_b64 {vr(r+2,2)}, v148 offset:{64*(b+1)+8}'); lg.issue(('B', b))
    def rdA(m):
        a(f'ds_read_b64_tr_b16 {vr(AF+4*m,2)}, v147 offset:{256*m+32}'); lg.issue()
        a(f'ds_read_b64_tr_b16 {vr(AF+4*m+2,2)}, v147 offset:{256*m}'); lg.issue(('A', m))
    a('s_lshl_b32 s27, s22, 12')
    a('v_add_u32 v136, s27, v151')
    a(f's_mul_i32 s27, s22, {KC}')
    a('v_add_u32 v137, s27, v151')
    for m in range(16): rdA(m)
    XT = 100
    a('s_cmp_lg_u32 s22, 0')
    a('s_cbranch_scc1 K1_POLL1X')
    a('s_mov_b32 s27, 0')
    a('v_lshlrev_b32 v142, 2, v0')
    a(f's_mov_b64 exec, {(1 << SH) - 1}')
    a.label('K1_POLL1')
    a('buffer_load_dword v141, v142, s[68:71], 0 offen offset:128 sc1')
    a('s_add_u32 s27, s27, 1')
    a(f's_cmp_ge_u32 s27, {SPIN_MAX}')
    a('s_cbranch_scc1 K1_POLL1D')
    a('s_waitcnt vmcnt(0)')
    a('v_cmp_ne_u32 vcc, 1, v141')
    a('s_cbranch_vccz K1_POLL1D')
    a(f's_sleep {OPT.get("sleep1", 4)}')
    a('s_branch K1_POLL1')
    a.label('K1_POLL1D')
    a('s_mov_b64 exec, -1')
    a.label('K1_POLL1X')
    a('s_barrier')
    stamp(a, 2)
    a('buffer_load_dwordx4 v[144:147], v139, s[56:59], s30 offen sc1')
    a('s_waitcnt vmcnt(0)')
    a(f'ds_write_b64 v154, v[144:145] offset:{UPO+128}'); lg.issue()
    a(f'ds_write_b64 v154, v[146:147] offset:{UPO+128+UPS}'); lg.issue()
    lg.wait_all()
    a('s_barrier')
    stamp(a, 5)
    for b in range(-1, 4): rdB(b)
    a(f'buffer_load_dwordx2 {vr(XT,2)}, v149, s[56:59], s28 offen sc1')
    a(f'buffer_load_dwordx2 {vr(XT+2,2)}, v149, s[56:59], s29 offen sc1')
    q = [(lambda b=b: rdB(b)) for b in range(4, 15)]
    wq = []
    issuedB = lambda: max([k[1] for k in lg.tags if k[0] == 'B'])
    for b in range(-1, 15):
        while ('B', b) not in lg.tags: q.pop(0)()
        lg.wait(('B', b))
        r = BR + 4*((b+1) % NB)
        ms = [m for m in range(16) if (m + b) % 2 == 0 and 0 <= (m + b)//2 <= 7]
        for m in ms:
            t = (m + b)//2
            while ('A', m) not in lg.tags: q.pop(0)()
            lg.wait(('A', m))
            acc = ACC + 4*t
            a(f'v_mfma_f32_16x16x32_bf16 {vr(acc,4)}, {vr(AF+4*m,4)}, {vr(r,4)}, {"0" if b == -1 else vr(acc,4)}')
            if wq and wq[0][0] <= 0: wq.pop(0)[1]()
            elif q and issuedB() < b + NB - 1: q.pop(0)()
            wq = [(d-1, f) for d, f in wq]
            if b == 2*t:
                def wr(t=t):
                    a(f'ds_write_b128 v{136+(t>>2)}, {vr(ACC+4*t,4)} offset:{(EXO if t < 4 else 32)+1024*(t&3)}'); lg.issue()
                wq.append((4, wr))
    stamp(a, 6)
    for d, f in wq: f()
    a('s_lshl_b32 s27, s22, 10')
    a('v_add_u32 v140, s27, v151')
    a('s_lshl_b32 s28, s3, 8')
    a('s_mul_i32 s29, s22, 327680')
    a('s_add_u32 s28, s28, s29')
    a(f's_add_u32 s29, s28, {4*327680}')
    a('s_waitcnt vmcnt(0)')
    for h in range(2):
        a(f'v_lshlrev_b32 v{40+4*h}, 16, v{XT+2*h}')
        a(f'v_and_b32 v{41+4*h}, 0xffff0000, v{XT+2*h}')
        a(f'v_lshlrev_b32 v{42+4*h}, 16, v{XT+2*h+1}')
        a(f'v_and_b32 v{43+4*h}, 0xffff0000, v{XT+2*h+1}')
    a('s_waitcnt lgkmcnt(0)')
    a('s_barrier')
    for h in range(2):
        for k in range(4):
            a(f'ds_read_b128 {vr(4+16*h+4*k,4)}, v140 offset:{EXO+4096*k if h == 0 else 32+KC*k}')
    for h in range(2):
        for k in range(4):
            a(f's_waitcnt lgkmcnt({7-4*h-k})')
            for r in range(0, 4, 2):
                a(f'v_pk_add_f32 {vr(40+4*h+r,2)}, {vr(40+4*h+r,2)}, {vr(4+16*h+4*k+r,2)}')
        a(f'v_cvt_pk_bf16_f32 v{48+2*h}, v{40+4*h}, v{41+4*h}')
        a(f'v_cvt_pk_bf16_f32 v{49+2*h}, v{42+4*h}, v{43+4*h}')
        a(f'buffer_store_dwordx2 {vr(48+2*h,2)}, v150, s[60:63], s{28+h} offen')
    stamp_end(a, 0)
    a.label('K1_END')
    a('s_endpgm')
    return a
```

```python
from common import *
K3_GRID = 256
HIMG = 8*1056
STG = HIMG + 12288
NS = 4
NK = 20
LAG = 3
R0 = 15 * 5120
K3_LDS = 163840
SPIN_MAX = 200000

def gen_k34():
    a = Asm()
    a(f's_cmp_ge_u32 s2, {K3_GRID}')
    a('s_cbranch_scc1 K3_END')
    stamp_init(a)
    t0_mark(a, 1 if OPT.get('merged', 1) else 2)
    a(f's_load_dwordx2 s[16:17], s[0:1], {KA["ws"]}')
    a(f's_load_dwordx2 s[6:7], s[0:1], {KA["out"]}')
    a('v_lshrrev_b32 v1, 6, v0')
    a('v_and_b32 v2, 63, v0')
    a('v_readfirstlane_b32 s22, v1')
    a('s_and_b32 s3, s2, 7')
    a('s_lshr_b32 s18, s2, 3')
    a('s_lshr_b32 s19, s18, 2')
    a('s_and_b32 s21, s18, 3')
    if OPT.get('map1', 1):
        a('s_lshr_b32 s23, s3, 2')
        a('s_lshl_b32 s23, s23, 3')
        a('s_add_u32 s23, s23, s19')
        a('s_and_b32 s24, s3, 3')
        a('s_lshl_b32 s24, s24, 2')
        a('s_add_u32 s24, s24, s21')
    else:
        a('s_lshr_b32 s23, s3, 1')
        a('s_lshl_b32 s23, s23, 2')
        a('s_add_u32 s23, s23, s21')
        a('s_and_b32 s24, s3, 1')
        a('s_lshl_b32 s24, s24, 3')
        a('s_add_u32 s24, s24, s19')
    M2 = OPT.get('map2', 1)
    if M2:
        a('s_and_b32 s20, s3, 1')
        a('s_lshl_b32 s20, s20, 2')
        a('s_add_u32 s20, s20, s21')
        a('s_lshr_b32 s5, s3, 1')
        a('s_lshl_b32 s5, s5, 3')
        a('s_add_u32 s5, s5, s19')
        a('s_mov_b32 s4, s19')
        a('s_mov_b32 s63, s21')
    else:
        a('s_mov_b32 s20, s19')
        a('s_lshl_b32 s5, s3, 2')
        a('s_add_u32 s5, s5, s21')
        a('s_mov_b32 s4, s21')
        a('s_mov_b32 s63, s19')
    RK = (12 if M2 else 6) * OPT.get('rot2', 0)
    PFL = 60 if M2 else 120
    a('s_cmp_lt_u32 s22, 4')
    a('s_cbranch_scc1 K3_COMP')
    a('s_sub_u32 s22, s22, 4')
    a('v_lshrrev_b32 v7, 4, v2')
    a('v_and_b32 v9, 15, v2')
    a('v_lshlrev_b32 v8, 11, v7')
    a('v_lshl_add_u32 v8, v9, 4, v8')
    a('v_lshlrev_b32 v10, 4, v2')
    a('s_mul_i32 s27, s23, 163840')
    a('s_lshl_b32 s26, s22, 9')
    a('s_add_u32 s27, s27, s26')
    a('s_mul_i32 s28, s24, 245760')
    a('s_mul_i32 s26, s22, 3072')
    a('s_add_u32 s28, s28, s26')
    a('s_mul_i32 s29, s22, 2112')
    a(f's_add_u32 s29, s29, {R0}')
    a(f's_add_u32 s30, s26, {R0+HIMG}')
    a('s_waitcnt lgkmcnt(0)')
    srd(a, 12, 16, 0x280000, WS_HT)
    srd(a, 8, 16, W1F_BYTES, WS_W1F)
    vm = Cnt(a, 'vmcnt', 63)
    def dma(s):
        slot = (s % NS) * STG
        for i in range(2):
            a(f's_add_u32 m0, s29, {slot+1056*i}')
            a(f's_add_u32 s31, s27, {8192*s+256*i}')
            a('buffer_load_dwordx4 v8, s[12:15], s31 offen lds'); vm.issue()
        a(f's_add_u32 m0, s30, {slot}')
        a(f's_add_u32 s31, s28, {12288*s}')
        for i in range(3):
            a(f'buffer_load_dwordx4 v10, s[8:11], s31 offen offset:{1024*i} lds'); vm.issue(('st', s))
    stamp(a, 1)
    for s in range(LAG): dma(s)
    stamp(a, 2)
    srd(a, 44, 16, W2F_BYTES, WS_W2F)
    a('s_mul_i32 s48, s20, 245760')
    a('s_lshl_b32 s49, s22, 10')
    a(f's_mul_i32 s50, s63, {RK*5120}')
    a('s_add_u32 s50, s50, s49')
    def w2(q):
        a(f's_add_u32 m0, s49, {(4096*q) % 163840}')
        a('s_add_u32 s31, s48, s50')
        a('buffer_load_dwordx4 v10, s[44:47], s31 offen lds'); vm.issue(('w2', q))
        a('s_add_u32 s50, s50, 4096')
        a('s_sub_u32 s51, s50, 245760')
        a('s_cselect_b32 s50, s50, s51')
    a('v_bfe_u32 v3, v2, 2, 3')
    a('v_mul_u32_u24 v12, 1056, v3')
    a('v_lshrrev_b32 v3, 5, v2')
    a('v_lshl_add_u32 v12, v3, 8, v12')
    a('v_and_b32 v3, 3, v2')
    a('v_lshl_add_u32 v12, v3, 3, v12')
    a('s_lshl_b32 s26, s22, 6')
    a('v_add_u32 v12, s26, v12')
    a('s_mov_b32 s33, 0x3f803f80')
    srd(a, 36, 16, 20*L*8, WS_SP)
    srd(a, 52, 16, 256*128, WS_CNT)
    a('v_and_b32 v13, 31, v2')
    a('s_lshl_b32 s26, s22, 8')
    a('v_lshl_add_u32 v13, v13, 3, s26')
    a('s_lshl_b32 s26, s4, 2')
    a('s_add_u32 s26, s26, s22')
    a('s_lshl_b32 s26, s26, 7')
    a('s_add_u32 s26, s26, s48')
    a('s_add_u32 s60, s44, s26')
    a('s_addc_u32 s61, s45, 0')
    npf = 0
    issued = LAG
    q = 0
    QA = 18
    for s in range(NK):
        vm.wait(('st', s))
        if s in (0, 7, 14): stamp(a, 3 + s//7)
        a('s_barrier')
        if issued < NK:
            dma(issued); issued += 1
        a(f's_cmp_lg_u32 s24, {s & 15}')
        a(f's_cbranch_scc1 K3_NOST{s}')
        a(f's_mov_b32 s35, {R0 + (s % NS) * STG}')
        a(f's_mov_b32 s34, {s << 14}')
        a('s_getpc_b64 s[42:43]')
        a(f's_branch K3_STATS')
        a.label(f'K3_NOST{s}')
        if OPT.get('x_allst'):
            a(f'v_add_u32 v14, {R0 + (s % NS) * STG}, v12')
            for T in range(2):
                for hh in range(2):
                    a(f'ds_read_b64_tr_b16 {vr(20+4*T+2*hh,2)}, v14 offset:{hh*512+T*32}')
            a('s_waitcnt lgkmcnt(0)')
            for j in range(4):
                for T in range(2):
                    r = 20 + 4*T + j
                    if OPT['x_allst'] == 1:
                        a(f'v_dot2_f32_bf16 v{28+T}, v{r}, s33, v{28+T}')
                    elif OPT['x_allst'] == 2:
                        a(f'v_lshlrev_b32 v120, 16, v{r}')
                        a(f'v_and_b32 v121, 0xffff0000, v{r}')
                        a(f'v_add_f32 v{28+T}, v{28+T}, v120')
                        a(f'v_add_f32 v{30+T}, v{30+T}, v121')
            if OPT['x_allst'] == 3:
                for T in range(2):
                    a(f'v_mfma_f32_16x16x32_bf16 {vr(120+4*T,4)}, v[128:131], {vr(20+4*T,4)}, {vr(120+4*T,4)}')
        for _ in range(OPT.get('spf', 0)):
            if npf < PFL: a(f's_load_dword s62, s[60:61], {(245760//PFL)*npf}'); npf += 1
        e0 = OPT.get('w2s0', 12); ne = OPT.get('w2ne', 0)
        lim = {17: q+5, 18: q+5, 19: q+5}.get(s, min(ne, max(0, s - e0 + 1)))
        assert lim <= {17: 23, 18: 28, 19: 33}.get(s, 18)
        while q < lim: w2(q); q += 1
    a('s_barrier')
    xq = OPT.get('xq', 32)
    while q < min(xq, 40): w2(q); q += 1
    assert q >= 20
    vm.wait(('w2', 19))
    a('v_add_u32 v18, s49, v10')
    a('s_barrier')
    while q < 40: w2(q); q += 1
    RG = 32
    while q < 60:
        a('s_add_u32 s31, s48, s50')
        a(f'buffer_load_dwordx4 {vr(RG+4*(q-40),4)}, v10, s[44:47], s31 offen'); vm.issue(('w2', q))
        a('s_add_u32 s50, s50, 4096')
        a('s_sub_u32 s51, s50, 245760')
        a('s_cselect_b32 s50, s50, s51')
        q += 1
    stamp(a, 6)
    a('v_add_u32 v19, 0xa000, v18')
    a('s_barrier')
    for qq in range(40, 50):
        vm.wait(('w2', qq))
        a(f'ds_write_b128 v18, {vr(RG+4*(qq-40),4)} offset:{4096*(qq-40)}')
    a('s_barrier')
    for qq in range(50, 60):
        vm.wait(('w2', qq))
        a(f'ds_write_b128 v19, {vr(RG+4*(qq-40),4)} offset:{4096*(qq-50)}')
    a('s_waitcnt lgkmcnt(0)')
    a('s_barrier')
    stamp_end(a, 1 if OPT.get('merged', 1) else 2)
    a('s_endpgm')
    a.label('K3_STATS')
    a('v_add_u32 v14, s35, v12')
    for T in range(2):
        for hh in range(2):
            a(f'ds_read_b64_tr_b16 {vr(20+4*T+2*hh,2)}, v14 offset:{hh*512+T*32}')
    for r in range(16, 20): a(f'v_mov_b32 v{r}, 0')
    a('s_waitcnt lgkmcnt(0)')
    for j in range(4):
        for T in range(2):
            r = 20 + 4*T + j
            a(f'v_dot2_f32_bf16 v{16+2*T}, v{r}, s33, v{16+2*T}')
            a(f'v_dot2_f32_bf16 v{17+2*T}, v{r}, v{r}, v{17+2*T}')
    a('v_permlane16_swap_b32 v16, v18')
    a('v_permlane16_swap_b32 v17, v19')
    a('v_add_f32 v16, v16, v18')
    a('v_add_f32 v17, v17, v19')
    a('v_mov_b32 v18, v16')
    a('v_mov_b32 v19, v17')
    a('v_permlane32_swap_b32 v16, v18')
    a('v_permlane32_swap_b32 v17, v19')
    a('v_add_f32 v16, v16, v18')
    a('v_add_f32 v17, v17, v19')
    a('s_lshl_b32 s35, s23, 10')
    a('s_add_u32 s26, s34, s35')
    a('s_mov_b32 exec_hi, 0')
    a('buffer_store_dwordx2 v[16:17], v13, s[36:39], s26 offen sc1')
    a('s_mov_b32 exec_hi, -1')
    a('s_add_u32 s42, s42, 4')
    a('s_addc_u32 s43, s43, 0')
    a('s_setpc_b64 s[42:43]')

    a.label('K3_COMP')
    a('s_and_b32 s25, s22, 1')
    a('s_lshr_b32 s26, s22, 1')
    HA = 4; WA = 6
    a('v_bfe_u32 v3, v2, 2, 3')
    a('v_mul_u32_u24 v4, 1056, v3')
    a('v_lshrrev_b32 v3, 5, v2')
    a('v_lshl_add_u32 v4, v3, 8, v4')
    a('v_and_b32 v3, 3, v2')
    a('v_lshl_add_u32 v4, v3, 3, v4')
    a('s_lshl_b32 s29, s25, 7')
    a(f's_add_u32 s29, s29, {R0}')
    a('v_add_u32 v4, s29, v4')
    a(f'v_add_u32 v5, {2*STG}, v4')
    a('s_mul_i32 s29, s26, 3072')
    a(f's_add_u32 s29, s29, {R0+HIMG}')
    a('v_lshl_add_u32 v6, v2, 4, s29')
    a(f'v_add_u32 v7, {2*STG}, v6')
    a('v_lshlrev_b32 v8, 4, v2')
    a('v_bfe_u32 v3, v2, 4, 1')
    a('v_mul_u32_u24 v9, 49152, v3')
    a('v_lshrrev_b32 v3, 5, v2')
    a('v_lshl_add_u32 v9, v3, 8, v9')
    a('v_and_b32 v3, 15, v2')
    a('v_lshl_add_u32 v9, v3, 4, v9')
    a('s_waitcnt lgkmcnt(0)')
    srd(a, 12, 16, L*F*2, 0 if OPT.get('hid0') else WS_HID)
    srd(a, 52, 16, 256*128, WS_CNT)
    ACC = 16
    FB = 112
    lg = Cnt(a, 'lgkmcnt', 15)
    def reads(s):
        sl = s % NS; st = sl // 2; off = (sl % 2) * STG
        fb = FB + 40 * (s % 2)
        l = []
        def W(w):
            fr = (w % 3) + 6 * (w // 3)
            def f():
                a(f'ds_read_b128 {vr(fb+4*w,4)}, v{WA+st} offset:{off + fr*1024}'); lg.issue((s, 'W', w))
            l.append(f)
        def H(tt):
            for hh in range(2):
                def f(hh=hh):
                    a(f'ds_read_b64_tr_b16 {vr(fb+24+4*tt+2*hh,2)}, v{HA+st} offset:{off + hh*512 + tt*32}'); lg.issue((s, 'H', tt))
                l.append(f)
        H(0); W(0); W(1); W(2); W(3); W(4); W(5); H(1); H(2); H(3)
        return l
    order = [(tt, w if tt % 2 == 0 else 5 - w) for tt in range(4) for w in range(6)]
    stamp(a, 1)
    a('s_barrier')
    stamp(a, 2)
    for f in reads(0): f()
    if OPT.get('vpf', 0):
        srd(a, 44, 16, W2F_BYTES, WS_W2F)
        a('s_lshl_b32 s27, s19, 2')
        a('s_add_u32 s27, s27, s22')
        a('s_mul_i32 s27, s27, 7680')
        a('s_mul_i32 s28, s20, 245760')
        a('s_add_u32 s27, s27, s28')
        a('v_lshlrev_b32 v3, 7, v2')
        a('buffer_load_dword v15, v3, s[44:47], s27 offen')
    BARPOS = OPT.get('barpos', 6)
    for s in range(NK):
        fb = FB + 40 * (s % 2)
        last = s + 1 == NK
        nxt = reads(s+1) if not last else []
        if s == 10: stamp(a, 3)
        for k, (tt, w) in enumerate(order):
            lg.wait((s, 'W', w)); lg.wait((s, 'H', tt))
            acc = ACC + 4*(6*tt+w)
            if k == BARPOS:
                lg.wait_all()
            a(f'v_mfma_f32_16x16x32_bf16 {vr(acc,4)}, {vr(fb+4*w,4)}, {vr(fb+24+4*tt,4)}, {"0" if s == 0 else vr(acc,4)}')
            if k == BARPOS: a('s_barrier')
            if k >= BARPOS and nxt: nxt.pop(0)()
        assert not nxt
    stamp(a, 4)
    a('s_lshl_b32 s27, s23, 1')
    a('s_add_u32 s30, s27, s25')
    a(f's_mul_i32 s27, s30, {4*49152}')
    a('s_mul_i32 s28, s24, 3072')
    a('s_add_u32 s27, s27, s28')
    a('s_lshl_b32 s28, s26, 11')
    a('s_lshl_b32 s29, s26, 9')
    a('s_add_u32 s29, s29, 1024')
    a('s_add_u32 s28, s28, s27')
    a('s_add_u32 s29, s29, s27')
    a('s_cmp_eq_u32 s26, 0')
    a('s_cbranch_scc1 K3_EPI0')
    HST = ['sc1', '', 'sc0 sc1', 'nt'][OPT.get('x_hst', 0)]
    SG = FB
    for fh in (1, 0):
        if fh == 0: a.label('K3_EPI0')
        pair = (0, 1) if fh == 0 else (1, 2)
        single = 2 if fh == 0 else 0
        for tt in range(4):
            b = ACC + 24*tt
            for p in range(12): a(f'v_max_f32 v{b+p}, 0, v{b+p}')
            for p in range(6): a(f'v_pk_mul_f32 {vr(b+2*p,2)}, {vr(b+2*p,2)}, {vr(b+12+2*p,2)}')
            o = b + 12
            sg_ = SG + 4*(tt >> 1) + 2*(tt & 1)
            a(f'v_cvt_pk_bf16_f32 v{sg_}, v{b+4*single}, v{b+4*single+1}')
            a(f'v_cvt_pk_bf16_f32 v{sg_+1}, v{b+4*single+2}, v{b+4*single+3}')
            for q_, j in enumerate(pair):
                a(f'v_cvt_pk_bf16_f32 v{o+2*q_}, v{b+4*j}, v{b+4*j+1}')
                a(f'v_cvt_pk_bf16_f32 v{o+2*q_+1}, v{b+4*j+2}, v{b+4*j+3}')
            if not OPT.get('x_nost'): a(f'buffer_store_dwordx4 {vr(o,4)}, v8, s[12:15], s28 offen {HST}')
            a('s_add_u32 s28, s28, 49152')
            if tt & 1:
                g4 = SG + 4*(tt >> 1)
                a(f'v_permlane16_swap_b32 v{g4}, v{g4+2}')
                a(f'v_permlane16_swap_b32 v{g4+1}, v{g4+3}')
                if not OPT.get('x_nost'): a(f'buffer_store_dwordx4 {vr(g4,4)}, v9, s[12:15], s29 offen {HST}')
                a(f's_add_u32 s29, s29, {2*49152}')
        if fh == 1: a('s_branch K3_EPID')
    a.label('K3_EPID')
    a('s_mov_b32 s31, s5')
    a('s_lshl_b32 s32, s31, 2')
    a('s_lshl_b32 s27, s25, 1')
    a('s_add_u32 s32, s32, s27')
    a('s_add_u32 s32, s32, s26')
    a('s_xor_b32 s27, s32, 1')
    a('s_mul_i32 s33, s32, 49152')
    a('s_mul_i32 s58, s27, 49152')
    a('s_mul_i32 s27, s26, 5120')
    a('v_add_u32 v14, s27, v8')
    a('v_add_u32 v4, 0x10000, v14')
    a('v_add_u32 v5, 0x20000, v14')
    a('v_lshrrev_b32 v3, 4, v2')
    a('v_and_b32 v12, 15, v2')
    a('v_lshlrev_b32 v6, 10, v3')
    a('v_lshl_add_u32 v6, v12, 1, v6')
    a('v_mul_u32_u24 v7, 1280, v12')
    a('v_lshl_add_u32 v7, v3, 3, v7')
    a('v_mul_u32_u24 v9, 81920, v3')
    a('v_lshl_add_u32 v9, v12, 3, v9')
    srd(a, 36, 16, 0x280000, WS_HT)
    srd(a, 40, 16, 20*L*8, WS_SP)
    srd(a, 44, 6, L*D*2)
    a('v_mov_b32 v10, 1')
    a('v_lshlrev_b32 v13, 7, v2')
    a('s_lshl_b32 s30, s23, 11')
    a('s_lshl_b32 s27, s24, 2')
    a('s_add_u32 s30, s30, s27')
    a('s_lshl_b32 s34, s31, 3')
    a('s_add_u32 s34, s34, s20')
    a('s_lshl_b32 s34, s34, 7')
    a('v_lshlrev_b32 v11, 2, v2')
    a(f's_mul_i32 s56, s63, {RK*1024}')
    a('s_lshl_b32 s27, s26, 10')
    a('s_add_u32 s56, s56, s27')
    AC2 = 16; HR = 56; SPR = 76; WB = 88; NWB = 2; HB = 128; NHB = 8
    a('s_waitcnt vmcnt(0)')
    stamp(a, 5)
    a('s_barrier')
    a('s_cmp_lg_u32 s22, 0')
    a('s_cbranch_scc1 K3_NOSIG')
    a('s_mov_b64 exec, 0xffff')
    a('buffer_store_dword v10, v13, s[52:55], s30 offen sc1')
    a('s_mov_b64 exec, -1')
    a.label('K3_NOSIG')
    vm = Cnt(a, 'vmcnt', 63); lg = Cnt(a, 'lgkmcnt', 15)
    HD = OPT.get('hd', 6)
    def hload(n):
        a('s_add_u32 s57, s33, s56')
        a('s_add_u32 s59, s58, s56')
        fl = "sc1" if OPT.get("hsc1",1) else ""
        a(f'buffer_load_dwordx4 {vr(HB+8*(n%NHB),4)}, v8, s[12:15], s57 offen {fl}'); vm.issue()
        a(f'buffer_load_dwordx4 {vr(HB+8*(n%NHB)+4,4)}, v8, s[12:15], s59 offen {fl}'); vm.issue(('h', n))
        a('s_add_u32 s56, s56, 2048')
        a('s_sub_u32 s57, s56, 49152')
        a('s_cselect_b32 s56, s56, s57')
    def wreads(n):
        pos = ((2*n) % 32) * 5120
        l = []
        for tau in range(5):
            off = pos + tau*1024
            base = (14, 4, 5)[off >> 16]
            def f(tau=tau, off=off, base=base):
                a(f'ds_read_b128 {vr(WB+20*(n%NWB)+4*tau,4)}, v{base} offset:{off & 0xffff}'); lg.issue((n, tau))
            l.append(f)
        return l
    def resid():
        a('s_lshr_b32 s27, s32, 3')
        a('s_mul_i32 s27, s27, 163840')
        a('s_mul_i32 s28, s20, 20480')
        a('s_add_u32 s27, s27, s28')
        a('s_and_b32 s28, s32, 7')
        a('s_lshl_b32 s28, s28, 5')
        a('s_add_u32 s27, s27, s28')
        l = []
        for tau in range(5):
            for r in range(4):
                def f(tau=tau, r=r):
                    a(f'buffer_load_short_d16_hi v{HR+4*tau+r}, v6, s[36:39], s27 offen offset:{r*256}'); vm.issue('res')
                    if r == 3: a('s_add_u32 s27, s27, 4096')
                l.append(f)
        return l
    for f in wreads(0): f()
    for r in range(20): a(f'v_mov_b32 v{HR+r}, 0')
    for f in resid(): f()
    a('s_mov_b64 exec, 0xffff')
    a('s_mov_b32 s35, 0')
    a.label('K3_POLL')
    a(f's_sleep {OPT.get("sleep", 8)}')
    a('buffer_load_dword v12, v11, s[52:55], s34 offen sc1')
    a('s_add_u32 s35, s35, 1')
    a(f's_cmp_ge_u32 s35, {SPIN_MAX}')
    a('s_cbranch_scc1 K3_POLLD')
    a('s_waitcnt vmcnt(0)')
    a('v_cmp_ne_u32 vcc, 1, v12')
    if not OPT.get('x_nopoll'): a('s_cbranch_vccnz K3_POLL')
    a.label('K3_POLLD')
    a('s_mov_b64 exec, -1')
    stamp(a, 6)
    for n in range(HD): hload(n)
    extra = []
    NI = 24
    for n in range(NI):
        nx = n + 1
        nxt = wreads(nx) if nx < NI else []
        vm.wait(('h', n))
        if OPT.get('x_st') and n in (4, 12, 20): stamp(a, {4:1, 12:2, 20:3}[n])
        for k in range(10):
            tau, tl = k >> 1, (k & 1) ^ ((k >> 1) & 1)
            lg.wait((n, tau))
            acc = AC2 + 20*tl + 4*tau
            if k == 0 and nx in (4, 8): lg.wait_all()
            a(f'v_mfma_f32_16x16x32_bf16 {vr(acc,4)}, {vr(WB+20*(n%NWB)+4*tau,4)}, {vr(HB+8*(n%NHB)+4*tl,4)}, {"0" if n == 0 else vr(acc,4)}')
            if k == 0 and nx in (4, 8, 16): a('s_barrier')
            if k < 5 and nxt: nxt.pop(0)()
            if k == 5 and n + HD < NI:
                if OPT.get('x_nohl'): vm.tags[('h', n + HD)] = 0
                else: hload(n + HD)
            if k >= 6 and extra: extra.pop(0)()
        if n == 2:
            a('s_lshl_b32 s29, s32, 7')
            for i in range(5):
                a(f'buffer_load_dwordx2 {vr(SPR+2*i,2)}, v9, s[40:43], s29 offen sc1'); vm.issue('sp')
                a('s_add_u32 s29, s29, 16384')
        if n == 12:
            vm.wait('sp')
            r = Rec()
            for i in (1, 2, 3, 4):
                r(f'v_pk_add_f32 {vr(SPR,2)}, {vr(SPR,2)}, {vr(SPR+2*i,2)}')
            for sw in ('32', '16'):
                r(f'v_mov_b32 v{SPR+2}, v{SPR}')
                r(f'v_mov_b32 v{SPR+3}, v{SPR+1}')
                r(f'v_permlane{sw}_swap_b32 v{SPR}, v{SPR+2}')
                r(f'v_permlane{sw}_swap_b32 v{SPR+1}, v{SPR+3}')
                r(f'v_pk_add_f32 {vr(SPR,2)}, {vr(SPR,2)}, {vr(SPR+2,2)}')
            r(f'v_mul_f32 v{SPR}, {f2u(1.0/640)}, v{SPR}')
            r(f'v_mul_f32 v13, {f2u(1.0/640)}, v{SPR+1}')
            r(f'v_fma_f32 v13, -v{SPR}, v{SPR}, v13')
            r('v_max_f32 v13, 0, v13')
            round_bf16(r, 13, 13)
            r(f'v_add_f32 v13, {f2u(1e-5)}, v13')
            round_bf16(r, 13, 13)
            r('v_sqrt_f32 v13, v13')
            round_bf16(r, 13, 13)
            r('v_rcp_f32 v13, v13')
            r('v_mul_f32 v13, v13, v13')
            extra = [(lambda t=t: a(t)) for t in r.l]
    for f in extra: f()
    a('s_mul_i32 s27, s22, 5120')
    a('s_add_u32 s27, s27, 81920')
    a('v_add_u32 v4, s27, v8')
    a('s_xor_b32 s28, s22, 2')
    a('s_mul_i32 s28, s28, 5120')
    a('s_add_u32 s28, s28, 81920')
    a('v_add_u32 v5, s28, v8')
    for tau in range(5):
        a(f'ds_write_b128 v4, {vr(AC2+20+4*tau,4)} offset:{1024*tau}')
    a('s_waitcnt lgkmcnt(0)')
    a('s_barrier')
    for tau in range(5):
        a(f'ds_read_b128 {vr(WB+4*tau,4)}, v5 offset:{1024*tau}')
    a(f's_mul_i32 s27, s32, {16*1280}')
    a('s_mul_i32 s28, s20, 160')
    a('s_add_u32 s27, s27, s28')
    for tau in range(5):
        a(f's_waitcnt lgkmcnt({4-tau})')
        for r in range(0, 4, 2):
            a(f'v_pk_add_f32 {vr(AC2+4*tau+r,2)}, {vr(AC2+4*tau+r,2)}, {vr(WB+4*tau+r,2)}')
        for r in range(4):
            a(f'v_fma_f32 v{AC2+4*tau+r}, v{AC2+4*tau+r}, v13, v{HR+4*tau+r}')
        a(f'v_cvt_pk_bf16_f32 v{HR+4*tau}, v{AC2+4*tau}, v{AC2+4*tau+1}')
        a(f'v_cvt_pk_bf16_f32 v{HR+4*tau+1}, v{AC2+4*tau+2}, v{AC2+4*tau+3}')
        a(f'buffer_store_dwordx2 {vr(HR+4*tau,2)}, v7, s[44:47], s27 offen offset:{32*tau}')
    stamp_end(a, 1 if OPT.get('merged', 1) else 2)
    a.label('K3_END')
    a('s_endpgm')
    return a
```

```python
from common import *
import math
NLN = 128
K12_GRID = NLN + 640
HS = 6272
GT = 8 * HS
K12_LDS = 53760
RS = 1296
SPIN_MAX = 200000
NCLR = 36
KC = 4128
UPO = 4 * KC
UPS = 1152
EXO = UPO + 4*UPS

def wait_cleared(a, lab, vtmp, vzero, sdbg, scnt):
    a(f's_mov_b32 s{scnt}, 0')
    a.label(lab)
    a(f'v_cmp_eq_u32 vcc, {NCLR}, v{vtmp}')
    a(f's_cbranch_vccnz {lab}D')
    a(f's_add_u32 s{scnt}, s{scnt}, 1')
    a(f's_cmp_ge_u32 s{scnt}, {SPIN_MAX}')
    a(f's_cbranch_scc1 {lab}D')
    a('s_sleep 4')
    a(f'buffer_load_dword v{vtmp}, v{vzero}, {sr(sdbg,4)}, 0 offen sc1')
    a('s_waitcnt vmcnt(0)')
    a(f's_branch {lab}')
    a.label(lab + 'D')

def gen_k12():
    a = Asm()
    NT = 'nt' if OPT.get('nt', 1) else ''
    NTW = 'nt' if OPT.get('ntw', 0) else ''
    PS = 'sc1' if OPT.get('prepsc1', 1) else ''
    a(f's_cmp_ge_u32 s2, {K12_GRID}')
    a('s_cbranch_scc1 K1_END')
    stamp_init(a)
    t0_mark(a, 0)
    if OPT['pf']:
        a(f's_sub_u32 s3, s2, {K12_GRID-24}')
        a('s_cmp_ge_u32 s3, 16')
        a('s_cbranch_scc1 K1_NOPF')
        a('v_lshlrev_b32 v1, 7, v0')
        code_prefetch(a, None, 'k3_kernel', 1, 1, 155, 64)
        a.label('K1_NOPF')
    a(f's_cmp_ge_u32 s2, {NLN}')
    a('s_cbranch_scc1 K1_KGEN')
    a('s_setprio 3')
    a(f's_load_dwordx2 s[4:5], s[0:1], {KA["x"]}')
    a(f's_load_dwordx4 s[52:55], s[0:1], {KA["dbg"]}')
    a(f's_load_dwordx4 s[56:59], s[0:1], {KA["Wg"]}')
    a(f's_load_dwordx2 s[60:61], s[0:1], {KA["Wd"]}')
    a('v_lshrrev_b32 v1, 4, v0')
    a('v_and_b32 v2, 15, v0')
    a('v_mul_u32_u24 v3, 1280, v1')
    a('v_lshl_add_u32 v3, v2, 4, v3')
    a('s_mul_i32 s3, s2, 20480')
    a(f'v_mul_u32_u24 v4, {RS}, v1')
    a('v_lshl_add_u32 v4, v2, 4, v4')
    a('v_lshrrev_b32 v34, 6, v0')
    a('v_and_b32 v7, 63, v0')
    a('v_readfirstlane_b32 s22, v34')
    a('v_lshlrev_b32 v70, 4, v7')
    a('s_lshl_b32 s21, s2, 2')
    a('s_add_u32 s21, s21, s22')
    a('s_waitcnt lgkmcnt(0)')
    stamp(a, 1)
    srd(a, 16, 54, 0x8000, WS_F1)
    a('v_mov_b32 v72, 0')
    a('s_lshl_b32 s65, s2, 7')
    a('s_add_u32 s65, s65, 0x4000')
    srd(a, 8, 4, L*D*2)
    X = 8
    for i in range(5):
        a(f'buffer_load_dwordx4 {vr(X+4*i,4)}, v3, s[8:11], s3 offen offset:{256*i} {NT}')
    srd(a, 24, 52, 256)
    for r in range(4): a(f'v_mov_b32 v{72+r}, 0')
    srd(a, 12, 54, REC_BYTES, WS_REC)
    a('v_bfe_u32 v30, v0, 4, 1')
    a('v_bfe_u32 v31, v0, 5, 1')
    a('v_bfe_u32 v32, v0, 2, 2')
    a('v_and_b32 v33, 3, v0')
    a('v_mul_u32_u24 v35, 320, v34')
    a('v_lshl_add_u32 v35, v31, 5, v35')
    a('v_lshl_add_u32 v35, v33, 3, v35')
    a('v_lshlrev_b32 v36, 1, v30')
    a('v_lshl_add_u32 v36, v32, 2, v36')
    a(f'v_mul_u32_u24 v36, {RS}, v36')
    a('v_add_u32 v36, v36, v35')
    a('s_mul_i32 s23, s22, 3072')
    a('s_add_u32 s23, s23, 41472')
    a('v_lshl_add_u32 v38, v31, 4, v2')
    a('v_mul_u32_u24 v38, 48, v38')
    a('v_lshl_add_u32 v38, v30, 4, v38')
    a('v_add_u32 v38, s23, v38')
    a('v_lshrrev_b32 v39, 1, v7')
    a('v_mul_u32_u24 v39, 48, v39')
    a('v_and_b32 v69, 1, v7')
    a('v_lshl_add_u32 v39, v69, 4, v39')
    a('v_add_u32 v39, s23, v39')
    a('s_mov_b32 s20, 0x3f803f80')
    a('v_mov_b32 v5, 0'); a('v_mov_b32 v6, 0'); a('v_mov_b32 v28, 0'); a('v_mov_b32 v29, 0')
    a('v_mov_b32 v71, 1')
    for i in range(5):
        a(f's_waitcnt vmcnt({4-i})')
        for j in range(4):
            r = X+4*i+j
            a(f'v_dot2_f32_bf16 v{5 if j&1 else 28}, v{r}, s20, v{5 if j&1 else 28}')
            a(f'v_dot2_f32_bf16 v{6 if j&1 else 29}, v{r}, v{r}, v{6 if j&1 else 29}')
    stamp(a, 2)
    a('v_add_f32 v5, v5, v28')
    a('v_add_f32 v6, v6, v29')
    for sh in (8, 4, 2, 1):
        a(f'v_add_f32_dpp v5, v5, v5 row_ror:{sh} row_mask:0xf bank_mask:0xf')
        a(f'v_add_f32_dpp v6, v6, v6 row_ror:{sh} row_mask:0xf bank_mask:0xf')
    a(f'v_mul_f32 v5, {f2u(1.0/640)}, v5')
    a(f'v_mul_f32 v6, {f2u(1.0/640)}, v6')
    a('v_fma_f32 v6, -v5, v5, v6')
    a('v_max_f32 v6, 0, v6')
    round_bf16(a, 5, 5)
    round_bf16(a, 6, 6)
    a(f'v_add_f32 v6, {f2u(1e-5)}, v6')
    round_bf16(a, 6, 6)
    a('v_sqrt_f32 v6, v6')
    round_bf16(a, 6, 6)
    a('v_lshrrev_b32 v28, 16, v5')
    a('v_or_b32 v28, v28, v6')
    a('v_lshlrev_b32 v29, 2, v1')
    a('s_lshl_b32 s64, s2, 6')
    a('s_mov_b32 exec_lo, 0x00010001')
    a('s_mov_b32 exec_hi, 0x00010001')
    a('buffer_store_dword v28, v29, s[16:19], s64 offen sc1')
    a('s_mov_b64 exec, -1')
    a('v_rcp_f32 v6, v6')
    U = 40
    if OPT.get('lnfast', 1): a('v_mul_f32 v5, v5, v6')
    for i in range(5):
        for j in range(4):
            r = X+4*i+j; tt = 60 + 2*j
            a(f'v_lshlrev_b32 v{tt}, 16, v{r}')
            a(f'v_and_b32 v{tt+1}, 0xffff0000, v{r}')
        if OPT.get('lnfast', 1):
            for j in range(8): a(f'v_fma_f32 v{60+j}, v{60+j}, v6, -v5')
        else:
            for j in range(8): a(f'v_sub_f32 v{60+j}, v{60+j}, v5')
            for j in range(4): a(f'v_cvt_pk_bf16_f32 v{61+2*j}, v{60+2*j}, v{61+2*j}')
            for j in range(4):
                tt = 60 + 2*j
                a(f'v_lshlrev_b32 v{tt}, 16, v{tt+1}')
                a(f'v_and_b32 v{tt+1}, 0xffff0000, v{tt+1}')
            for j in range(8): a(f'v_mul_f32 v{60+j}, v{60+j}, v6')
        for j in range(4):
            tt = 60 + 2*j
            a(f'v_cvt_pk_bf16_f32 v{U+4*i+j}, v{tt}, v{tt+1}')
        a(f'ds_write_b128 v4, {vr(U+4*i,4)} offset:{256*i}')
    a('buffer_load_dword v73, v72, s[24:27], 0 offen sc1')
    a('s_waitcnt lgkmcnt(0)')
    a('s_barrier')
    stamp(a, 3)
    O = 76
    lg = Cnt(a, 'lgkmcnt', 15)
    def trd(i):
        if i < 5:
            a(f'ds_read_b64_tr_b16 {vr(O+4*i,2)}, v36 offset:{64*i}'); lg.issue()
            a(f'ds_read_b64_tr_b16 {vr(O+4*i+2,2)}, v36 offset:{64*i+RS}'); lg.issue(i)
        else:
            a(f'ds_read_b64_tr_b16 {vr(O+4*i,2)}, v37 offset:{16*RS+64*(i-5)}'); lg.issue()
            a(f'ds_read_b64_tr_b16 {vr(O+4*i+2,2)}, v37 offset:{20*RS+64*(i-5)}'); lg.issue(i)
    a('s_mul_i32 s23, s22, 5120')
    a('s_add_u32 s3, s3, s23')
    a('s_add_u32 s62, s3, 4096')
    a('s_add_u32 s63, s3, 0x280000')
    for i in range(5): trd(i)
    O2 = 8
    def st(i):
        lg.wait(('r', i))
        a(f'buffer_store_dwordx4 {vr(O2+4*i,4)}, v70, s[12:15], s{3 if i < 4 else 62} offen offset:{1024*(i%4)} sc1')
    for i in range(5):
        lg.wait(i)
        a(f'ds_write_b128 v38, {vr(O+4*i,4)} offset:{1536*(i&1)}'); lg.issue()
        a(f'ds_read_b128 {vr(O2+4*i,4)}, v39 offset:{1536*(i&1)}'); lg.issue(('r', i))
        if i >= 1: st(i-1)
    st(4)
    def arrive(lab, off):
        a('v_mov_b32 v73, 1')
        a('s_mov_b64 exec, 1')
        a('s_lshr_b32 s38, s2, 3')
        a('s_and_b32 s38, s38, 1')
        a('s_lshl_b32 s39, s38, 6')
        a('s_lshl_b32 s38, s38, 2')
        a(f'buffer_atomic_add v73, v72, s[24:27], s39 offen offset:{4*off} sc0 sc1')
        a('s_waitcnt vmcnt(0)')
        a(f'v_cmp_eq_u32 vcc, {NLN//2-1}, v73')
        a(f's_cbranch_vccz {lab}')
        a(f'buffer_store_dword v71, v72, s[24:27], s38 offen offset:{128+off} sc1')
        a.label(lab)
        a('s_mov_b64 exec, -1')
    a('v_lshrrev_b32 v9, 4, v7')
    stamp(a, 1)
    a('s_waitcnt vmcnt(0)')
    stamp(a, 6)
    a('s_barrier')
    a('s_cmp_lg_u32 s22, 0')
    a('s_cbranch_scc1 K1_NOFLAG')
    SH = 2
    a('s_mov_b32 s38, 0')
    a.label('K1_PI')
    a('v_cmp_ne_u32 vcc, 1, v73')
    a('s_cbranch_vccz K1_PID')
    a('s_add_u32 s38, s38, 1')
    a(f's_cmp_ge_u32 s38, {SPIN_MAX}')
    a('s_cbranch_scc1 K1_PID')
    a('buffer_load_dword v73, v72, s[24:27], 0 offen sc1')
    a('s_waitcnt vmcnt(0)')
    a('s_branch K1_PI')
    a.label('K1_PID')
    a('s_mov_b64 exec, 1')
    a('buffer_store_dword v71, v72, s[16:19], s65 offen sc1')
    a('s_mov_b64 exec, -1')
    if OPT.get('hold', 1) == 1: a('s_waitcnt vmcnt(0)')
    a.label('K1_NOFLAG')
    if OPT.get('pprio', 3) != 3: a(f's_setprio {OPT["pprio"]}')
    a('s_cmp_ge_u32 s2, 96')
    a('s_cbranch_scc1 K1_W2')
    a('s_and_b32 s28, s2, 7')
    a('s_mul_i32 s28, s28, 12')
    a('s_lshr_b32 s29, s2, 3')
    a('s_add_u32 s28, s28, s29')
    a('s_cmp_ge_u32 s28, 48')
    a('s_cselect_b32 s8, s58, s56')
    a('s_cselect_b32 s9, s59, s57')
    a('s_cselect_b32 s31, 48, 0')
    a('s_cselect_b32 s32, 6144, 0')
    a(f's_mov_b32 s10, {D*F*2}')
    a('s_mov_b32 s11, 0x20000')
    a('s_sub_u32 s31, s28, s31')
    a(f's_mul_i32 s33, s22, {160*3072}')
    a('s_lshl_b32 s34, s31, 6')
    a('s_add_u32 s33, s33, s34')
    a('v_lshrrev_b32 v3, 2, v7')
    a('v_mul_u32_u24 v8, 3072, v3')
    a('v_and_b32 v12, 3, v7')
    a('v_lshl_add_u32 v8, v12, 4, v8')
    a('s_mul_i32 s23, s22, 10240')
    a('v_lshlrev_b32 v10, 6, v3')
    a('v_lshl_add_u32 v10, v12, 3, v10')
    a('v_add_u32 v10, s23, v10')
    a('s_mul_i32 s34, s31, 0x5556')
    a('s_lshr_b32 s34, s34, 16')
    a(f's_mul_i32 s34, s34, {245760-6*1024}')
    a('s_lshl_b32 s35, s31, 11')
    a('s_add_u32 s34, s34, s35')
    a('s_add_u32 s34, s34, s32')
    a(f's_mul_i32 s35, s22, {5*12288}')
    a('s_add_u32 s34, s34, s35')
    srd(a, 40, 54, W1F_BYTES, WS_W1F)
    if OPT.get('hold', 1): a('s_barrier')
    stamp(a, 4)
    if OPT.get('x_noprep'): a('s_branch K1_LNEND')
    for i in range(10):
        a(f's_add_u32 m0, s23, {1024*i}')
        a(f'buffer_load_dwordx4 v8, s[8:11], s33 offen {NTW} lds')
        a(f's_add_u32 s33, s33, {16*3072}')
    F1 = 16
    a('v_mov_b32 v56, 0'); a('v_mov_b32 v57, 0')
    for kb in range(5):
        a(f's_waitcnt vmcnt({8-2*kb})')
        for fr in range(2):
            for hh in range(2):
                a(f'ds_read_b64_tr_b16 {vr(F1+8*kb+4*fr+2*hh,2)}, v10 offset:{2048*kb+1024*hh+32*fr}')
        if kb > 0:
            a('s_waitcnt lgkmcnt(4)')
            for w in range(4):
                for fr in range(2): a(f'v_dot2_f32_bf16 v{56+fr}, v{F1+8*(kb-1)+4*fr+w}, s20, v{56+fr}')
    a('s_waitcnt lgkmcnt(0)')
    for w in range(4):
        for fr in range(2): a(f'v_dot2_f32_bf16 v{56+fr}, v{F1+32+4*fr+w}, s20, v{56+fr}')
    a('v_lshlrev_b32 v13, 3, v0')
    a('ds_write_b64 v13, v[56:57] offset:40960')
    a('v_lshlrev_b32 v13, 3, v2')
    a('s_waitcnt lgkmcnt(0)')
    a('s_barrier')
    for p in range(16):
        a(f'ds_read_b64 {vr(76+2*p,2)}, v13 offset:{40960+128*p}')
    a('s_waitcnt lgkmcnt(0)')
    for st_ in (8, 4, 2, 1):
        for p in range(st_): a(f'v_pk_add_f32 {vr(76+2*p,2)}, {vr(76+2*p,2)}, {vr(76+2*(p+st_),2)}')
    for fr in range(2): a(f'v_mul_f32 v{76+fr}, {f2u(1.0/640)}, v{76+fr}')
    stamp(a, 5)
    for kb in range(5):
        for fr in range(2):
            r = F1 + 8*kb + 4*fr
            for w in range(4):
                a(f'v_lshlrev_b32 v{60+2*w}, 16, v{r+w}')
                a(f'v_and_b32 v{61+2*w}, 0xffff0000, v{r+w}')
            for w in range(8): a(f'v_sub_f32 v{60+w}, v{60+w}, v{76+fr}')
            for w in range(4): a(f'v_cvt_pk_bf16_f32 v{r+w}, v{60+2*w}, v{61+2*w}')
            a(f'buffer_store_dwordx4 {vr(r,4)}, v70, s[40:43], s34 offen offset:{1024*fr} {PS}')
        a('s_add_u32 s34, s34, 12288')
    a.label('K1_LNEND')
    stamp_end(a, 0)
    a('s_endpgm')
    a.label('K1_W2')
    a('s_sub_u32 s21, s2, 96')
    a('s_lshr_b32 s21, s21, 3')
    a('s_lshl_b32 s21, s21, 2')
    a('s_add_u32 s21, s21, s22')
    a('s_mul_i32 s23, s22, 8448')
    a('s_mul_i32 s34, s21, 0x3334')
    a('s_lshr_b32 s34, s34, 16')
    a('s_mul_i32 s35, s34, 5')
    a('s_sub_u32 s35, s21, s35')
    a('s_and_b32 s37, s2, 7')
    a('s_mul_i32 s37, s37, 3')
    a('s_add_u32 s34, s34, s37')
    srd(a, 8, 60, F*D*2)
    srd(a, 40, 54, W2F_BYTES, WS_W2F)
    a(f'v_mul_u32_u24 v8, {8*1280}, v9')
    a('v_lshl_add_u32 v8, v2, 4, v8')
    a(f's_mul_i32 s36, s34, {64*1280}')
    a('s_lshl_b32 s37, s35, 8')
    a('s_add_u32 s36, s36, s37')
    a('v_and_b32 v12, 3, v7')
    a('v_bfe_u32 v3, v7, 2, 3')
    a('v_mul_u32_u24 v10, 1056, v3')
    a('v_lshrrev_b32 v3, 5, v7')
    a('v_lshl_add_u32 v10, v3, 8, v10')
    a('v_lshl_add_u32 v10, v12, 3, v10')
    a('v_add_u32 v10, s23, v10')
    a('v_add_u32 v11, 512, v10')
    a('v_bfe_u32 v3, v7, 2, 2')
    a('v_mul_u32_u24 v14, 1056, v3')
    a('v_lshl_add_u32 v14, v9, 8, v14')
    a('v_lshl_add_u32 v14, v12, 3, v14')
    a('v_add_u32 v14, s23, v14')
    a('v_add_u32 v15, 4224, v14')
    a('s_mul_i32 s31, s34, 0x5556')
    a('s_lshr_b32 s31, s31, 16')
    a('s_mul_i32 s31, s31, 3')
    a('s_sub_u32 s31, s34, s31')
    a('s_mul_i32 s30, s34, 10240')
    a('s_lshl_b32 s35, s35, 3')
    for j in range(8):
        a(f's_add_u32 s37, s35, {j}')
        a('s_mul_i32 s38, s37, 0xcccd')
        a('s_lshr_b32 s38, s38, 18')
        a(f's_mul_i32 s38, s38, {245760-5*1024}')
        a('s_lshl_b32 s37, s37, 10')
        a('s_add_u32 s37, s37, s38')
        a(f's_add_u32 s{44+j}, s37, s30')
    if OPT.get('hold', 1): a('s_barrier')
    stamp(a, 4)
    lg.done = lg.n
    a('s_cmp_ge_u32 s21, 15')
    a('s_cbranch_scc1 K1_MISC')
    if OPT.get('x_noprep'): a('s_branch K1_LNEND')
    for u in range(2):
        for i in range(8):
            a(f's_add_u32 m0, s23, {1056*i}')
            a(f's_add_u32 s37, s36, {(32*u+i)*1280}')
            a(f'buffer_load_dwordx4 v8, s[8:11], s37 offen {NTW} lds')
        if u == 1:
            for j in range(8):
                a(f'buffer_store_dwordx4 {vr(16+4*j,4)}, v70, s[40:43], s{44+j} offen {PS}')
                a(f's_add_u32 s{44+j}, s{44+j}, 5120')
        a(f's_cmp_eq_u32 s31, {2 if u == 0 else 0}')
        a('s_cselect_b64 s[32:33], -1, 0')
        a('v_cndmask_b32 v4, v10, v14, s[32:33]')
        a('v_cndmask_b32 v5, v11, v15, s[32:33]')
        a(f's_waitcnt vmcnt({0 if u == 0 else 8})')
        for j in range(8):
            r = (16 if u == 0 else 76) + 4*j
            a(f'ds_read_b64_tr_b16 {vr(r,2)}, v4 offset:{32*j}')
            a(f'ds_read_b64_tr_b16 {vr(r+2,2)}, v5 offset:{32*j}')
        a('s_waitcnt lgkmcnt(0)')
    for j in range(8):
        a(f'buffer_store_dwordx4 {vr(76+4*j,4)}, v70, s[40:43], s{44+j} offen {PS}')
    a('s_branch K1_LNEND')
    a.label('K1_MISC')
    srd(a, 12, 54, 1280*128, WS_CNT)
    a('s_and_b32 s23, s2, 7')
    a('s_mul_i32 s23, s23, 20480')
    a('v_lshlrev_b32 v3, 7, v7')
    for i in range(3):
        a('buffer_store_dword v72, v3, s[12:15], s23 offen')
        a('s_add_u32 s23, s23, 8192')
    a('s_branch K1_LNEND')

    a.label('K1_KGEN')
    if OPT.get('kprio', 1): a('s_setprio 2')
    a(f's_load_dwordx8 s[4:11], s[0:1], {KA["Are"]}')
    a(f's_load_dwordx8 s[12:19], s[0:1], {KA["Cre"]}')
    a(f's_load_dwordx4 s[52:55], s[0:1], {KA["dbg"]}')
    a(f's_load_dwordx4 s[74:77], s[0:1], {KA["Wg"]}' if False else '')
    a(f's_sub_u32 s20, s2, {NLN}')
    a('s_and_b32 s3, s20, 7')
    a('s_mul_i32 s3, s3, 80')
    a('s_lshr_b32 s21, s20, 3')
    a('s_add_u32 s3, s3, s21')
    a('v_lshrrev_b32 v1, 6, v0')
    a('v_lshlrev_b32 v2, 1, v0')
    a('v_readfirstlane_b32 s22, v1')
    a('s_mul_i32 s23, s3, 384')
    a('s_lshl_b32 s24, s3, 1')
    a('s_and_b32 s24, s24, 0xfffffffc')
    a('v_and_b32 v4, 63, v0')
    a('v_lshlrev_b32 v7, 1, v4')
    a('s_waitcnt lgkmcnt(0)')
    stamp(a, 1)
    a('s_load_dword s25, s[16:17], s24')
    a('s_load_dword s26, s[18:19], s24')
    PRM = 8
    for i in range(2): srd(a, 28 + 4*i, 4 + 2*i, D*N*2)
    a('s_cmp_eq_u32 s22, 3')
    a('s_cbranch_scc1 K1_LDQ')
    for i in range(6):
        s = 28 + 4*i
        if i >= 2: srd(a, s, 4 + 2*i, D*N*2)
        a(f'buffer_load_short_d16_hi v{PRM+i}, v2, {sr(s,4)}, s23 offen {NT}')
    a('s_branch K1_LDD')
    a.label('K1_LDQ')
    a(f's_cmp_lg_u32 s2, {K12_GRID-1}')
    a('s_cbranch_scc1 K1_NOINIT')
    srd(a, 64, 54, 0x8000, WS_F1)
    srd(a, 68, 52, 256)
    a('v_lshlrev_b32 v8, 7, v4')
    a('v_mov_b32 v9, 0')
    a('v_mov_b32 v10, 1')
    a('s_mov_b32 s27, 0x4000')
    a('buffer_store_dword v9, v8, s[64:67], s27 offen sc1')
    a('s_mov_b32 s27, 0x6000')
    a('buffer_store_dword v9, v8, s[64:67], s27 offen sc1')
    a('s_waitcnt vmcnt(0)')
    a('s_mov_b64 exec, 1')
    a('buffer_store_dword v10, v9, s[68:71], 0 offen sc1')
    a('s_mov_b64 exec, -1')
    a('s_waitcnt vmcnt(0)')
    a.label('K1_NOINIT')
    for c in range(3):
        for i in range(2):
            a(f'buffer_load_short_d16_hi v{PRM+2*c+i}, v7, {sr(28+4*i,4)}, s23 offen offset:{128*c} {NT}')
    a(f's_load_dwordx4 s[4:7], s[0:1], {KA["Wg"]}')
    a(f's_load_dwordx2 s[8:9], s[0:1], {KA["Wd"]}')
    a.label('K1_LDD')
    srd(a, 56, 54, REC_BYTES, WS_REC)
    srd(a, 60, 54, 0x280000, WS_HT)
    srd(a, 68, 52, 256)
    srd(a, 64, 54, 0x8000, WS_F1)
    EX = 136
    a('v_lshlrev_b32 v3, 3, v0')
    for e in range(11): a(f'v_add_u32 v{EX+e}, {e-3}, v3')
    for e in range(3): a(f'v_max_i32 v{EX+e}, 0, v{EX+e}')
    for e in range(11): a(f'v_cvt_f32_u32 v{20+e}, v{EX+e}')
    for e in range(0, 12, 2): a(f'v_cvt_pk_bf16_f32 v{20+e}, v{20+e}, v{21+e}')
    for e in range(0, 12, 2):
        a(f'v_lshrrev_b32 v{21+e}, 16, v{20+e}')
        a(f'v_and_b32 v{20+e}, 0xffff, v{20+e}')
    for e in range(11): a(f'v_subrev_u32 v{20+e}, {0x4300-128}, v{20+e}')
    a('v_mov_b32 v5, 128')
    for e in range(11): a(f'v_med3_i32 v{EX+e}, v{EX+e}, v{20+e}, v5')
    for e in range(11): a(f'v_lshlrev_b32 v{EX+e}, 2, v{EX+e}')
    a('v_bfe_u32 v5, v0, 1, 1')
    a(f'v_mul_u32_u24 v108, {HS}, v5')
    a('v_lshrrev_b32 v5, 2, v4')
    a('v_lshl_add_u32 v108, v5, 4, v108')
    a('v_and_b32 v5, 1, v0')
    a('v_lshl_add_u32 v108, v5, 3, v108')
    a(f's_mul_i32 s27, s22, {2*HS}')
    a(f's_add_u32 s27, s27, {2*HS}')
    a('v_add_u32 v109, s27, v108')
    a('v_and_b32 v5, 15, v0')
    a('v_bfe_u32 v6, v0, 4, 2')
    a('v_lshlrev_b32 v110, 4, v5')
    a('v_lshl_add_u32 v110, v6, 2, v110')
    a('v_add_u32 v111, 2, v110')
    a('s_cmp_eq_u32 s22, 0')
    a('s_cbranch_scc1 K1_GA')
    a('v_lshlrev_b32 v110, 1, v5')
    a('v_lshl_add_u32 v110, v6, 6, v110')
    a('v_add_u32 v110, 512, v110')
    a('v_add_u32 v111, 32, v110')
    a('s_cmp_lg_u32 s22, 1')
    a('s_cbranch_scc1 K1_GA')
    a('v_lshlrev_b32 v110, 3, v5')
    a('v_lshl_add_u32 v110, v6, 2, v110')
    a('v_add_u32 v110, 256, v110')
    a('v_lshlrev_b32 v111, 2, v5')
    a('v_lshl_add_u32 v111, v6, 6, v111')
    a('v_add_u32 v111, 256, v111')
    a('v_cmp_gt_u32 vcc, 2, v6')
    a('v_cndmask_b32 v110, v111, v110, vcc')
    a('v_add_u32 v111, 2, v110')
    a.label('K1_GA')
    a('v_lshlrev_b32 v110, 2, v110')
    a('v_lshlrev_b32 v111, 2, v111')
    a('v_lshlrev_b32 v112, 4, v0')
    a('v_and_b32 v14, 3, v4')
    a('v_bfe_u32 v15, v4, 2, 2')
    a('v_sub_u32 v14, v14, v15')
    a('v_lshlrev_b32 v14, 3, v14')
    a('v_lshlrev_b32 v15, 6, v6')
    a('v_sub_u32 v14, v14, v15')
    a(f's_mul_i32 s27, s22, {KC}')
    a('s_add_u32 s27, s27, 224')
    a('v_add_u32 v147, s27, v14')
    a('v_lshlrev_b32 v14, 3, v5')
    a('v_lshl_add_u32 v14, v6, 4, v14')
    a(f's_mul_i32 s27, s22, {UPS}')
    a(f's_add_u32 s27, s27, {UPO+8}')
    a('v_add_u32 v148, s27, v14')
    a('v_lshl_add_u32 v149, v5, 2, v6')
    a('s_lshl_b32 s27, s22, 7')
    a(f's_add_u32 s27, s27, {UPO+128}')
    a('v_lshl_add_u32 v157, v149, 1, s27')
    a('v_lshlrev_b32 v149, 4, v149')
    a('v_lshrrev_b32 v150, 3, v5')
    a('v_mul_u32_u24 v150, 163840, v150')
    a('v_and_b32 v14, 7, v5')
    a('v_lshl_add_u32 v150, v14, 5, v150')
    a('v_lshl_add_u32 v150, v6, 3, v150')
    a('v_lshlrev_b32 v151, 4, v4')
    a('v_mov_b32 v152, 0')
    a('s_waitcnt lgkmcnt(0)')
    a('s_bitcmp1_b32 s3, 0')
    a('s_cselect_b32 s24, 0, 16')
    a('s_lshl_b32 s25, s25, s24')
    a('s_and_b32 s25, s25, 0xffff0000')
    a('s_lshl_b32 s26, s26, s24')
    a('s_and_b32 s26, s26, 0xffff0000')
    a('v_mov_b32 v5, s26')
    a('v_cmp_eq_u32 s[72:73], 0, v0')
    a('v_cndmask_b32 v113, 0, v5, s[72:73]')
    a(f'v_mov_b32 v5, {f2u(math.log2(math.e))}')
    a('v_mul_f32 v5, s25, v5')
    a('v_exp_f32 v5, v5')
    round_bf16(a, 5, 5)
    a('s_waitcnt vmcnt(0)')
    stamp(a, 2)
    for i in range(6):
        a(f'v_and_b32 v{PRM+i}, 0xffff0000, v{PRM+i}')
    a('s_cmp_eq_u32 s22, 3')
    a('s_cbranch_scc1 K1_Q')
    LOG2E = math.log2(math.e); I2PI = 1/(2*math.pi)
    def anchors(lst):
        for k, (r, ra, ia, v, sg_) in enumerate(lst):
            tt = 20 + 3*k
            a(f'v_mul_f32 v{tt}, {f2u(v)}, v{ra}')
            a(f'v_mul_f32 v{tt+1}, {f2u(v*sg_)}, v{ia}')
        for k in range(len(lst)): a(f'v_fract_f32 v{21+3*k}, v{21+3*k}')
        for k in range(len(lst)):
            tt = 20 + 3*k
            a(f'v_exp_f32 v{tt}, v{tt}')
            a(f'v_cos_f32 v{tt+2}, v{tt+1}')
            a(f'v_sin_f32 v{tt+1}, v{tt+1}')
        for k, (r, ra, ia, v, sg_) in enumerate(lst):
            tt = 20 + 3*k
            a(f'v_mul_f32 v{r}, v{tt}, v{tt+2}')
            a(f'v_mul_f32 v{r+1}, v{tt}, v{tt+1}')
    def pack(rec, base, pk, hidx, addr=112, off=0):
        for j in range(4):
            rec(f'v_cvt_pk_bf16_f32 v{pk+j}, v{base+4*j}, v{base+4*j+2}')
            rec(f'v_cvt_pk_bf16_f32 v{pk+4+j}, v{base+4*j+1}, v{base+4*j+3}')
        rec(f'ds_write_b128 v{addr}, {vr(pk,4)} offset:{hidx*HS+off}')
        rec(f'ds_write_b128 v{addr}, {vr(pk+4,4)} offset:{hidx*HS+3072+off}')
    for i in range(4): a(f'v_mul_f32 v{PRM+i}, v5, v{PRM+i}')
    a(f'v_mul_f32 v8, {f2u(LOG2E)}, v8')
    a(f'v_mul_f32 v9, {f2u(I2PI)}, v9')
    P0 = 32
    cmul(a, P0, 10, 12)
    anchors([(14, 8, 9, 1.0, 1), (18, 8, 9, 256.0, 1)])
    Q = 64; PK = 20; PK2 = 114; W = 122
    def Wr(k): return 18 if k == 1 else W + 2*(k-2)
    rp, rw = Rec(), Rec()
    for b in range(1, 16):
        cmul(rp, P0+2*b, P0+2*(b-1), 14)
        if b == 7: pack(rp, P0, PK, 2)
    pack(rp, P0+16, PK, 3)
    for k in range(2, 9): cmul(rw, Wr(k), Wr(k-1), 18)
    for aa in range(4): cmul(rw, Q+2*(2*aa), P0, Wr(4+aa))
    cmul(rw, Q+16, P0, Wr(8))
    rw(f'v_cvt_pk_bf16_f32 v{PK2}, v{Q+16}, v{Q+16}')
    rw(f'v_cvt_pk_bf16_f32 v{PK2+1}, v{Q+17}, v{Q+17}')
    rw(f'ds_write_b32 v112, v{PK2} offset:{7*HS}')
    rw(f'ds_write_b32 v112, v{PK2+1} offset:{7*HS+3072}')
    for aa in range(4): cmul(rw, Q+2*(2*aa+1), P0+16, Wr(4+aa))
    pack(rw, Q, PK2, 6)
    for tt in interleave(rp.l, rw.l): a(tt)
    r1, r2 = Rec(), Rec()
    for b in range(8): cmul(r1, Q+2*b, P0+4*b, 18)
    pack(r1, Q, PK, 4)
    for b in range(4): cmul(r2, Q+16+2*b, P0+8*b, Wr(2))
    for b in range(4): cmul(r2, Q+24+2*b, P0+8*b, Wr(3))
    pack(r2, Q+16, PK2, 5)
    for tt in interleave(r1.l, r2.l): a(tt)
    a('s_waitcnt lgkmcnt(0)')
    a('s_barrier')
    stamp(a, 3)
    FR = 4
    def rd(s):
        b = FR + 8*s
        a(f'ds_read_b64_tr_b16 {vr(b,2)}, v109 offset:{512*s}')
        a(f'ds_read_b64_tr_b16 {vr(b+2,2)}, v109 offset:{512*s+256}')
        a(f'ds_read_b64_tr_b16 {vr(b+4,2)}, v108 offset:{512*s}')
        a(f'ds_read_b64_tr_b16 {vr(b+6,2)}, v108 offset:{512*s+256}')
    for s in range(4): rd(s)
    for s in range(12):
        a(f's_waitcnt lgkmcnt({min(12, 4*(11-s))})')
        b = FR + 8*s
        a(f'v_mfma_f32_16x16x32_bf16 v[114:117], {vr(b,4)}, {vr(b+4,4)}, {"0" if s == 0 else "v[114:117]"}')
        if s + 4 < 12: rd(s+4)
    a(f'ds_write_b64 v110, v[114:115] offset:{GT}')
    a(f'ds_write_b64 v111, v[116:117] offset:{GT}')
    a('s_branch K1_B2')
    a.label('K1_Q')
    a('v_lshlrev_b32 v156, 7, v4')
    a('s_bitcmp0_b32 s2, 7')
    a('s_cbranch_scc1 K1_NOPF2')
    TN = 'nt' if OPT.get('tnt', 1) else ''
    a('s_lshr_b32 s16, s2, 8')
    a('s_lshl_b32 s16, s16, 4')
    a('s_bfe_u32 s17, s2, 0x40003')
    a('s_add_u32 s16, s16, s17')
    a('s_and_b32 s18, s2, 7')
    a(f's_mov_b32 s14, {D*F*2}')
    a('s_mov_b32 s15, 0x20000')
    if not OPT.get('x_notouch'):
        a('s_cmp_ge_u32 s16, 30')
        a('s_cbranch_scc1 K1_TW2')
        a('s_cmp_ge_u32 s18, 4')
        a('s_cselect_b32 s12, s6, s4')
        a('s_cselect_b32 s13, s7, s5')
        a('s_and_b32 s17, s18, 3')
        a('s_mul_i32 s17, s17, 768')
        a('s_lshl_b32 s16, s16, 7')
        a('s_mov_b32 s19, 0xaaab')
        for t in range(2):
            a('v_add_u32 v20, s16, v4')
            if t: a('v_add_u32 v20, 64, v20')
            a('v_mul_u32_u24 v21, s19, v20')
            a('v_lshrrev_b32 v21, 18, v21')
            a(f'v_mul_u32_u24 v21, {3072-768}, v21')
            a('v_lshl_add_u32 v21, v20, 7, v21')
            a(f'buffer_load_dword v155, v21, s[12:15], s17 offen {TN}')
        a('s_branch K1_TWD')
        a.label('K1_TW2')
        a('s_cmp_ge_u32 s16, 45')
        a('s_cbranch_scc1 K1_TWD')
        a('s_mov_b32 s12, s8')
        a('s_mov_b32 s13, s9')
        a('s_sub_u32 s16, s16, 30')
        a('s_lshl_b32 s16, s16, 14')
        a('s_mul_i32 s17, s18, 245760')
        a('s_add_u32 s17, s17, s16')
        a(f'buffer_load_dword v155, v156, s[12:15], s17 offen {TN}')
        a('s_add_u32 s17, s17, 8192')
        a(f'buffer_load_dword v155, v156, s[12:15], s17 offen {TN}')
        a.label('K1_TWD')
    if OPT['pf']:
        a('s_cmp_ge_u32 s20, 32')
        a('s_cbranch_scc1 K1_NOPF2')
        a('s_lshr_b32 s16, s20, 3')
        a('s_lshl_b32 s16, s16, 13')
        a('v_add_u32 v156, s16, v156')
        code_prefetch(a, 'k3_kernel', 'CODE_END', 1, 156, 155, 12)
        a.label('K1_NOPF2')
    for i in range(6): a(f'v_mul_f32 v{PRM+i}, v5, v{PRM+i}')
    for c in range(3):
        a(f'v_mul_f32 v{8+2*c}, {f2u(LOG2E)}, v{8+2*c}')
        a(f'v_mul_f32 v{9+2*c}, {f2u(I2PI)}, v{9+2*c}')
    anchors([(14+2*c, 8+2*c, 9+2*c, 16.0, -1) for c in range(3)])
    recs = []
    for c in range(3):
        r = Rec(); qb = 32 + 16*c; z = 14 + 2*c; pk = (80, 88, 114)[c]
        r(f'v_mov_b32 v{qb}, 1.0'); r(f'v_mov_b32 v{qb+1}, 0')
        r(f'v_mov_b32 v{qb+2}, v{z}'); r(f'v_mov_b32 v{qb+3}, v{z+1}')
        for b in range(2, 8): cmul(r, qb+2*b, qb+2*(b-1), z)
        pack(r, qb, pk, 0, 151, 1024*c)
        for b in range(8): cmul(r, qb+2*b, qb+2*((b-1) % 8), z)
        pack(r, qb, pk, 1, 151, 1024*c)
        recs.append(r.l)
    for tt in interleave(*recs): a(tt)
    a('s_waitcnt lgkmcnt(0)')
    a('s_barrier')
    stamp(a, 3)
    a.label('K1_B2')
    a('s_waitcnt lgkmcnt(0)')
    a('s_barrier')
    a('buffer_load_dword v159, v152, s[68:71], 0 offen sc1')
    for e in range(11):
        a(f'ds_read_b32 v{8+e}, v{EX+e} offset:{GT}')
    a('v_mov_b32 v153, 0')
    a('v_and_b32 v5, 3, v0')
    a(f's_mul_i32 s27, s22, {KC}')
    a('v_lshl_add_u32 v5, v5, 3, s27')
    a('ds_write_b64 v5, v[152:153]')
    a('v_and_b32 v5, 15, v0')
    a(f's_mul_i32 s27, s22, {UPS}')
    a('v_lshl_add_u32 v5, v5, 3, s27')
    a(f'ds_write_b64 v5, v[152:153] offset:{UPO}')
    a('s_waitcnt lgkmcnt(2)')
    for e in range(3): a(f'v_cndmask_b32 v{8+e}, v{8+e}, 0, s[72:73]')
    a('v_add_f32 v11, v11, v113')
    for ph in range(4):
        for j in range(4):
            a(f'v_cvt_pk_bf16_f32 v{20+4*ph+j}, v{8+3-ph+2*j}, v{8+4-ph+2*j}')
        a(f'ds_write_b128 v112, {vr(20+4*ph,4)} offset:{KC*ph+32}')
    a('v_lshrrev_b32 v138, 1, v0')
    a('v_mul_u32_u24 v139, 20480, v138')
    a('v_and_b32 v5, 1, v0')
    a('v_lshl_add_u32 v139, v5, 4, v139')
    a(f'v_mul_u32_u24 v154, {2*UPS}, v5')
    a('v_lshl_add_u32 v154, v138, 3, v154')
    a('s_lshl_b32 s30, s3, 5')
    a('s_lshl_b32 s28, s22, 10')
    a('s_add_u32 s29, s28, 4096')
    a('s_waitcnt lgkmcnt(0)')
    a('s_barrier')
    stamp(a, 4)
    lg = Cnt(a, 'lgkmcnt', 15)
    AF = 4; BR = 68; NB = 8; ACC = 104
    def rdB(b):
        r = BR + 4*((b+1) % NB)
        a(f'ds_read_b64 {vr(r,2)}, v148 offset:{64*(b+1)}'); lg.issue()
        a(f'ds_read_b64 {vr(r+2,2)}, v148 offset:{64*(b+1)+8}'); lg.issue(('B', b))
    def rdA(m):
        a(f'ds_read_b64_tr_b16 {vr(AF+4*m,2)}, v147 offset:{256*m+32}'); lg.issue()
        a(f'ds_read_b64_tr_b16 {vr(AF+4*m+2,2)}, v147 offset:{256*m}'); lg.issue(('A', m))
    a('s_lshl_b32 s27, s22, 12')
    a('v_add_u32 v136, s27, v151')
    a(f's_mul_i32 s27, s22, {KC}')
    a('v_add_u32 v137, s27, v151')
    for m in range(16): rdA(m)
    XT = 100
    a('s_mov_b32 s27, 0')
    a.label('K1_POLL0')
    a('s_waitcnt vmcnt(0)')
    a('v_cmp_ne_u32 vcc, 1, v159')
    a('s_cbranch_vccz K1_POLL0D')
    a('s_add_u32 s27, s27, 1')
    a(f's_cmp_ge_u32 s27, {SPIN_MAX}')
    a('s_cbranch_scc1 K1_POLL0D')
    a('s_sleep 4')
    a('buffer_load_dword v159, v152, s[68:71], 0 offen sc1')
    a('s_branch K1_POLL0')
    a.label('K1_POLL0D')
    a('v_lshlrev_b32 v142, 7, v138')
    a('s_mov_b32 s33, 0x4000')
    a('s_mov_b32 s27, 0')
    a.label('K1_POLL1')
    a('buffer_load_dword v141, v142, s[64:67], s33 offen sc1')
    a('s_waitcnt vmcnt(0)')
    a('v_cmp_eq_u32 vcc, 1, v141')
    a('s_and_saveexec_b64 s[34:35], vcc')
    a('s_cbranch_execz K1_POLL1N')
    a('buffer_load_dwordx4 v[144:147], v139, s[56:59], s30 offen sc1')
    a.label('K1_POLL1N')
    a('s_andn2_b64 exec, s[34:35], exec')
    a('s_cbranch_execz K1_POLL1D')
    a('s_add_u32 s27, s27, 1')
    a(f's_cmp_ge_u32 s27, {SPIN_MAX}')
    a('s_cbranch_scc1 K1_POLL1D')
    a(f's_sleep {OPT.get("sleep1", 4)}')
    a('s_branch K1_POLL1')
    a.label('K1_POLL1D')
    a('s_mov_b64 exec, -1')
    stamp(a, 2)
    a('s_waitcnt vmcnt(0)')
    a(f'ds_write_b64 v154, v[144:145] offset:{UPO+128}'); lg.issue()
    a(f'ds_write_b64 v154, v[146:147] offset:{UPO+128+UPS}'); lg.issue()
    lg.wait_all()
    a('s_barrier')
    if OPT.get('kprio', 1): a('s_setprio 0')
    stamp(a, 5)
    for b in range(-1, 4): rdB(b)
    a('buffer_load_dwordx4 v[100:103], v149, s[64:67], s28 offen sc1')
    a('buffer_load_dwordx4 v[144:147], v149, s[64:67], s29 offen sc1')
    for r in range(8): a(f'v_mov_b32 v{158+r}, 0')
    for h in range(2):
        for r in range(4):
            a(f'ds_read_u16_d16_hi v{158+4*h+r}, v157 offset:{UPS*r+512*h}'); lg.issue()
    q = [(lambda b=b: rdB(b)) for b in range(4, 15)]
    wq = []
    issuedB = lambda: max([k[1] for k in lg.tags if k[0] == 'B'])
    for b in range(-1, 15):
        while ('B', b) not in lg.tags: q.pop(0)()
        lg.wait(('B', b))
        r = BR + 4*((b+1) % NB)
        ms = [m for m in range(16) if (m + b) % 2 == 0 and 0 <= (m + b)//2 <= 7]
        for m in ms:
            t = (m + b)//2
            while ('A', m) not in lg.tags: q.pop(0)()
            lg.wait(('A', m))
            acc = ACC + 4*t
            a(f'v_mfma_f32_16x16x32_bf16 {vr(acc,4)}, {vr(AF+4*m,4)}, {vr(r,4)}, {"0" if b == -1 else vr(acc,4)}')
            if wq and wq[0][0] <= 0: wq.pop(0)[1]()
            elif q and issuedB() < b + NB - 1: q.pop(0)()
            wq = [(d-1, f) for d, f in wq]
            if b == 2*t:
                def wr(t=t):
                    a(f'ds_write_b128 v{136+(t>>2)}, {vr(ACC+4*t,4)} offset:{(EXO if t < 4 else 32)+1024*(t&3)}'); lg.issue()
                wq.append((4, wr))
    stamp(a, 6)
    if OPT.get('kprio', 1): a('s_setprio 1')
    for d, f in wq: f()
    a('s_lshl_b32 s27, s22, 10')
    a('v_add_u32 v140, s27, v151')
    a('s_lshl_b32 s28, s3, 8')
    a('s_mul_i32 s29, s22, 327680')
    a('s_add_u32 s28, s28, s29')
    a(f's_add_u32 s29, s28, {4*327680}')
    a('s_waitcnt vmcnt(0)')
    for h in range(2):
        for r in range(4):
            sv = (100, 144)[h] + r
            a(f'v_lshlrev_b32 v{40+4*h+r}, 16, v{sv}')
            a(f'v_and_b32 v{sv}, 0xffff0000, v{sv}')
            a(f'v_fmac_f32 v{40+4*h+r}, v{sv}, v{158+4*h+r}')
    a('s_waitcnt lgkmcnt(0)')
    a('s_barrier')
    for h in range(2):
        for k in range(4):
            a(f'ds_read_b128 {vr(4+16*h+4*k,4)}, v140 offset:{EXO+4096*k if h == 0 else 32+KC*k}')
    for h in range(2):
        for k in range(4):
            a(f's_waitcnt lgkmcnt({7-4*h-k})')
            for r in range(0, 4, 2):
                a(f'v_pk_add_f32 {vr(40+4*h+r,2)}, {vr(40+4*h+r,2)}, {vr(4+16*h+4*k+r,2)}')
        a(f'v_cvt_pk_bf16_f32 v{48+2*h}, v{40+4*h}, v{41+4*h}')
        a(f'v_cvt_pk_bf16_f32 v{49+2*h}, v{42+4*h}, v{43+4*h}')
        a(f'buffer_store_dwordx2 {vr(48+2*h,2)}, v150, s[60:63], s{28+h} offen')
    stamp_end(a, 0)
    a.label('K1_END')
    a('s_endpgm')
    return a
```

```python
from common import *
K3_GRID = 256
HIMG = 8*1056
STG = HIMG + 12288
NS = 4
NK = 20
LAG = 3
R0 = 15 * 5120
K3_LDS = 163840
SPIN_MAX = 200000

def gen_k34():
    a = Asm()
    a(f's_cmp_ge_u32 s2, {K3_GRID}')
    a('s_cbranch_scc1 K3_END')
    stamp_init(a)
    t0_mark(a, 1 if OPT.get('merged', 1) else 2)
    a(f's_load_dwordx2 s[16:17], s[0:1], {KA["ws"]}')
    a(f's_load_dwordx2 s[6:7], s[0:1], {KA["out"]}')
    a('v_lshrrev_b32 v1, 6, v0')
    a('v_and_b32 v2, 63, v0')
    a('v_readfirstlane_b32 s22, v1')
    a('s_and_b32 s3, s2, 7')
    a('s_lshr_b32 s18, s2, 3')
    a('s_lshr_b32 s19, s18, 2')
    a('s_and_b32 s21, s18, 3')
    if OPT.get('map1', 1):
        a('s_lshr_b32 s23, s3, 2')
        a('s_lshl_b32 s23, s23, 3')
        a('s_add_u32 s23, s23, s19')
        a('s_and_b32 s24, s3, 3')
        a('s_lshl_b32 s24, s24, 2')
        a('s_add_u32 s24, s24, s21')
    else:
        a('s_lshr_b32 s23, s3, 1')
        a('s_lshl_b32 s23, s23, 2')
        a('s_add_u32 s23, s23, s21')
        a('s_and_b32 s24, s3, 1')
        a('s_lshl_b32 s24, s24, 3')
        a('s_add_u32 s24, s24, s19')
    M2 = OPT.get('map2', 1)
    if M2:
        a('s_and_b32 s20, s3, 1')
        a('s_lshl_b32 s20, s20, 2')
        a('s_add_u32 s20, s20, s21')
        a('s_lshr_b32 s5, s3, 1')
        a('s_lshl_b32 s5, s5, 3')
        a('s_add_u32 s5, s5, s19')
        a('s_mov_b32 s4, s19')
        a('s_mov_b32 s63, s21')
    else:
        a('s_mov_b32 s20, s19')
        a('s_lshl_b32 s5, s3, 2')
        a('s_add_u32 s5, s5, s21')
        a('s_mov_b32 s4, s21')
        a('s_mov_b32 s63, s19')
    RK = (12 if M2 else 6) * OPT.get('rot2', 0)
    PFL = 60 if M2 else 120
    a('s_cmp_lt_u32 s22, 4')
    a('s_cbranch_scc1 K3_COMP')
    a('s_sub_u32 s22, s22, 4')
    a('v_lshrrev_b32 v7, 4, v2')
    a('v_and_b32 v9, 15, v2')
    a('v_lshlrev_b32 v8, 11, v7')
    a('v_lshl_add_u32 v8, v9, 4, v8')
    a('v_lshlrev_b32 v10, 4, v2')
    a('s_mul_i32 s27, s23, 163840')
    a('s_lshl_b32 s26, s22, 9')
    a('s_add_u32 s27, s27, s26')
    a('s_mul_i32 s28, s24, 245760')
    a('s_mul_i32 s26, s22, 3072')
    a('s_add_u32 s28, s28, s26')
    a('s_mul_i32 s29, s22, 2112')
    a(f's_add_u32 s29, s29, {R0}')
    a(f's_add_u32 s30, s26, {R0+HIMG}')
    a('s_waitcnt lgkmcnt(0)')
    srd(a, 12, 16, 0x280000, WS_HT)
    srd(a, 8, 16, W1F_BYTES, WS_W1F)
    vm = Cnt(a, 'vmcnt', 63)
    XB = OPT.get('xb', 1)
    a('s_add_u32 s25, s19, s21')
    a(f's_and_b32 s25, s25, {XB-1}')
    def dma(s):
        slot = (s % NS) * STG
        a(f's_xor_b32 s32, s25, {s}')
        a('s_lshl_b32 s31, s32, 13')
        a('s_add_u32 s31, s31, s27')
        for i in range(2):
            a(f's_add_u32 m0, s29, {slot+1056*i}')
            if i: a('s_add_u32 s31, s31, 256')
            a('buffer_load_dwordx4 v8, s[12:15], s31 offen lds'); vm.issue()
        a(f's_add_u32 m0, s30, {slot}')
        a('s_mul_i32 s31, s32, 12288')
        a('s_add_u32 s31, s31, s28')
        for i in range(3):
            a(f'buffer_load_dwordx4 v10, s[8:11], s31 offen offset:{1024*i} lds'); vm.issue(('st', s))
    stamp(a, 1)
    for s in range(LAG): dma(s)
    stamp(a, 2)
    srd(a, 44, 16, W2F_BYTES, WS_W2F)
    a('s_mul_i32 s48, s20, 245760')
    a('s_lshl_b32 s49, s22, 10')
    a('s_add_u32 s48, s48, s49')
    RG = 32
    def w2(q):
        a(f's_add_u32 s31, s48, {4096*q}')
        if q < 40:
            a(f's_add_u32 m0, s49, {4096*q}')
            a('buffer_load_dwordx4 v10, s[44:47], s31 offen lds')
        else:
            a(f'buffer_load_dwordx4 {vr(RG+4*(q-40),4)}, v10, s[44:47], s31 offen')
        vm.issue(('w2', q))
    THR = [None]
    a('v_bfe_u32 v3, v2, 2, 3')
    a('v_mul_u32_u24 v12, 1056, v3')
    a('v_lshrrev_b32 v3, 5, v2')
    a('v_lshl_add_u32 v12, v3, 8, v12')
    a('v_and_b32 v3, 3, v2')
    a('v_lshl_add_u32 v12, v3, 3, v12')
    a('s_lshl_b32 s26, s22, 6')
    a('v_add_u32 v12, s26, v12')
    a('s_mov_b32 s33, 0x3f803f80')
    srd(a, 36, 16, 20*L*8, WS_SP)
    srd(a, 52, 16, 1280*128, WS_CNT)
    a('v_and_b32 v13, 31, v2')
    a('s_lshl_b32 s26, s22, 8')
    a('v_lshl_add_u32 v13, v13, 3, s26')
    a('s_xor_b32 s56, s24, s25')
    issued = LAG
    NE = OPT.get('w2ne', 24); E0 = OPT.get('w2s0', 1)
    early = list(range(18)) + list(range(40, 60))
    done = []
    def issue(x): w2(x); done.append(x)
    QA = 18
    for s in range(NK):
        vm.wait(('st', s))
        if s in (0, 7, 14): stamp(a, 3 + s//7)
        a('s_barrier')
        if issued < NK:
            dma(issued); issued += 1
        a(f's_cmp_lg_u32 s56, {s & 15}')
        a(f's_cbranch_scc1 K3_NOST{s}')
        a(f's_mov_b32 s35, {R0 + (s % NS) * STG}')
        a(f's_xor_b32 s34, s25, {s}')
        a('s_lshl_b32 s34, s34, 14')
        a('s_getpc_b64 s[42:43]')
        a(f's_branch K3_STATS')
        a.label(f'K3_NOST{s}')
        if OPT.get('x_allst'):
            a(f'v_add_u32 v14, {R0 + (s % NS) * STG}, v12')
            for T in range(2):
                for hh in range(2):
                    a(f'ds_read_b64_tr_b16 {vr(20+4*T+2*hh,2)}, v14 offset:{hh*512+T*32}')
            a('s_waitcnt lgkmcnt(0)')
            for j in range(4):
                for T in range(2):
                    r = 20 + 4*T + j
                    if OPT['x_allst'] == 1:
                        a(f'v_dot2_f32_bf16 v{28+T}, v{r}, s33, v{28+T}')
                    elif OPT['x_allst'] == 2:
                        a(f'v_lshlrev_b32 v120, 16, v{r}')
                        a(f'v_and_b32 v121, 0xffff0000, v{r}')
                        a(f'v_add_f32 v{28+T}, v{28+T}, v120')
                        a(f'v_add_f32 v{30+T}, v{30+T}, v121')
            if OPT['x_allst'] == 3:
                for T in range(2):
                    a(f'v_mfma_f32_16x16x32_bf16 {vr(120+4*T,4)}, v[128:131], {vr(20+4*T,4)}, {vr(120+4*T,4)}')
        if s < 17:
            tgt = min(NE, max(0, (s - E0 + 1) * NE // (17 - E0)))
            while len(done) < tgt: issue(early.pop(0))
        else:
            lim = {17: 23, 18: 28, 19: 33}[s]
            for _ in range(5):
                cand = [x for x in range(60) if x not in done and (x < lim or x >= 40)]
                if cand: issue(cand[0])
    for x in range(10): vm.wait(('w2', x))
    a('s_barrier')
    a('v_add_u32 v18, s49, v10')
    rest = [x for x in range(60) if x not in done]
    for x in rest[:OPT.get('xq', 6)]: issue(x)
    a(f's_waitcnt vmcnt({min(OPT.get("xq", 6), len(rest))})')
    a('s_barrier')
    for x in rest[OPT.get('xq', 6):]: issue(x)
    stamp(a, 6)
    a('s_barrier')
    a('v_add_u32 v19, 0xa000, v18')
    def wr(qq):
        vm.wait(('w2', qq))
        a(f'ds_write_b128 v{18 if qq < 50 else 19}, {vr(RG+4*(qq-40),4)} offset:{4096*((qq-40) % 10)}')
    for x in range(20): vm.wait(('w2', x))
    a('s_barrier')
    for qq in range(40, 44): wr(qq)
    for x in range(40): vm.wait(('w2', x))
    a('s_barrier')
    for qq in range(44, 54): wr(qq)
    a('s_waitcnt lgkmcnt(4)')
    a('s_barrier')
    for qq in range(54, 60): wr(qq)
    a('s_waitcnt lgkmcnt(0)')
    a('s_barrier')
    stamp_end(a, 1 if OPT.get('merged', 1) else 2)
    a('s_endpgm')
    a.label('K3_STATS')
    a('v_add_u32 v14, s35, v12')
    for T in range(2):
        for hh in range(2):
            a(f'ds_read_b64_tr_b16 {vr(20+4*T+2*hh,2)}, v14 offset:{hh*512+T*32}')
    for r in range(16, 20): a(f'v_mov_b32 v{r}, 0')
    a('s_waitcnt lgkmcnt(0)')
    for j in range(4):
        for T in range(2):
            r = 20 + 4*T + j
            a(f'v_dot2_f32_bf16 v{16+2*T}, v{r}, s33, v{16+2*T}')
            a(f'v_dot2_f32_bf16 v{17+2*T}, v{r}, v{r}, v{17+2*T}')
    a('v_permlane16_swap_b32 v16, v18')
    a('v_permlane16_swap_b32 v17, v19')
    a('v_add_f32 v16, v16, v18')
    a('v_add_f32 v17, v17, v19')
    a('v_mov_b32 v18, v16')
    a('v_mov_b32 v19, v17')
    a('v_permlane32_swap_b32 v16, v18')
    a('v_permlane32_swap_b32 v17, v19')
    a('v_add_f32 v16, v16, v18')
    a('v_add_f32 v17, v17, v19')
    a('s_lshl_b32 s35, s23, 10')
    a('s_add_u32 s26, s34, s35')
    a('s_mov_b32 exec_hi, 0')
    a('buffer_store_dwordx2 v[16:17], v13, s[36:39], s26 offen sc1')
    a('s_mov_b32 exec_hi, -1')
    a('s_add_u32 s42, s42, 4')
    a('s_addc_u32 s43, s43, 0')
    a('s_setpc_b64 s[42:43]')

    a.label('K3_COMP')
    if OPT.get('pf3', 1):
        a(f's_cmp_ge_u32 s2, {OPT.get("pf3n", 16)}')
        a('s_cbranch_scc1 K3_NOPF')
        a('v_lshlrev_b32 v1, 7, v0')
        a('s_getpc_b64 s[64:65]')
        a.label('K3_PFH')
        a('s_sub_u32 s64, s64, K3_PFH-k3_kernel')
        a('s_subb_u32 s65, s65, 0')
        a('s_mov_b32 s66, CODE_END-k3_kernel')
        a('s_mov_b32 s67, 0x20000')
        a('buffer_load_dword v200, v1, s[64:67], 0 offen')
        a.label('K3_NOPF')
    a('s_and_b32 s25, s22, 1')
    a('s_lshr_b32 s26, s22, 1')
    HA = 4; WA = 6
    a('v_bfe_u32 v3, v2, 2, 3')
    a('v_mul_u32_u24 v4, 1056, v3')
    a('v_lshrrev_b32 v3, 5, v2')
    a('v_lshl_add_u32 v4, v3, 8, v4')
    a('v_and_b32 v3, 3, v2')
    a('v_lshl_add_u32 v4, v3, 3, v4')
    a('s_lshl_b32 s29, s25, 7')
    a(f's_add_u32 s29, s29, {R0}')
    a('v_add_u32 v4, s29, v4')
    a(f'v_add_u32 v5, {2*STG}, v4')
    a('s_mul_i32 s29, s26, 3072')
    a(f's_add_u32 s29, s29, {R0+HIMG}')
    a('v_lshl_add_u32 v6, v2, 4, s29')
    a(f'v_add_u32 v7, {2*STG}, v6')
    a('v_lshlrev_b32 v8, 4, v2')
    a('v_bfe_u32 v3, v2, 4, 1')
    a('v_mul_u32_u24 v9, 49152, v3')
    a('v_lshrrev_b32 v3, 5, v2')
    a('v_lshl_add_u32 v9, v3, 8, v9')
    a('v_and_b32 v3, 15, v2')
    a('v_lshl_add_u32 v9, v3, 4, v9')
    a('s_waitcnt lgkmcnt(0)')
    srd(a, 12, 16, L*F*2, 0 if OPT.get('hid0') else WS_HID)
    srd(a, 52, 16, 1280*128, WS_CNT)
    ACC = 16
    FB = 112
    lg = Cnt(a, 'lgkmcnt', 15)
    def reads(s):
        sl = s % NS; st = sl // 2; off = (sl % 2) * STG
        fb = FB + 40 * (s % 2)
        l = []
        def W(w):
            fr = (w % 3) + 6 * (w // 3)
            def f():
                a(f'ds_read_b128 {vr(fb+4*w,4)}, v{WA+st} offset:{off + fr*1024}'); lg.issue((s, 'W', w))
            l.append(f)
        def H(tt):
            for hh in range(2):
                def f(hh=hh):
                    a(f'ds_read_b64_tr_b16 {vr(fb+24+4*tt+2*hh,2)}, v{HA+st} offset:{off + hh*512 + tt*32}'); lg.issue((s, 'H', tt))
                l.append(f)
        H(0); W(0); W(1); W(2); W(3); W(4); W(5); H(1); H(2); H(3)
        return l
    order = [(tt, w if tt % 2 == 0 else 5 - w) for tt in range(4) for w in range(6)]
    stamp(a, 1)
    a('s_barrier')
    stamp(a, 2)
    for f in reads(0): f()
    if OPT.get('vpf', 0):
        srd(a, 44, 16, W2F_BYTES, WS_W2F)
        a('s_lshl_b32 s27, s19, 2')
        a('s_add_u32 s27, s27, s22')
        a('s_mul_i32 s27, s27, 7680')
        a('s_mul_i32 s28, s20, 245760')
        a('s_add_u32 s27, s27, s28')
        a('v_lshlrev_b32 v3, 7, v2')
        a('buffer_load_dword v15, v3, s[44:47], s27 offen')
    BARPOS = OPT.get('barpos', 6)
    for s in range(NK):
        fb = FB + 40 * (s % 2)
        last = s + 1 == NK
        nxt = reads(s+1) if not last else []
        if s == 10: stamp(a, 3)
        for k, (tt, w) in enumerate(order):
            lg.wait((s, 'W', w)); lg.wait((s, 'H', tt))
            acc = ACC + 4*(6*tt+w)
            if k == BARPOS:
                lg.wait_all()
            a(f'v_mfma_f32_16x16x32_bf16 {vr(acc,4)}, {vr(fb+4*w,4)}, {vr(fb+24+4*tt,4)}, {"0" if s == 0 else vr(acc,4)}')
            if k == BARPOS: a('s_barrier')
            if k >= BARPOS and nxt: nxt.pop(0)()
        assert not nxt
    stamp(a, 4)
    a('s_lshl_b32 s27, s23, 1')
    a('s_add_u32 s30, s27, s25')
    a(f's_mul_i32 s27, s30, {4*49152}')
    a('s_mul_i32 s28, s24, 3072')
    a('s_add_u32 s27, s27, s28')
    a('s_lshl_b32 s28, s26, 11')
    a('s_lshl_b32 s29, s26, 9')
    a('s_add_u32 s29, s29, 1024')
    a('s_add_u32 s28, s28, s27')
    a('s_add_u32 s29, s29, s27')
    a('s_cmp_eq_u32 s26, 0')
    a('s_cbranch_scc1 K3_EPI0')
    HST = ['sc1', '', 'sc0 sc1', 'nt'][OPT.get('x_hst', 0)]
    SG = FB
    for fh in (1, 0):
        if fh == 0: a.label('K3_EPI0')
        pair = (0, 1) if fh == 0 else (1, 2)
        single = 2 if fh == 0 else 0
        for tt in range(4):
            b = ACC + 24*tt
            for p in range(12): a(f'v_max_f32 v{b+p}, 0, v{b+p}')
            for p in range(6): a(f'v_pk_mul_f32 {vr(b+2*p,2)}, {vr(b+2*p,2)}, {vr(b+12+2*p,2)}')
            o = b + 12
            sg_ = SG + 4*(tt >> 1) + 2*(tt & 1)
            a(f'v_cvt_pk_bf16_f32 v{sg_}, v{b+4*single}, v{b+4*single+1}')
            a(f'v_cvt_pk_bf16_f32 v{sg_+1}, v{b+4*single+2}, v{b+4*single+3}')
            for q_, j in enumerate(pair):
                a(f'v_cvt_pk_bf16_f32 v{o+2*q_}, v{b+4*j}, v{b+4*j+1}')
                a(f'v_cvt_pk_bf16_f32 v{o+2*q_+1}, v{b+4*j+2}, v{b+4*j+3}')
            if not OPT.get('x_nost'): a(f'buffer_store_dwordx4 {vr(o,4)}, v8, s[12:15], s28 offen {HST}')
            a('s_add_u32 s28, s28, 49152')
            if tt & 1:
                g4 = SG + 4*(tt >> 1)
                a(f'v_permlane16_swap_b32 v{g4}, v{g4+2}')
                a(f'v_permlane16_swap_b32 v{g4+1}, v{g4+3}')
                if not OPT.get('x_nost'): a(f'buffer_store_dwordx4 {vr(g4,4)}, v9, s[12:15], s29 offen {HST}')
                a(f's_add_u32 s29, s29, {2*49152}')
        if fh == 1: a('s_branch K3_EPID')
    a.label('K3_EPID')
    a('s_mov_b32 s31, s5')
    a('s_lshl_b32 s32, s31, 2')
    a('s_lshl_b32 s27, s25, 1')
    a('s_add_u32 s32, s32, s27')
    a('s_add_u32 s32, s32, s26')
    a('s_xor_b32 s27, s32, 1')
    a('s_mul_i32 s33, s32, 49152')
    a('s_mul_i32 s58, s27, 49152')
    a('s_mul_i32 s27, s26, 5120')
    a('v_add_u32 v14, s27, v8')
    a('v_add_u32 v4, 0x10000, v14')
    a('v_add_u32 v5, 0x20000, v14')
    a('v_lshrrev_b32 v3, 4, v2')
    a('v_and_b32 v12, 15, v2')
    a('v_lshlrev_b32 v6, 10, v3')
    a('v_lshl_add_u32 v6, v12, 1, v6')
    a('v_mul_u32_u24 v7, 1280, v12')
    a('v_lshl_add_u32 v7, v3, 3, v7')
    a('v_mul_u32_u24 v9, 81920, v3')
    a('v_lshl_add_u32 v9, v12, 3, v9')
    srd(a, 36, 16, 0x280000, WS_HT)
    srd(a, 40, 16, 20*L*8, WS_SP)
    srd(a, 44, 6, L*D*2)
    a('v_mov_b32 v10, 1')
    a('v_lshlrev_b32 v13, 7, v2')
    a('s_lshl_b32 s30, s23, 11')
    a('s_lshl_b32 s27, s24, 7')
    a('s_add_u32 s30, s30, s27')
    a('s_lshr_b32 s34, s31, 1')
    a('s_lshl_b32 s34, s34, 11')
    a('v_lshlrev_b32 v11, 7, v2')
    a(f's_mul_i32 s56, s63, {RK*1024}')
    a('s_lshl_b32 s27, s26, 10')
    a('s_add_u32 s56, s56, s27')
    AC2 = 16; HR = 56; SPR = 76; WB = 88; NWB = 2; HB = 128; NHB = 8
    a('s_waitcnt vmcnt(0)')
    stamp(a, 5)
    a('s_barrier')
    a('s_cmp_lg_u32 s22, 0')
    a('s_cbranch_scc1 K3_NOSIG')
    a('s_mov_b64 exec, 1')
    a('buffer_store_dword v10, v13, s[52:55], s30 offen sc1')
    a('s_mov_b64 exec, -1')
    a.label('K3_NOSIG')
    vm = Cnt(a, 'vmcnt', 63); lg = Cnt(a, 'lgkmcnt', 15)
    HD = OPT.get('hd', 6)
    a('s_add_u32 s57, s33, s56')
    a('s_add_u32 s59, s58, s56')
    def hload1(n, part):
        fl = "sc1" if OPT.get("hsc1",1) else ""
        sreg = (57, 59)[part]
        a(f'buffer_load_dwordx4 {vr(HB+8*(n%NHB)+4*part,4)}, v8, s[12:15], s{sreg} offen offset:{2048*(n&1)} {fl}')
        vm.issue(('h', n) if part else None)
        if n & 1: a(f's_add_u32 s{sreg}, s{sreg}, 4096')
    def hload(n): hload1(n, 0); hload1(n, 1)
    def wreads(n):
        pos = ((2*n) % 32) * 5120
        l = []
        for tau in range(5):
            off = pos + tau*1024
            base = (14, 4, 5)[off >> 16]
            def f(tau=tau, off=off, base=base):
                a(f'ds_read_b128 {vr(WB+20*(n%NWB)+4*tau,4)}, v{base} offset:{off & 0xffff}'); lg.issue((n, tau))
            l.append(f)
        return l
    def resid():
        a('s_lshr_b32 s27, s32, 3')
        a('s_mul_i32 s27, s27, 163840')
        a('s_mul_i32 s28, s20, 20480')
        a('s_add_u32 s27, s27, s28')
        a('s_and_b32 s28, s32, 7')
        a('s_lshl_b32 s28, s28, 5')
        a('s_add_u32 s27, s27, s28')
        l = []
        for tau in range(5):
            for r in range(4):
                def f(tau=tau, r=r):
                    a(f'buffer_load_short_d16_hi v{HR+4*tau+r}, v6, s[36:39], s27 offen offset:{r*256}'); vm.issue('res')
                    if r == 3: a('s_add_u32 s27, s27, 4096')
                l.append(f)
        return l
    for f in wreads(0): f()
    for r in range(20): a(f'v_mov_b32 v{HR+r}, 0')
    if not OPT.get('x_nores'):
        for f in resid(): f()
    if OPT.get('x_delay'): a(f's_sleep {OPT["x_delay"]}')
    a('s_cmp_lg_u32 s22, 0')
    a('s_cbranch_scc1 K3_POLLX')
    a('s_mov_b64 exec, 0xffff')
    a('s_mov_b32 s35, 0')
    a.label('K3_POLL')
    a(f's_sleep {OPT.get("sleep", 4)}')
    a('buffer_load_dword v12, v11, s[52:55], s34 offen sc1')
    a('s_add_u32 s35, s35, 1')
    a(f's_cmp_ge_u32 s35, {SPIN_MAX}')
    a('s_cbranch_scc1 K3_POLLD')
    a('s_waitcnt vmcnt(0)')
    a('v_cmp_ne_u32 vcc, 1, v12')
    if not OPT.get('x_nopoll'): a('s_cbranch_vccnz K3_POLL')
    a.label('K3_POLLD')
    a('s_mov_b64 exec, -1')
    a.label('K3_POLLX')
    a('s_barrier')
    stamp(a, 6)
    for n in range(HD): hload(n)
    extra = []
    NI = 24
    for n in range(NI):
        nx = n + 1
        nxt = wreads(nx) if nx < NI else []
        vm.wait(('h', n))
        if OPT.get('x_st') and n in (4, 12, 20): stamp(a, {4:1, 12:2, 20:3}[n])
        for k in range(10):
            tau, tl = k >> 1, (k & 1) ^ ((k >> 1) & 1)
            lg.wait((n, tau))
            acc = AC2 + 20*tl + 4*tau
            if k == 0 and nx in (4, 8): lg.wait_all()
            a(f'v_mfma_f32_16x16x32_bf16 {vr(acc,4)}, {vr(WB+20*(n%NWB)+4*tau,4)}, {vr(HB+8*(n%NHB)+4*tl,4)}, {"0" if n == 0 else vr(acc,4)}')
            if k == 0 and nx in (4, 8, 16, 20): a('s_barrier')
            if k < 5 and nxt: nxt.pop(0)()
            if k in (5, 7) and n + HD < NI:
                if OPT.get('x_nohl'): vm.tags[('h', n + HD)] = 0
                else: hload1(n + HD, (k - 5) // 2)
            if k in (6, 8, 9) and extra: extra.pop(0)()
        if n == 6:
            a('s_lshl_b32 s29, s32, 7')
            for i in range(5):
                a(f'buffer_load_dwordx2 {vr(SPR+2*i,2)}, v9, s[40:43], s29 offen sc1'); vm.issue('sp')
                a('s_add_u32 s29, s29, 16384')
        if n == 14:
            vm.wait('sp')
            r = Rec()
            for i in (1, 2, 3, 4):
                r(f'v_pk_add_f32 {vr(SPR,2)}, {vr(SPR,2)}, {vr(SPR+2*i,2)}')
            for sw in ('32', '16'):
                r(f'v_mov_b32 v{SPR+2}, v{SPR}')
                r(f'v_mov_b32 v{SPR+3}, v{SPR+1}')
                r(f'v_permlane{sw}_swap_b32 v{SPR}, v{SPR+2}')
                r(f'v_permlane{sw}_swap_b32 v{SPR+1}, v{SPR+3}')
                r(f'v_pk_add_f32 {vr(SPR,2)}, {vr(SPR,2)}, {vr(SPR+2,2)}')
            r(f'v_mul_f32 v{SPR}, {f2u(1.0/640)}, v{SPR}')
            r(f'v_mul_f32 v13, {f2u(1.0/640)}, v{SPR+1}')
            r(f'v_fma_f32 v13, -v{SPR}, v{SPR}, v13')
            r('v_max_f32 v13, 0, v13')
            round_bf16(r, 13, 13)
            r(f'v_add_f32 v13, {f2u(1e-5)}, v13')
            round_bf16(r, 13, 13)
            r('v_sqrt_f32 v13, v13')
            round_bf16(r, 13, 13)
            r('v_rcp_f32 v13, v13')
            r('v_mul_f32 v13, v13, v13')
            extra = [(lambda t=t: a(t)) for t in r.l]
    for f in extra: f()
    a('s_mul_i32 s27, s22, 5120')
    a('s_add_u32 s27, s27, 81920')
    a('v_add_u32 v4, s27, v8')
    a('s_xor_b32 s28, s22, 2')
    a('s_mul_i32 s28, s28, 5120')
    a('s_add_u32 s28, s28, 81920')
    a('v_add_u32 v5, s28, v8')
    for tau in range(5):
        a(f'ds_write_b128 v4, {vr(AC2+20+4*tau,4)} offset:{1024*tau}')
    a('s_waitcnt lgkmcnt(0)')
    a('s_barrier')
    for tau in range(5):
        a(f'ds_read_b128 {vr(WB+4*tau,4)}, v5 offset:{1024*tau}')
    a(f's_mul_i32 s27, s32, {16*1280}')
    a('s_mul_i32 s28, s20, 160')
    a('s_add_u32 s27, s27, s28')
    for tau in range(5):
        a(f's_waitcnt lgkmcnt({4-tau})')
        for r in range(0, 4, 2):
            a(f'v_pk_add_f32 {vr(AC2+4*tau+r,2)}, {vr(AC2+4*tau+r,2)}, {vr(WB+4*tau+r,2)}')
        for r in range(4):
            a(f'v_fma_f32 v{AC2+4*tau+r}, v{AC2+4*tau+r}, v13, v{HR+4*tau+r}')
        a(f'v_cvt_pk_bf16_f32 v{HR+4*tau}, v{AC2+4*tau}, v{AC2+4*tau+1}')
        a(f'v_cvt_pk_bf16_f32 v{HR+4*tau+1}, v{AC2+4*tau+2}, v{AC2+4*tau+3}')
        a(f'buffer_store_dwordx2 {vr(HR+4*tau,2)}, v7, s[44:47], s27 offen offset:{32*tau}')
    stamp_end(a, 1 if OPT.get('merged', 1) else 2)
    a.label('K3_END')
    a('s_endpgm')
    return a
```

```python
from asmlib import *
L, D, N, F = 2048, 640, 192, 1536
OPT = dict(pf=1, rot3=0, rot4=0)
KA = dict(x=0, Are=8, Aim=16, Bre=24, Bim=32, Cre=40, Cim=48, logdt=56, dskip=64, bx=72, Wg=80, Wu=88, Wd=96, out=104, dbg=112, ws=120)
WS_UP = 0x000000
WS_XT = 0x280000
WS_KW = 0x500000
WS_HT = 0x780000
WS_HID = 0xA00000
WS_CS = 0x1000000
WS_END = 0x1100000
def f2u(x):
    import struct
    return '0x%08x' % struct.unpack('<I', struct.pack('<f', x))[0]
def srd(a, s, base_s, nbytes, off=0):
    if off:
        a(f's_add_u32 s{s}, s{base_s}, {hex(off)}')
        a(f's_addc_u32 s{s+1}, s{base_s+1}, 0')
    else:
        a(f's_mov_b32 s{s}, s{base_s}')
        a(f's_mov_b32 s{s+1}, s{base_s+1}')
    a(f's_mov_b32 s{s+2}, {hex(nbytes)}')
    a(f's_mov_b32 s{s+3}, 0x20000')
def cmul(a, r, x, y):
    a(f'v_pk_mul_f32 {vr(r,2)}, {vr(x,2)}, {vr(y,2)} op_sel:[0,0] op_sel_hi:[0,1]')
    a(f'v_pk_fma_f32 {vr(r,2)}, {vr(x,2)}, {vr(y,2)}, {vr(r,2)} op_sel:[1,1,0] op_sel_hi:[1,0,1] neg_lo:[0,1,0]')
def interleave(*seqs):
    out = []
    seqs = [list(s) for s in seqs]
    while any(seqs):
        for s in seqs:
            if s: out.append(s.pop(0))
    return out
class Rec:
    def __init__(self): self.l = []
    def __call__(self, t):
        for line in t.split('\n'):
            if line.strip(): self.l.append(line.strip())

class Cnt:
    def __init__(self, a, name, maxv):
        self.a, self.name, self.maxv = a, name, maxv
        self.n = 0
        self.done = 0
        self.tags = {}
    def issue(self, tag=None):
        self.n += 1
        if tag is not None: self.tags[tag] = self.n
    def wait(self, tag):
        k = self.tags[tag]
        if k <= self.done: return
        out = min(self.n - k, self.maxv)
        self.a(f's_waitcnt {self.name}({out})')
        self.done = self.n - out
    def wait_all(self):
        if self.done < self.n:
            self.a(f's_waitcnt {self.name}(0)'); self.done = self.n
WS_R2 = 0x1010000
def round_bf16(a, d, s):
    a(f'v_cvt_pk_bf16_f32 v{d}, v{s}, v{s}')
    a(f'v_and_b32 v{d}, 0xffff0000, v{d}')

WS_STAMP = 0x2000000
STAMP_ON = [False]
STAMP_OP = ['s_memrealtime']
def stamp(a, i):
    if STAMP_ON[0]:
        a(f'{STAMP_OP[0]} s[{80+2*i}:{81+2*i}]')
def stamp_init(a):
    if STAMP_ON[0]:
        for i in range(8): a(f's_mov_b32 s{80+2*i}, 0')
        a('s_mov_b32 s98, s2')
        a('v_lshrrev_b32 v1, 6, v0')
        a('v_readfirstlane_b32 s99, v1')
        stamp(a, 0)
def stamp_end(a, kidx):
    if not STAMP_ON[0]: return
    stamp(a, 7)
    if STAMP_ON[0] == 'dbg':
        sel = DBG_SEL[kidx]
        import random
        lab = f'DBGSKIP_{kidx}_{len(a.ins)}'
        a(f's_load_dwordx2 s[60:61], s[0:1], {KA["dbg"]}')
        a('s_waitcnt lgkmcnt(0)')
        a(f's_add_u32 s64, s60, {512*(DBG_LAST[0]-kidx)}')
        a('s_addc_u32 s65, s61, 0')
        a('s_mov_b32 s66, 256')
        a('s_mov_b32 s67, 0x20000')
        a('s_and_b32 s62, s98, 15')
        a('s_or_b32 s62, s62, s99')
        a('s_cmp_lg_u32 s62, 0')
        a(f's_cbranch_scc1 {lab}')
        a('s_mov_b64 exec, 1')
        a('v_mov_b32 v0, 0')
        a('s_not_b32 s80, s80')
        for j, i in enumerate(sel):
            a(f'v_mov_b32 v{2+j}, s{80+2*i}')
            a(f'buffer_atomic_umax v{2+j}, v0, s[64:67], 0 offen offset:{16*kidx+4*j}')
        a.label(lab)
        return
    a(f's_load_dwordx2 s[60:61], s[0:1], {KA["ws"]}')
    a('s_waitcnt lgkmcnt(0)')
    srd(a, 64, 60, 0x100000, WS_STAMP + kidx*0x100000)
    a('s_lshl_b32 s62, s98, 4')
    a('s_add_u32 s62, s62, s99')
    a('s_lshl_b32 s62, s62, 5')
    a('s_mov_b64 exec, 1')
    for i in range(8): a(f'v_mov_b32 v{2+i}, s{80+2*i}')
    a('v_mov_b32 v0, 0')
    a('buffer_store_dwordx4 v[2:5], v0, s[64:67], s62 offen')
    a('buffer_store_dwordx4 v[6:9], v0, s[64:67], s62 offen offset:16')

DBG_SEL = {0: (0, 3, 4, 7), 1: (0, 4, 5, 7), 2: (0, 2, 5, 7), 3: (0, 3, 6, 7)}
DBG_LAST = [3]

WS_W1F = 0x1200000
WS_W2F = 0x1600000
WS_SP  = 0x1020000
WS_CNT = 0x1100000
W1F_BYTES = 16*20*12*1024
W2F_BYTES = 8*48*5*1024

def prep_unit(a, pfx, su, sW, sws, v0lane, vb, sb, end_label):
    R = vb; O = vb + 32; va = vb + 64
    S0, S1 = sb, sb + 4
    t = sb + 8
    a(f'v_and_b32 v{va}, 15, v{v0lane}')
    a(f'v_lshrrev_b32 v{va+1}, 4, v{v0lane}')
    a(f's_mov_b32 s{t+8}, 0x05040100')
    a(f's_mov_b32 s{t+9}, 0x07060302')
    a(f's_cmp_ge_u32 s{su}, 480')
    a(f's_cbranch_scc1 {pfx}_W2')
    a(f's_cmp_ge_u32 s{su}, 240')
    a(f's_cselect_b32 s{S0}, s{sW+2}, s{sW}')
    a(f's_cselect_b32 s{S0+1}, s{sW+3}, s{sW+1}')
    a(f's_cselect_b32 s{t}, 240, 0')
    a(f's_cselect_b32 s{t+4}, 6144, 0')
    a(f's_mov_b32 s{S0+2}, {D*F*2}')
    a(f's_mov_b32 s{S0+3}, 0x20000')
    a(f's_sub_u32 s{t}, s{su}, s{t}')
    a(f's_mul_i32 s{t+1}, s{t}, 0x5556')
    a(f's_lshr_b32 s{t+1}, s{t+1}, 18')
    a(f's_mul_i32 s{t+2}, s{t+1}, 12')
    a(f's_sub_u32 s{t+2}, s{t}, s{t+2}')
    a(f'v_mul_u32_u24 v{va+2}, {4*3072}, v{va+1}')
    a(f'v_lshl_add_u32 v{va+2}, v{va}, 4, v{va+2}')
    a(f's_mul_i32 s{t+3}, s{t+1}, {32*3072}')
    a(f's_lshl_b32 s{t+5}, s{t+2}, 8')
    a(f's_add_u32 s{t+3}, s{t+3}, s{t+5}')
    for jj in range(8):
        hh, r = jj >> 2, jj & 3
        a(f's_add_u32 s{t+5}, s{t+3}, {(16*hh+r)*3072}')
        a(f'buffer_load_dwordx4 {vr(R+4*jj,4)}, v{va+2}, {sr(S0,4)}, s{t+5} offen')
    srd(a, S1, sws, W1F_BYTES, WS_W1F)
    a(f'v_lshlrev_b32 v{va+3}, 4, v{v0lane}')
    a(f's_mul_i32 s{t+3}, s{t+1}, 12288')
    a(f's_add_u32 s{t+3}, s{t+3}, s{t+4}')
    a(f's_lshl_b32 s{t+2}, s{t+2}, 3')
    a('s_waitcnt vmcnt(0)')
    for j in range(8):
        for q in range(4):
            a(f'v_perm_b32 v{O+4*j+q}, v{R+4*(2*q+1)+(j>>1)}, v{R+4*(2*q)+(j>>1)}, s{t+8+(j&1)}')
        a(f's_add_u32 s{t+5}, s{t+2}, {j}')
        a(f's_mul_i32 s{t+6}, s{t+5}, 0xaaab')
        a(f's_lshr_b32 s{t+6}, s{t+6}, 18')
        a(f's_mul_i32 s{t+7}, s{t+6}, {245760-6*1024}')
        a(f's_lshl_b32 s{t+5}, s{t+5}, 10')
        a(f's_add_u32 s{t+5}, s{t+5}, s{t+7}')
        a(f's_add_u32 s{t+5}, s{t+5}, s{t+3}')
        a(f'buffer_store_dwordx4 {vr(O+4*j,4)}, v{va+3}, {sr(S1,4)}, s{t+5} offen')
    a(f's_branch {end_label}')
    a.label(f'{pfx}_W2')
    srd(a, S0, sW+4, F*D*2)
    a(f's_sub_u32 s{t}, s{su}, 480')
    a(f's_mul_i32 s{t+1}, s{t}, 0xcccd')
    a(f's_lshr_b32 s{t+1}, s{t+1}, 18')
    a(f's_mul_i32 s{t+2}, s{t+1}, 5')
    a(f's_sub_u32 s{t+2}, s{t}, s{t+2}')
    a(f'v_mul_u32_u24 v{va+2}, {32*1280}, v{va+1}')
    a(f'v_lshl_add_u32 v{va+2}, v{va}, 4, v{va+2}')
    a(f's_lshr_b32 s{t+3}, s{t+1}, 2')
    a(f's_lshl_b32 s{t+3}, s{t+3}, 7')
    a(f's_and_b32 s{t+5}, s{t+1}, 3')
    a(f's_lshl_b32 s{t+5}, s{t+5}, 1')
    a(f's_add_u32 s{t+3}, s{t+3}, s{t+5}')
    a(f's_mul_i32 s{t+3}, s{t+3}, 1280')
    a(f's_lshl_b32 s{t+5}, s{t+2}, 8')
    a(f's_add_u32 s{t+3}, s{t+3}, s{t+5}')
    for jj in range(8):
        hh, r = jj >> 2, jj & 3
        a(f's_add_u32 s{t+5}, s{t+3}, {(8*r+hh)*1280}')
        a(f'buffer_load_dwordx4 {vr(R+4*jj,4)}, v{va+2}, {sr(S0,4)}, s{t+5} offen')
    srd(a, S1, sws, W2F_BYTES, WS_W2F)
    a(f's_lshl_b32 s{t+5}, s{t+2}, 3')
    a(f'v_lshrrev_b32 v{va+3}, 1, v{va}')
    a(f'v_add_u32 v{va+3}, s{t+5}, v{va+3}')
    a(f'v_mul_u32_u24 v{va+4}, 0xcccd, v{va+3}')
    a(f'v_lshrrev_b32 v{va+4}, 18, v{va+4}')
    a(f'v_mul_u32_u24 v{va+4}, {245760-5*1024}, v{va+4}')
    a(f'v_lshl_add_u32 v{va+3}, v{va+3}, 10, v{va+4}')
    a(f'v_lshl_add_u32 v{va+3}, v{va+1}, 8, v{va+3}')
    a(f'v_and_b32 v{va+4}, 1, v{va}')
    a(f'v_lshl_add_u32 v{va+3}, v{va+4}, 7, v{va+3}')
    a(f's_mul_i32 s{t+3}, s{t+1}, 5120')
    a('s_waitcnt vmcnt(0)')
    for j in range(8):
        for q in range(4):
            a(f'v_perm_b32 v{O+4*j+q}, v{R+4*(2*q+1)+(j>>1)}, v{R+4*(2*q)+(j>>1)}, s{t+8+(j&1)}')
        a(f'buffer_store_dwordx4 {vr(O+4*j,4)}, v{va+3}, {sr(S1,4)}, s{t+3} offen offset:{16*j}')
    a(f's_branch {end_label}')

_pf_id = [0]
def code_prefetch(a, start_label, end_label, ninstr, vlane128, vdst, sp):
    _pf_id[0] += 1
    h = f'PFH{_pf_id[0]}'
    a(f's_getpc_b64 s[{sp}:{sp+1}]')
    a.label(h)
    if start_label:
        a(f's_add_u32 s{sp}, s{sp}, {start_label}-{h}')
        a(f's_addc_u32 s{sp+1}, s{sp+1}, 0')
    a(f's_mov_b32 s{sp+2}, {end_label}-{start_label or h}')
    a(f's_mov_b32 s{sp+3}, 0x20000')
    for i in range(ninstr):
        if i == 0:
            a(f'buffer_load_dword v{vdst}, v{vlane128}, s[{sp}:{sp+3}], 0 offen')
        else:
            a(f's_mov_b32 s{sp+4}, {8192*i}')
            a(f'buffer_load_dword v{vdst}, v{vlane128}, s[{sp}:{sp+3}], s{sp+4} offen')

WS_T0 = 0x1090000
def t0_mark(a, kidx):
    if not OPT.get('spin'): return
    lab = f'T0SKIP{kidx}'
    a('s_memrealtime s[70:71]')
    a(f's_load_dwordx2 s[72:73], s[0:1], {KA["ws"]}')
    a('s_cmp_lg_u32 s2, 0')
    a(f's_cbranch_scc1 {lab}')
    a('s_waitcnt lgkmcnt(0)')
    srd(a, 76, 72, 256, WS_T0)
    a('v_mov_b32 v1, s70')
    a('v_mov_b32 v2, 0')
    a(f'buffer_store_dword v1, v2, s[76:79], 0 offen offset:{4*kidx}')
    a.label(lab)
    a('s_waitcnt lgkmcnt(0)')
def gen_spin(j):
    a = Asm()
    a('s_cmp_lg_u32 s2, 0')
    a('s_cbranch_scc1 SP_END')
    a(f's_load_dwordx2 s[4:5], s[0:1], {KA["ws"]}')
    a('s_waitcnt lgkmcnt(0)')
    a(f's_add_u32 s4, s4, {WS_T0}')
    a('s_addc_u32 s5, s5, 0')
    a(f's_load_dword s8, s[4:5], {4*(j-1)}')
    a('s_mov_b32 s9, 0')
    a.label('SP_LOOP')
    a('s_memrealtime s[10:11]')
    a('s_waitcnt lgkmcnt(0)')
    a('s_sub_u32 s12, s10, s8')
    a('s_add_u32 s9, s9, 1')
    a('s_cmp_ge_u32 s9, 20000')
    a('s_cbranch_scc1 SP_END')
    a(f's_cmp_lt_u32 s12, {OPT.get("spinlen", 10000)}')
    a('s_cbranch_scc1 SP_LOOP')
    a.label('SP_END')
    a('s_endpgm')
    a('v_mov_b32 v0, 0')
    a('s_endpgm')
    return a

WS_CP = 0x10A0000
CP_BYTES = 24*8*16*8*4

def colsum_unit(a, pfx, su, sW, sws, vlane, vb, sb, end_label):
    R = vb; S = vb + 40; va = vb + 48
    S0, S1 = sb, sb + 4
    t = sb + 8
    a(f's_cmp_ge_u32 s{su}, 384')
    a(f's_cbranch_scc1 {pfx}_T')
    a(f's_and_b32 s{t}, s{su}, 7')
    a(f's_lshr_b32 s{t+1}, s{su}, 3')
    a(f's_cmp_ge_u32 s{t+1}, 24')
    a(f's_cselect_b32 s{S0}, s{sW+2}, s{sW}')
    a(f's_cselect_b32 s{S0+1}, s{sW+3}, s{sW+1}')
    a(f's_cselect_b32 s{t+2}, 24, 0')
    a(f's_mov_b32 s{S0+2}, {D*F*2}')
    a(f's_mov_b32 s{S0+3}, 0x20000')
    a(f's_sub_u32 s{t+2}, s{t+1}, s{t+2}')
    a(f's_lshl_b32 s{t+2}, s{t+2}, 7')
    a(f's_mul_i32 s{t+3}, s{t}, {80*3072}')
    a(f's_add_u32 s{t+3}, s{t+3}, s{t+2}')
    a(f'v_and_b32 v{va}, 7, v{vlane}')
    a(f'v_lshrrev_b32 v{va+1}, 3, v{vlane}')
    a(f'v_mul_u32_u24 v{va+2}, 3072, v{va+1}')
    a(f'v_lshl_add_u32 v{va+2}, v{va}, 4, v{va+2}')
    for i in range(10):
        a(f'buffer_load_dwordx4 {vr(R+4*i,4)}, v{va+2}, {sr(S0,4)}, s{t+3} offen')
        a(f's_add_u32 s{t+3}, s{t+3}, {8*3072}')
    srd(a, S1, sws, CP_BYTES, WS_CP)
    a(f's_mov_b32 s{t+4}, 0x00003f80')
    a(f's_mov_b32 s{t+5}, 0x3f800000')
    for j in range(8): a(f'v_mov_b32 v{S+j}, 0')
    a(f'v_and_b32 v{va+3}, 1, v{va}')
    a(f'v_lshl_add_u32 v{va+3}, v{va+3}, 3, v{va+1}')
    a(f'v_lshlrev_b32 v{va+3}, 5, v{va+3}')
    a(f'v_lshrrev_b32 v{va+4}, 1, v{va}')
    a(f'v_lshl_add_u32 v{va+3}, v{va+4}, 2, v{va+3}')
    a(f's_lshr_b32 s{t+2}, s{t+1}, 1')
    a(f's_lshl_b32 s{t+2}, s{t+2}, 12')
    a(f's_lshl_b32 s{t+3}, s{t}, 9')
    a(f's_add_u32 s{t+2}, s{t+2}, s{t+3}')
    a(f's_and_b32 s{t+3}, s{t+1}, 1')
    a(f's_lshl_b32 s{t+3}, s{t+3}, 4')
    a(f's_add_u32 s{t+2}, s{t+2}, s{t+3}')
    a(f's_mov_b32 s{t+6}, 0xff00ff00')
    a(f's_mov_b32 s{t+7}, 0xff00ff00')
    for i in range(10):
        a(f's_waitcnt vmcnt({9-i})')
        for w in range(4):
            a(f'v_dot2_f32_bf16 v{S+2*w}, v{R+4*i+w}, s{t+4}, v{S+2*w}')
            a(f'v_dot2_f32_bf16 v{S+2*w+1}, v{R+4*i+w}, s{t+5}, v{S+2*w+1}')
    for j in range(4): a(f'v_permlane32_swap_b32 v{S+j}, v{S+4+j}')
    for j in range(4): a(f'v_add_f32 v{S+j}, v{S+j}, v{S+4+j}')
    for j in range(2): a(f'v_permlane16_swap_b32 v{S+j}, v{S+2+j}')
    for j in range(2): a(f'v_add_f32 v{S+j}, v{S+j}, v{S+2+j}')
    for j in range(2): a(f'v_add_f32_dpp v{S+j}, v{S+j}, v{S+j} row_ror:8 row_mask:0xf bank_mask:0xf')
    a(f'v_cndmask_b32 v{S}, v{S}, v{S+1}, {sr(t+6,2)}')
    a(f'buffer_store_dword v{S}, v{va+3}, {sr(S1,4)}, s{t+2} offen')
    a(f's_branch {end_label}')
    a.label(f'{pfx}_T')
    srd(a, S0, sW+4, F*D*2)
    a(f's_sub_u32 s{t}, s{su}, 384')
    a(f's_lshl_b32 s{t}, s{t}, 13')
    a(f'v_lshlrev_b32 v{va}, 7, v{vlane}')
    a(f'buffer_load_dword v{vb+60}, v{va}, {sr(S0,4)}, s{t} offen')
    a(f's_branch {end_label}')

WS_REC = 0x000000
REC_BYTES = 128*640*64
WS_F1 = 0x10C0000
WS_F2 = 0x10C8000
FL_BYTES = 36*1024
WS_CP2 = 0x10A0000

def gen_meas(kidx, si, w0, w1, v0, v1, mode):
    a = Asm()
    a('s_cmp_lg_u32 s2, 0')
    a('s_cbranch_scc1 SP_END')
    a(f's_load_dwordx2 s[4:5], s[0:1], {KA["ws"]}')
    a('s_waitcnt lgkmcnt(0)')
    srd(a, 8, 4, 0x400000, WS_STAMP)
    a('v_mov_b32 v1, 0')
    a('buffer_load_dword v2, v1, s[8:11], 0 offen')
    a(f'v_mov_b32 v3, {"0x7fffffff" if mode == 1 else "0"}')
    a('s_waitcnt vmcnt(0)')
    a('v_readfirstlane_b32 s20, v2')
    n = w1 - w0
    assert n % 64 == 0 or n < 64
    a(f'v_min_u32 v4, {n-1}, v0')
    a('v_lshlrev_b32 v4, 9, v4')
    for blk in range(max(1, n // 64)):
        for v in range(v0, v1):
            off = kidx*0x100000 + (w0 + 64*blk)*512 + v*32 + si*4
            a(f's_mov_b32 s21, {off}')
            a('buffer_load_dword v5, v4, s[8:11], s21 offen')
            a('s_waitcnt vmcnt(0)')
            a('v_subrev_u32 v5, s20, v5')
            a(['v_max_i32 v3, v3, v5', 'v_min_i32 v3, v3, v5', 'v_add_u32 v3, v3, v5'][mode])
    op = ['s_max_i32', 's_min_i32', 's_add_u32'][mode]
    a('v_readlane_b32 s22, v3, 0')
    for l in range(1, 64):
        a(f'v_readlane_b32 s23, v3, {l}')
        a('s_nop 1')
        a(f'{op} s22, s22, s23')
    a('s_mul_i32 s22, s22, 10')
    if mode == 2:
        cnt = 64 * max(1, n // 64) * (v1 - v0)
        assert cnt & (cnt - 1) == 0
        a(f's_ashr_i32 s22, s22, {cnt.bit_length()-1}')
    a('s_max_i32 s22, s22, 0')
    a('s_min_i32 s22, s22, 40000')
    a('s_add_u32 s22, s22, 10000')
    a('s_mov_b32 s9, 0')
    a.label('SP_LOOP')
    a('s_memrealtime s[10:11]')
    a('s_waitcnt lgkmcnt(0)')
    a('s_sub_u32 s12, s10, s20')
    a('s_add_u32 s9, s9, 1')
    a('s_cmp_ge_u32 s9, 100000')
    a('s_cbranch_scc1 SP_END')
    a('s_cmp_lt_u32 s12, s22')
    a('s_cbranch_scc1 SP_LOOP')
    a.label('SP_END')
    a('s_endpgm')
    return a
```

```python
from common import *
import math
NLN = 128
K12_GRID = NLN + 640
HS = 6272
GT = 8 * HS
TS = 800
K12_LDS = 53760
RS = 1296
SPIN_MAX = 200000
NCLR = 36
KC = 4128
UPO = 4 * KC
UPS = 1152
C1 = 4744
ZS = GT + 3072
EXO = 25872

def wait_cleared(a, lab, vtmp, vzero, sdbg, scnt):
    a(f's_mov_b32 s{scnt}, 0')
    a.label(lab)
    a(f'v_cmp_eq_u32 vcc, {NCLR}, v{vtmp}')
    a(f's_cbranch_vccnz {lab}D')
    a(f's_add_u32 s{scnt}, s{scnt}, 1')
    a(f's_cmp_ge_u32 s{scnt}, {SPIN_MAX}')
    a(f's_cbranch_scc1 {lab}D')
    a('s_sleep 4')
    a(f'buffer_load_dword v{vtmp}, v{vzero}, {sr(sdbg,4)}, 0 offen sc1')
    a('s_waitcnt vmcnt(0)')
    a(f's_branch {lab}')
    a.label(lab + 'D')

def gen_k12():
    a = Asm()
    NT = 'nt' if OPT.get('nt', 0) else ''
    NTW = 'nt' if OPT.get('ntw', 0) else ''
    PS = 'sc1' if OPT.get('prepsc1', 1) else ''
    a(f's_cmp_ge_u32 s2, {K12_GRID}')
    a('s_cbranch_scc1 K1_END')
    stamp_init(a)
    t0_mark(a, 0)
    if OPT['pf']:
        a(f's_sub_u32 s3, s2, {K12_GRID-24}')
        a('s_cmp_ge_u32 s3, 16')
        a('s_cbranch_scc1 K1_NOPF')
        a('v_lshlrev_b32 v1, 7, v0')
        code_prefetch(a, None, 'k3_kernel', 1, 1, 164, 64)
        a.label('K1_NOPF')
    a(f's_cmp_ge_u32 s2, {NLN}')
    a('s_cbranch_scc1 K1_KGEN')
    a('s_setprio 3')
    a(f's_load_dwordx2 s[4:5], s[0:1], {KA["x"]}')
    a(f's_load_dwordx4 s[52:55], s[0:1], {KA["dbg"]}')
    a(f's_load_dwordx4 s[56:59], s[0:1], {KA["Wg"]}')
    a(f's_load_dwordx2 s[60:61], s[0:1], {KA["Wd"]}')
    a('v_lshrrev_b32 v1, 4, v0')
    a('v_and_b32 v2, 15, v0')
    a('v_mul_u32_u24 v3, 1280, v1')
    a('v_lshl_add_u32 v3, v2, 4, v3')
    a('s_mul_i32 s3, s2, 20480')
    a(f'v_mul_u32_u24 v4, {RS}, v1')
    a('v_lshl_add_u32 v4, v2, 4, v4')
    a('v_lshrrev_b32 v34, 6, v0')
    a('v_and_b32 v7, 63, v0')
    a('v_readfirstlane_b32 s22, v34')
    a('v_lshlrev_b32 v70, 4, v7')
    a('s_lshl_b32 s21, s2, 2')
    a('s_add_u32 s21, s21, s22')
    a('s_waitcnt lgkmcnt(0)')
    stamp(a, 1)
    srd(a, 16, 54, 0xA000, WS_F1)
    a('v_mov_b32 v72, 0')
    a('s_lshl_b32 s65, s2, 7')
    a('s_add_u32 s65, s65, 0x4000')
    srd(a, 8, 4, L*D*2)
    X = 8
    for i in range(5):
        a(f'buffer_load_dwordx4 {vr(X+4*i,4)}, v3, s[8:11], s3 offen offset:{256*i} {NT}')
    srd(a, 24, 52, 256)
    for r in range(4): a(f'v_mov_b32 v{72+r}, 0')
    srd(a, 12, 54, REC_BYTES, WS_REC)
    a('v_bfe_u32 v30, v0, 4, 1')
    a('v_bfe_u32 v31, v0, 5, 1')
    a('v_bfe_u32 v32, v0, 2, 2')
    a('v_and_b32 v33, 3, v0')
    a('v_mul_u32_u24 v35, 320, v34')
    a('v_lshl_add_u32 v35, v31, 5, v35')
    a('v_lshl_add_u32 v35, v33, 3, v35')
    a('v_lshlrev_b32 v36, 1, v30')
    a('v_lshl_add_u32 v36, v32, 2, v36')
    a(f'v_mul_u32_u24 v36, {RS}, v36')
    a('v_add_u32 v36, v36, v35')
    a('s_mul_i32 s23, s22, 3072')
    a('s_add_u32 s23, s23, 41472')
    a('v_lshl_add_u32 v38, v31, 4, v2')
    a('v_mul_u32_u24 v38, 48, v38')
    a('v_lshl_add_u32 v38, v30, 4, v38')
    a('v_add_u32 v38, s23, v38')
    a('v_lshrrev_b32 v39, 1, v7')
    a('v_mul_u32_u24 v39, 48, v39')
    a('v_and_b32 v69, 1, v7')
    a('v_lshl_add_u32 v39, v69, 4, v39')
    a('v_add_u32 v39, s23, v39')
    a('s_mov_b32 s20, 0x3f803f80')
    a('v_mov_b32 v5, 0'); a('v_mov_b32 v6, 0'); a('v_mov_b32 v28, 0'); a('v_mov_b32 v29, 0')
    a('v_mov_b32 v71, 1')
    for i in range(5):
        a(f's_waitcnt vmcnt({4-i})')
        for j in range(4):
            r = X+4*i+j
            a(f'v_dot2_f32_bf16 v{5 if j&1 else 28}, v{r}, s20, v{5 if j&1 else 28}')
            a(f'v_dot2_f32_bf16 v{6 if j&1 else 29}, v{r}, v{r}, v{6 if j&1 else 29}')
    stamp(a, 2)
    a('v_add_f32 v5, v5, v28')
    a('v_add_f32 v6, v6, v29')
    for sh in (8, 4, 2, 1):
        a(f'v_add_f32_dpp v5, v5, v5 row_ror:{sh} row_mask:0xf bank_mask:0xf')
        a(f'v_add_f32_dpp v6, v6, v6 row_ror:{sh} row_mask:0xf bank_mask:0xf')
    a(f'v_mul_f32 v5, {f2u(1.0/640)}, v5')
    a(f'v_mul_f32 v6, {f2u(1.0/640)}, v6')
    a('v_fma_f32 v6, -v5, v5, v6')
    a('v_max_f32 v6, 0, v6')
    round_bf16(a, 5, 5)
    round_bf16(a, 6, 6)
    a(f'v_add_f32 v6, {f2u(1e-5)}, v6')
    round_bf16(a, 6, 6)
    a('v_sqrt_f32 v6, v6')
    round_bf16(a, 6, 6)
    a('v_lshlrev_b32 v29, 2, v1')
    a('s_lshl_b32 s64, s2, 6')
    a('s_add_u32 s66, s64, 0x2000')
    a('s_mov_b32 exec_lo, 0x00010001')
    a('s_mov_b32 exec_hi, 0x00010001')
    if OPT.get('pks', 1):
        a('v_lshrrev_b32 v28, 16, v5')
        a('v_or_b32 v28, v28, v6')
        a('buffer_store_dword v28, v29, s[16:19], s64 offen sc1')
    else:
        a('buffer_store_dword v6, v29, s[16:19], s64 offen sc1')
        a('buffer_store_dword v5, v29, s[16:19], s66 offen sc1')
    a('s_mov_b64 exec, -1')
    a('v_rcp_f32 v6, v6')
    U = 40
    if OPT.get('lnfast', 1): a('v_mul_f32 v5, v5, v6')
    for i in range(5):
        for j in range(4):
            r = X+4*i+j; tt = 60 + 2*j
            a(f'v_lshlrev_b32 v{tt}, 16, v{r}')
            a(f'v_and_b32 v{tt+1}, 0xffff0000, v{r}')
        if OPT.get('lnfast', 1):
            for j in range(8): a(f'v_fma_f32 v{60+j}, v{60+j}, v6, -v5')
        else:
            for j in range(8): a(f'v_sub_f32 v{60+j}, v{60+j}, v5')
            for j in range(4): a(f'v_cvt_pk_bf16_f32 v{61+2*j}, v{60+2*j}, v{61+2*j}')
            for j in range(4):
                tt = 60 + 2*j
                a(f'v_lshlrev_b32 v{tt}, 16, v{tt+1}')
                a(f'v_and_b32 v{tt+1}, 0xffff0000, v{tt+1}')
            for j in range(8): a(f'v_mul_f32 v{60+j}, v{60+j}, v6')
        for j in range(4):
            tt = 60 + 2*j
            a(f'v_cvt_pk_bf16_f32 v{U+4*i+j}, v{tt}, v{tt+1}')
        a(f'ds_write_b128 v4, {vr(U+4*i,4)} offset:{256*i}')
    a('buffer_load_dword v73, v72, s[24:27], 0 offen sc1')
    a('s_waitcnt lgkmcnt(0)')
    a('s_barrier')
    stamp(a, 3)
    O = 76
    lg = Cnt(a, 'lgkmcnt', 15)
    def trd(i):
        if i < 5:
            a(f'ds_read_b64_tr_b16 {vr(O+4*i,2)}, v36 offset:{64*i}'); lg.issue()
            a(f'ds_read_b64_tr_b16 {vr(O+4*i+2,2)}, v36 offset:{64*i+RS}'); lg.issue(i)
        else:
            a(f'ds_read_b64_tr_b16 {vr(O+4*i,2)}, v37 offset:{16*RS+64*(i-5)}'); lg.issue()
            a(f'ds_read_b64_tr_b16 {vr(O+4*i+2,2)}, v37 offset:{20*RS+64*(i-5)}'); lg.issue(i)
    a('s_mul_i32 s23, s22, 5120')
    a('s_add_u32 s3, s3, s23')
    a('s_add_u32 s62, s3, 4096')
    a('s_add_u32 s63, s3, 0x280000')
    for i in range(5): trd(i)
    O2 = 8
    def st(i):
        lg.wait(('r', i))
        a(f'buffer_store_dwordx4 {vr(O2+4*i,4)}, v70, s[12:15], s{3 if i < 4 else 62} offen offset:{1024*(i%4)} sc1')
    for i in range(5):
        lg.wait(i)
        a(f'ds_write_b128 v38, {vr(O+4*i,4)} offset:{1536*(i&1)}'); lg.issue()
        a(f'ds_read_b128 {vr(O2+4*i,4)}, v39 offset:{1536*(i&1)}'); lg.issue(('r', i))
        if i >= 1: st(i-1)
    st(4)
    def arrive(lab, off):
        a('v_mov_b32 v73, 1')
        a('s_mov_b64 exec, 1')
        a('s_lshr_b32 s38, s2, 3')
        a('s_and_b32 s38, s38, 1')
        a('s_lshl_b32 s39, s38, 6')
        a('s_lshl_b32 s38, s38, 2')
        a(f'buffer_atomic_add v73, v72, s[24:27], s39 offen offset:{4*off} sc0 sc1')
        a('s_waitcnt vmcnt(0)')
        a(f'v_cmp_eq_u32 vcc, {NLN//2-1}, v73')
        a(f's_cbranch_vccz {lab}')
        a(f'buffer_store_dword v71, v72, s[24:27], s38 offen offset:{128+off} sc1')
        a.label(lab)
        a('s_mov_b64 exec, -1')
    a('v_lshrrev_b32 v9, 4, v7')
    stamp(a, 1)
    a('s_waitcnt vmcnt(0)')
    stamp(a, 6)
    a('s_barrier')
    a('s_cmp_lg_u32 s22, 0')
    a('s_cbranch_scc1 K1_NOFLAG')
    SH = 2
    a('s_mov_b32 s38, 0')
    a.label('K1_PI')
    a('v_cmp_ne_u32 vcc, 1, v73')
    a('s_cbranch_vccz K1_PID')
    a('s_add_u32 s38, s38, 1')
    a(f's_cmp_ge_u32 s38, {SPIN_MAX}')
    a('s_cbranch_scc1 K1_PID')
    a('buffer_load_dword v73, v72, s[24:27], 0 offen sc1')
    a('s_waitcnt vmcnt(0)')
    a('s_branch K1_PI')
    a.label('K1_PID')
    stamp(a, 2)
    a('s_mov_b64 exec, 1')
    a('buffer_store_dword v71, v72, s[16:19], s65 offen sc1')
    if OPT.get('hint', 2) == 3: a('s_waitcnt vmcnt(0)')
    if OPT.get('hint', 2) >= 2:
        a('s_add_u32 s65, s65, 0x4000')
        a('buffer_store_dword v71, v72, s[16:19], s65 offen sc1')
    a('s_mov_b64 exec, -1')
    if OPT.get('hold', 1) == 1: a('s_waitcnt vmcnt(0)')
    if OPT.get('hold', 1) == 3:
        a('v_lshlrev_b32 v74, 7, v7')
        a('s_mov_b32 s38, 0')
        a('s_mov_b32 s39, 0x4000')
        a('s_mov_b32 s66, 0x6000')
        a.label('K1_PW')
        a(f's_sleep {OPT.get("pwsleep", 24)}')
        a('buffer_load_dword v73, v74, s[16:19], s39 offen sc1')
        a('buffer_load_dword v75, v74, s[16:19], s66 offen sc1')
        a('s_add_u32 s38, s38, 1')
        a('s_cmp_ge_u32 s38, 64')
        a('s_cbranch_scc1 K1_NOFLAG')
        a('s_waitcnt vmcnt(0)')
        a('v_and_b32 v73, v73, v75')
        a('v_cmp_ne_u32 vcc, 1, v73')
        a('s_cbranch_vccnz K1_PW')
    a.label('K1_NOFLAG')
    a(f's_setprio {OPT.get("pprio", 1)}')
    a('s_cmp_ge_u32 s2, 96')
    a('s_cbranch_scc1 K1_W2')
    a('s_and_b32 s28, s2, 7')
    a('s_mul_i32 s28, s28, 12')
    a('s_lshr_b32 s29, s2, 3')
    a('s_add_u32 s28, s28, s29')
    a('s_cmp_ge_u32 s28, 48')
    a('s_cselect_b32 s8, s58, s56')
    a('s_cselect_b32 s9, s59, s57')
    a('s_cselect_b32 s31, 48, 0')
    a('s_cselect_b32 s32, 6144, 0')
    a(f's_mov_b32 s10, {D*F*2}')
    a('s_mov_b32 s11, 0x20000')
    a('s_sub_u32 s31, s28, s31')
    a(f's_mul_i32 s33, s22, {160*3072}')
    a('s_lshl_b32 s34, s31, 6')
    a('s_add_u32 s33, s33, s34')
    a('v_lshrrev_b32 v3, 2, v7')
    a('v_mul_u32_u24 v8, 3072, v3')
    a('v_and_b32 v12, 3, v7')
    a('v_lshl_add_u32 v8, v12, 4, v8')
    a('s_mul_i32 s23, s22, 10240')
    a('v_lshlrev_b32 v10, 6, v3')
    a('v_lshl_add_u32 v10, v12, 3, v10')
    a('v_add_u32 v10, s23, v10')
    a('s_mul_i32 s34, s31, 0x5556')
    a('s_lshr_b32 s34, s34, 16')
    a('s_mul_i32 s35, s34, 3')
    a('s_sub_u32 s35, s31, s35')
    a('s_mul_i32 s34, s34, 245760')
    a('s_add_u32 s34, s34, s32')
    a(f's_mul_i32 s36, s22, {5*12288}')
    a('s_add_u32 s34, s34, s36')
    a('s_lshl_b32 s35, s35, 3')
    a('s_lshr_b32 s36, 0x435210, s35')
    a('s_bfe_u32 s37, s36, 0x40004')
    a('s_and_b32 s36, s36, 15')
    a('s_lshl_b32 s36, s36, 10')
    a('s_lshl_b32 s37, s37, 10')
    a('s_add_u32 s36, s36, s34')
    a('s_add_u32 s37, s37, s34')
    srd(a, 40, 54, W1F_BYTES, WS_W1F)
    if OPT.get('hold', 1): a('s_barrier')
    stamp(a, 4)
    if OPT.get('x_noprep'): a('s_branch K1_LNEND')
    if OPT.get('x_pdelay'): a(f's_sleep {OPT["x_pdelay"]}')
    for i in range(10):
        a(f's_add_u32 m0, s23, {1024*i}')
        a(f'buffer_load_dwordx4 v8, s[8:11], s33 offen {NTW} lds')
        a(f's_add_u32 s33, s33, {16*3072}')
    F1 = 16
    a('v_mov_b32 v56, 0'); a('v_mov_b32 v57, 0')
    for kb in range(5):
        a(f's_waitcnt vmcnt({8-2*kb})')
        for fr in range(2):
            for hh in range(2):
                a(f'ds_read_b64_tr_b16 {vr(F1+8*kb+4*fr+2*hh,2)}, v10 offset:{2048*kb+1024*hh+32*fr}')
        if kb > 0:
            a('s_waitcnt lgkmcnt(4)')
            for w in range(4):
                for fr in range(2): a(f'v_dot2_f32_bf16 v{56+fr}, v{F1+8*(kb-1)+4*fr+w}, s20, v{56+fr}')
    a('s_waitcnt lgkmcnt(0)')
    for w in range(4):
        for fr in range(2): a(f'v_dot2_f32_bf16 v{56+fr}, v{F1+32+4*fr+w}, s20, v{56+fr}')
    a('v_lshlrev_b32 v13, 3, v0')
    a('ds_write_b64 v13, v[56:57] offset:40960')
    a('v_lshlrev_b32 v13, 3, v2')
    a('s_waitcnt lgkmcnt(0)')
    a('s_barrier')
    for p in range(16):
        a(f'ds_read_b64 {vr(76+2*p,2)}, v13 offset:{40960+128*p}')
    a('s_waitcnt lgkmcnt(0)')
    for st_ in (8, 4, 2, 1):
        for p in range(st_): a(f'v_pk_add_f32 {vr(76+2*p,2)}, {vr(76+2*p,2)}, {vr(76+2*(p+st_),2)}')
    for fr in range(2): a(f'v_mul_f32 v{76+fr}, {f2u(1.0/640)}, v{76+fr}')
    stamp(a, 5)
    for kb in range(5):
        for fr in range(2):
            r = F1 + 8*kb + 4*fr
            for w in range(4):
                a(f'v_lshlrev_b32 v{60+2*w}, 16, v{r+w}')
                a(f'v_and_b32 v{61+2*w}, 0xffff0000, v{r+w}')
            for w in range(8): a(f'v_sub_f32 v{60+w}, v{60+w}, v{76+fr}')
            for w in range(4): a(f'v_cvt_pk_bf16_f32 v{r+w}, v{60+2*w}, v{61+2*w}')
            if not OPT.get('sgate', 1):
                a(f'buffer_store_dwordx4 {vr(r,4)}, v70, s[40:43], s{36+fr} offen {PS}')
                a(f's_add_u32 s{36+fr}, s{36+fr}, 12288')
    if OPT.get('sgate', 1):
        stamp(a, 1)
        if OPT.get('sgate', 1) > 1: a(f's_sleep {OPT["sgate"]}')
        for kb in range(5):
            for fr in range(2):
                a(f'buffer_store_dwordx4 {vr(F1+8*kb+4*fr,4)}, v70, s[40:43], s{36+fr} offen {PS}')
                a(f's_add_u32 s{36+fr}, s{36+fr}, 12288')
    a.label('K1_LNEND')
    stamp_end(a, 0)
    a('s_endpgm')
    a.label('K1_W2')
    a('s_sub_u32 s21, s2, 96')
    a('s_lshr_b32 s21, s21, 3')
    a('s_lshl_b32 s21, s21, 2')
    a('s_add_u32 s21, s21, s22')
    a('s_mul_i32 s23, s22, 8448')
    a('s_mul_i32 s34, s21, 0x3334')
    a('s_lshr_b32 s34, s34, 16')
    a('s_mul_i32 s35, s34, 5')
    a('s_sub_u32 s35, s21, s35')
    a('s_and_b32 s37, s2, 7')
    a('s_mul_i32 s37, s37, 3')
    a('s_add_u32 s34, s34, s37')
    srd(a, 8, 60, F*D*2)
    srd(a, 40, 54, W2F_BYTES, WS_W2F)
    a(f'v_mul_u32_u24 v8, {8*1280}, v9')
    a('v_lshl_add_u32 v8, v2, 4, v8')
    a(f's_mul_i32 s36, s34, {64*1280}')
    a('s_lshl_b32 s37, s35, 8')
    a('s_add_u32 s36, s36, s37')
    a('v_and_b32 v12, 3, v7')
    a('v_bfe_u32 v3, v7, 2, 3')
    a('v_mul_u32_u24 v10, 1056, v3')
    a('v_lshrrev_b32 v3, 5, v7')
    a('v_lshl_add_u32 v10, v3, 8, v10')
    a('v_lshl_add_u32 v10, v12, 3, v10')
    a('v_add_u32 v10, s23, v10')
    a('v_add_u32 v11, 512, v10')
    a('v_bfe_u32 v3, v7, 2, 2')
    a('v_mul_u32_u24 v14, 1056, v3')
    a('v_lshl_add_u32 v14, v9, 8, v14')
    a('v_lshl_add_u32 v14, v12, 3, v14')
    a('v_add_u32 v14, s23, v14')
    a('v_add_u32 v15, 4224, v14')
    a('s_mul_i32 s31, s34, 0x5556')
    a('s_lshr_b32 s31, s31, 16')
    a('s_mul_i32 s31, s31, 3')
    a('s_sub_u32 s31, s34, s31')
    a('s_mul_i32 s30, s34, 10240')
    a('s_lshl_b32 s35, s35, 3')
    for j in range(8):
        a(f's_add_u32 s37, s35, {j}')
        a('s_mul_i32 s38, s37, 0xcccd')
        a('s_lshr_b32 s38, s38, 18')
        a(f's_mul_i32 s38, s38, {245760-5*1024}')
        a('s_lshl_b32 s37, s37, 10')
        a('s_add_u32 s37, s37, s38')
        a(f's_add_u32 s{44+j}, s37, s30')
    if OPT.get('hold', 1): a('s_barrier')
    stamp(a, 4)
    lg.done = lg.n
    a('s_cmp_ge_u32 s21, 15')
    a('s_cbranch_scc1 K1_MISC')
    if OPT.get('x_noprep'): a('s_branch K1_LNEND')
    if OPT.get('x_pdelay'): a(f's_sleep {OPT["x_pdelay"]}')
    for u in range(2):
        for i in range(8):
            a(f's_add_u32 m0, s23, {1056*i}')
            a(f's_add_u32 s37, s36, {(32*u+i)*1280}')
            a(f'buffer_load_dwordx4 v8, s[8:11], s37 offen {NTW} lds')
        if u == 1 and not OPT.get('sgate', 1):
            for j in range(8):
                a(f'buffer_store_dwordx4 {vr(16+4*j,4)}, v70, s[40:43], s{44+j} offen {PS}')
                a(f's_add_u32 s{44+j}, s{44+j}, 5120')
        a(f's_cmp_eq_u32 s31, {2 if u == 0 else 0}')
        a('s_cselect_b64 s[32:33], -1, 0')
        a('v_cndmask_b32 v4, v10, v14, s[32:33]')
        a('v_cndmask_b32 v5, v11, v15, s[32:33]')
        a(f's_waitcnt vmcnt({0 if (u == 0 or OPT.get("sgate", 1)) else 8})')
        for j in range(8):
            r = (16 if u == 0 else 76) + 4*j
            a(f'ds_read_b64_tr_b16 {vr(r,2)}, v4 offset:{32*j}')
            a(f'ds_read_b64_tr_b16 {vr(r+2,2)}, v5 offset:{32*j}')
        a('s_waitcnt lgkmcnt(0)')
    if OPT.get('sgate', 1):
        if OPT.get('sgate', 1) > 1: a(f's_sleep {OPT["sgate"]}')
        for j in range(8):
            a(f'buffer_store_dwordx4 {vr(16+4*j,4)}, v70, s[40:43], s{44+j} offen {PS}')
            a(f's_add_u32 s{44+j}, s{44+j}, 5120')
    for j in range(8):
        a(f'buffer_store_dwordx4 {vr(76+4*j,4)}, v70, s[40:43], s{44+j} offen {PS}')
    a('s_branch K1_LNEND')
    a.label('K1_MISC')
    srd(a, 12, 54, 1280*128, WS_CNT)
    a('s_and_b32 s23, s2, 7')
    a('s_mul_i32 s23, s23, 20480')
    a('v_lshlrev_b32 v3, 7, v7')
    for i in range(3):
        a('buffer_store_dword v72, v3, s[12:15], s23 offen')
        a('s_add_u32 s23, s23, 8192')
    a('s_branch K1_LNEND')

    def touch_block():
        a('v_lshlrev_b32 v165, 7, v4')
        a('s_bitcmp0_b32 s2, 7')
        a('s_cbranch_scc1 K1_NOPF2')
        TN = 'nt' if OPT.get('tnt', 0) else ''
        a('s_lshr_b32 s16, s2, 8')
        a('s_lshl_b32 s16, s16, 4')
        a('s_bfe_u32 s17, s2, 0x40003')
        a('s_add_u32 s16, s16, s17')
        a('s_and_b32 s18, s2, 7')
        a(f's_mov_b32 s14, {D*F*2}')
        a('s_mov_b32 s15, 0x20000')
        if OPT.get('touch', 1):
            a('s_cmp_ge_u32 s16, 30')
            a('s_cbranch_scc1 K1_TW2')
            a('s_cmp_ge_u32 s18, 4')
            a('s_cselect_b32 s12, s6, s4')
            a('s_cselect_b32 s13, s7, s5')
            a('s_and_b32 s17, s18, 3')
            a('s_mul_i32 s17, s17, 768')
            a('s_lshl_b32 s16, s16, 7')
            a('s_mov_b32 s19, 0xaaab')
            for t in range(2):
                a('v_add_u32 v20, s16, v4')
                if t: a('v_add_u32 v20, 64, v20')
                a('v_mul_u32_u24 v21, s19, v20')
                a('v_lshrrev_b32 v21, 18, v21')
                a(f'v_mul_u32_u24 v21, {3072-768}, v21')
                a('v_lshl_add_u32 v21, v20, 7, v21')
                a(f'buffer_load_dword v164, v21, s[12:15], s17 offen {TN}')
            a('s_branch K1_TWD')
            a.label('K1_TW2')
            a('s_cmp_ge_u32 s16, 45')
            a('s_cbranch_scc1 K1_TWD')
            a('s_mov_b32 s12, s8')
            a('s_mov_b32 s13, s9')
            a('s_sub_u32 s16, s16, 30')
            a('s_lshl_b32 s16, s16, 14')
            a('s_mul_i32 s17, s18, 245760')
            a('s_add_u32 s17, s17, s16')
            a(f'buffer_load_dword v164, v165, s[12:15], s17 offen {TN}')
            a('s_add_u32 s17, s17, 8192')
            a(f'buffer_load_dword v164, v165, s[12:15], s17 offen {TN}')
            a.label('K1_TWD')
        if OPT['pf']:
            a('s_cmp_ge_u32 s20, 32')
            a('s_cbranch_scc1 K1_NOPF2')
            a('s_lshr_b32 s16, s20, 3')
            a('s_lshl_b32 s16, s16, 13')
            a('v_add_u32 v165, s16, v165')
            code_prefetch(a, 'k3_kernel', 'CODE_END', 1, 165, 164, 12)
            a.label('K1_NOPF2')

    a.label('K1_KGEN')
    a(f's_setprio {OPT.get("kprio", 2)}')
    a(f's_load_dwordx8 s[4:11], s[0:1], {KA["Are"]}')
    a(f's_load_dwordx8 s[12:19], s[0:1], {KA["Cre"]}')
    a(f's_load_dwordx4 s[52:55], s[0:1], {KA["dbg"]}')
    if OPT.get('t0', 0):
        a(f's_load_dwordx4 s[56:59], s[0:1], {KA["Wg"]}')
        a(f's_load_dwordx2 s[60:61], s[0:1], {KA["Wd"]}')
    a(f's_sub_u32 s20, s2, {NLN}')
    a('s_and_b32 s3, s20, 7')
    a('s_mul_i32 s3, s3, 80')
    a('s_lshr_b32 s21, s20, 3')
    a('s_add_u32 s3, s3, s21')
    a('v_lshrrev_b32 v1, 6, v0')
    a('v_lshlrev_b32 v2, 1, v0')
    a('v_readfirstlane_b32 s22, v1')
    a('s_mul_i32 s23, s3, 384')
    a('s_lshl_b32 s24, s3, 1')
    a('s_and_b32 s24, s24, 0xfffffffc')
    a('v_and_b32 v4, 63, v0')
    a('v_lshlrev_b32 v7, 1, v4')
    PRM = 8
    for i in range(6): a(f'v_mov_b32 v{PRM+i}, 0')
    EX = 136
    GOFF = GT + 512 - 0xC00 - 1
    a('v_lshlrev_b32 v14, 3, v0')
    a('v_cvt_f32_u32 v15, v14')
    for e in range(11): a(f'v_add_f32 v{EX+e}, {f2u(float(e-3))}, v15')
    for e in range(11): a(f'v_cvt_pk_bf16_f32 v{EX+e}, v{EX+e}, v{EX+e}')
    a('s_waitcnt lgkmcnt(0)')
    stamp(a, 1)
    a(f's_lshl_b32 s27, s22, 16')
    a('s_add_u32 s27, s27, s2')
    a(f's_cmp_lg_u32 s27, {(3 << 16) + NLN + 1}')
    a('s_cbranch_scc1 K1_NOINIT')
    srd(a, 64, 54, 0xA000, WS_F1)
    srd(a, 68, 52, 256)
    a('v_lshlrev_b32 v20, 7, v4')
    a('v_mov_b32 v21, 0')
    a('v_mov_b32 v22, 1')
    a('s_mov_b32 s27, 0x4000')
    a('buffer_store_dword v21, v20, s[64:67], s27 offen sc1')
    a('s_mov_b32 s27, 0x6000')
    a('buffer_store_dword v21, v20, s[64:67], s27 offen sc1')
    a('s_mov_b32 s27, 0x8000')
    a('buffer_store_dword v21, v20, s[64:67], s27 offen sc1')
    a('s_waitcnt vmcnt(0)')
    a('s_mov_b64 exec, 1')
    a('buffer_store_dword v22, v21, s[68:71], 0 offen sc1')
    a('s_mov_b64 exec, -1')
    a.label('K1_NOINIT')
    a('s_load_dword s25, s[16:17], s24')
    a('s_load_dword s26, s[18:19], s24')
    for i in range(2): srd(a, 28 + 4*i, 4 + 2*i, D*N*2)
    a('s_cmp_eq_u32 s22, 3')
    a('s_cbranch_scc1 K1_LDQ')
    for i in range(6):
        s = 28 + 4*i
        if i >= 2: srd(a, s, 4 + 2*i, D*N*2)
        a(f'buffer_load_short_d16_hi v{PRM+i}, v2, {sr(s,4)}, s23 offen {NT}')
    a('s_branch K1_LDD')
    a.label('K1_LDQ')
    for c in range(3):
        for i in range(2):
            a(f'buffer_load_short_d16_hi v{PRM+2*c+i}, v7, {sr(28+4*i,4)}, s23 offen offset:{128*c} {NT}')
    if OPT.get('t0', 0):
        a('s_lshr_b32 s36, s2, 8')
        a('s_lshl_b32 s36, s36, 4')
        a('s_bfe_u32 s37, s2, 0x40003')
        a('s_add_u32 s36, s36, s37')
        a('s_and_b32 s38, s2, 7')
        a('s_cmp_ge_u32 s38, 4')
        a('s_cselect_b32 s40, s58, s56')
        a('s_cselect_b32 s41, s59, s57')
        a('s_and_b32 s37, s38, 3')
        a('s_mul_i32 s37, s37, 768')
        a('s_mul_i32 s39, s38, 245760')
        a(f's_sub_u32 s39, s39, {30*16384}')
        a('s_cmp_ge_u32 s36, 30')
        a('s_cselect_b32 s40, s60, s40')
        a('s_cselect_b32 s41, s61, s41')
        a('s_cselect_b32 s37, s39, s37')
        a('s_cselect_b32 s44, 0, 0xaaab')
        a(f's_mov_b32 s42, {D*F*2}')
        a('s_cmp_ge_u32 s36, 45')
        a('s_cselect_b32 s42, 0, s42')
        a('s_bitcmp0_b32 s2, 7')
        a('s_cselect_b32 s42, 0, s42')
        a('s_mov_b32 s43, 0x20000')
        a('s_lshl_b32 s36, s36, 7')
        for t in range(2):
            a('v_add_u32 v20, s36, v4')
            if t: a('v_add_u32 v20, 64, v20')
            a('v_mul_u32_u24 v21, s44, v20')
            a('v_lshrrev_b32 v21, 18, v21')
            a(f'v_mul_u32_u24 v21, {3072-768}, v21')
            a('v_lshl_add_u32 v21, v20, 7, v21')
            a('v_add_u32 v21, s37, v21')
            a('buffer_load_dword v164, v21, s[40:43], 0 offen')
    else:
        a(f's_load_dwordx4 s[4:7], s[0:1], {KA["Wg"]}')
        a(f's_load_dwordx2 s[8:9], s[0:1], {KA["Wd"]}')
    a.label('K1_LDD')
    srd(a, 56, 54, REC_BYTES, WS_REC)
    srd(a, 60, 54, 0x280000, WS_HT)
    srd(a, 68, 52, 256)
    srd(a, 64, 54, 0xA000, WS_F1)
    for e in range(11): a(f'v_bfe_u32 v{EX+e}, v{EX+e}, 14, 13')
    a('v_mov_b32 v152, 0')
    a('v_cmp_eq_u32 s[72:73], 0, v0')
    a('s_cmp_lg_u32 s22, 0')
    a('s_cbranch_scc1 K1_NOFIX')
    a('v_lshlrev_b32 v15, 2, v14')
    for e in range(11):
        a(f'v_add_u32 v16, {4*(e-3) + GT - GOFF}, v15')
        a(f'v_cmp_gt_i32 vcc, {128-(e-3)}, v14')
        a(f'v_cndmask_b32 v{EX+e}, v{EX+e}, v16, vcc')
    a(f'v_mov_b32 v16, {ZS - GOFF}')
    for e in range(3): a(f'v_cndmask_b32 v{EX+e}, v{EX+e}, v16, s[72:73]')
    a(f'ds_write_b32 v152, v152 offset:{ZS}')
    a.label('K1_NOFIX')
    a('v_and_b32 v17, 1, v0')
    a('v_and_b32 v5, 15, v0')
    a('v_bfe_u32 v6, v0, 4, 2')
    a(f'v_mul_u32_u24 v108, {TS}, v5')
    a('v_lshl_add_u32 v108, v6, 4, v108')
    a(f's_mul_i32 s27, s22, {16*TS}')
    a(f's_add_u32 s27, s27, {16*TS}')
    a('v_add_u32 v109, s27, v108')
    a('v_lshlrev_b32 v110, 6, v5')
    a('v_lshl_add_u32 v110, v6, 4, v110')
    a('v_add_u32 v111, 8, v110')
    a('s_cmp_eq_u32 s22, 0')
    a('s_cbranch_scc1 K1_GA')
    a('v_lshlrev_b32 v110, 3, v5')
    a('v_lshl_add_u32 v110, v6, 8, v110')
    a('v_add_u32 v110, 2048, v110')
    a('v_add_u32 v111, 128, v110')
    a('s_cmp_lg_u32 s22, 1')
    a('s_cbranch_scc1 K1_GA')
    a('v_lshlrev_b32 v110, 5, v5')
    a('v_lshl_add_u32 v110, v6, 4, v110')
    a('v_lshlrev_b32 v111, 4, v5')
    a('v_lshl_add_u32 v111, v6, 8, v111')
    a('v_cmp_gt_u32 vcc, 2, v6')
    a('v_cndmask_b32 v110, v111, v110, vcc')
    a('v_add_u32 v110, 1024, v110')
    a('v_add_u32 v111, 8, v110')
    a.label('K1_GA')
    a('v_lshlrev_b32 v112, 4, v0')
    a('v_lshlrev_b32 v151, 4, v4')
    a('v_lshrrev_b32 v16, 1, v0')
    a('v_lshlrev_b32 v153, 7, v16')
    a('v_mul_u32_u24 v155, 20480, v16')
    a('v_lshl_add_u32 v155, v17, 4, v155')
    a(f'v_mul_u32_u24 v154, {2*UPS}, v17')
    a('v_lshl_add_u32 v154, v16, 3, v154')
    a('v_and_b32 v18, 3, v0')
    a('v_bfe_u32 v19, v0, 2, 2')
    a('v_sub_u32 v19, v18, v19')
    a('v_lshlrev_b32 v20, 3, v6')
    a('v_sub_u32 v19, v19, v20')
    a(f's_mul_i32 s74, s22, {KC}')
    a('s_add_u32 s75, s74, 224')
    a('v_lshl_add_u32 v147, v19, 3, s75')
    if OPT.get('exb', 0):
        a('v_lshl_add_u32 v162, v5, 2, v6')
        a('v_lshl_add_u32 v162, v162, 3, s74')
    else:
        a('v_add_u32 v162, s74, v151')
    a('v_lshl_add_u32 v166, v18, 3, s74')
    a('v_lshl_add_u32 v19, v6, 1, v5')
    a(f's_mul_i32 s74, s22, {UPS}')
    a(f's_add_u32 s75, s74, {UPO+8}')
    a('v_lshl_add_u32 v148, v19, 3, s75')
    a('v_xor_b32 v19, 1, v17')
    a(f'v_mul_u32_u24 v19, {C1}, v19')
    a('v_add_u32 v148, v148, v19')
    a('v_bfe_u32 v19, v0, 4, 1')
    a(f'v_mul_u32_u24 v19, {C1}, v19')
    a('v_lshl_add_u32 v19, v5, 3, v19')
    a('v_add_u32 v167, s74, v19')
    a('v_lshlrev_b32 v149, 5, v0')
    a('v_lshlrev_b32 v157, 2, v0')
    a('v_lshrrev_b32 v20, 4, v0')
    a('v_mul_u32_u24 v150, 163840, v20')
    a('v_lshl_add_u32 v150, v5, 4, v150')
    a('v_lshlrev_b32 v20, 9, v17')
    a('v_bfe_u32 v19, v0, 1, 4')
    a('v_lshl_add_u32 v20, v19, 4, v20')
    a('v_bfe_u32 v18, v0, 5, 2')
    a('v_lshl_add_u32 v20, v18, 10, v20')
    a('s_cmp_lt_u32 s22, 2')
    a(f's_cselect_b32 s74, {EXO-32}, 0')
    a('v_add_u32 v163, s74, v20' if not OPT.get('exb', 0) else 'v_lshlrev_b32 v163, 4, v0')
    a('s_waitcnt lgkmcnt(0)')
    a('s_bitcmp1_b32 s3, 0')
    a('s_cselect_b32 s24, 0, 16')
    a('s_lshl_b32 s25, s25, s24')
    a('s_and_b32 s25, s25, 0xffff0000')
    a('s_lshl_b32 s26, s26, s24')
    a('s_and_b32 s26, s26, 0xffff0000')
    a('v_mov_b32 v5, s26')
    a('v_cndmask_b32 v113, 0, v5, s[72:73]')
    a(f'v_mov_b32 v5, {f2u(math.log2(math.e))}')
    a('v_mul_f32 v5, s25, v5')
    a('v_exp_f32 v5, v5')
    round_bf16(a, 5, 5)
    a(f'v_mul_f32 v6, {f2u(math.log2(math.e))}, v5')
    a(f'v_mul_f32 v7, {f2u(1/(2*math.pi))}, v5')
    a(f'v_mul_f32 v16, {f2u(256.0)}, v6')
    a(f'v_mul_f32 v17, {f2u(256.0)}, v7')
    a(f'v_mul_f32 v18, {f2u(16.0)}, v6')
    a(f'v_mul_f32 v19, {f2u(-16.0)}, v7')
    a(f's_waitcnt vmcnt({2 if OPT.get("t0", 0) else 0})')
    a('s_mov_b32 s33, 0x4000')
    a('s_lshl_b32 s30, s3, 5')
    a('s_lshl_b32 s29, s3, 8')
    a('s_mov_b32 s75, 0x2000')
    stamp(a, 2)
    a('s_cmp_eq_u32 s22, 3')
    a('s_cbranch_scc1 K1_Q')
    a('s_waitcnt vmcnt(0)')
    LOG2E = math.log2(math.e); I2PI = 1/(2*math.pi)
    def anchors(lst):
        for k, (r, ra, ia, sa, sb) in enumerate(lst):
            tt = 20 + 3*k
            a(f'v_mul_f32 v{tt}, v{sa}, v{ra}')
            a(f'v_mul_f32 v{tt+1}, v{sb}, v{ia}')
        for k in range(len(lst)): a(f'v_fract_f32 v{21+3*k}, v{21+3*k}')
        for k in range(len(lst)):
            tt = 20 + 3*k
            a(f'v_exp_f32 v{tt}, v{tt}')
            a(f'v_cos_f32 v{tt+2}, v{tt+1}')
            a(f'v_sin_f32 v{tt+1}, v{tt+1}')
        for k, (r, ra, ia, sa, sb) in enumerate(lst):
            tt = 20 + 3*k
            a(f'v_mul_f32 v{r}, v{tt}, v{tt+2}')
            a(f'v_mul_f32 v{r+1}, v{tt}, v{tt+1}')
    _tmp = [0]
    def put(src, row, off=0, tb=20):
        t_ = 1000 + _tmp[0]; _tmp[0] += 1
        re_, im_ = src if isinstance(src, tuple) else (f'v{src}', f'v{src+1}')
        return [f'v_cvt_pk_bf16_f32 v{t_}, {re_}, {im_}', f'ds_write_addtid_b32 v{t_} offset:{row*TS+off}']
    def sched(tasks):
        out = []; done = {}; active = []; pend = list(tasks); last = None; t = 0
        while pend or active:
            for tk in list(pend):
                if len(active) >= 3: break
                if all(d in done for d in tk[1]):
                    active.append([tk[0], list(tk[2]), max([done[d] for d in tk[1]] + [-9])]); pend.remove(tk)
            cand = [x for x in active if x[2] < t - 1] or [x for x in active if x[2] < t] or active
            x = cand[0]
            out.append(x[1].pop(0)); x[2] = t
            if not x[1]: done[x[0]] = t; active.remove(x)
            t += 1
        return out
    def fix_tmp(l):
        out = []; k = 0; m = {}
        for x in l:
            if x.startswith('v_cvt_pk'):
                old_ = x.split()[1].rstrip(','); new_ = f'v{96 + k % 8}'; k += 1
                assert old_ not in m, 'temp reuse'
                m[old_] = new_
                x = x.replace(old_ + ',', new_ + ',', 1)
            elif x.startswith('ds_write_addtid'):
                old_ = x.split()[1]; x = x.replace(old_ + ' ', m.pop(old_) + ' ', 1)
            out.append(x)
        return out
    def cm(r, x, y):
        q = Rec(); cmul(q, r, x, y); return q.l
    for i in (2, 3): a(f'v_mul_f32 v{PRM+i}, v5, v{PRM+i}')
    a('s_lshl_b32 m0, s22, 8')
    P0 = 32; TA = 64; TB = 80; TC = 114; TL = 130
    cmul(a, P0, 10, 12)
    anchors([(14, 8, 9, 6, 7), (18, 8, 9, 16, 17)])
    D_ = []
    def node(key, name, deps, dst, src, mul, row):
        D_.append((key, (name, deps, cm(dst, src, mul))))
        D_.append((key + 0.01, ('w' + name, [name], put(dst, row, 0, 96))))
    D_.append((-1, ('w0', [], put(P0, 16, 0, 96))))
    for b in range(1, 16): node(b - 0.5, f'p{b}', [f'p{b-1}'] if b > 1 else [], P0+2*b, P0+2*(b-1), 14, 16+b)
    def pd(b): return [f'p{b}'] if b > 0 else []
    for b in range(8): node(2*b, f'a{b}', pd(2*b), TA+2*b, P0+4*b, 18, 32+b)
    for b in range(4): node(4*b+0.7, f'b{b}', [f'a{2*b}'], TB+2*b, TA+4*b, 18, 40+b)
    for b in range(4): node(4*b+1.7, f'b{4+b}', [f'b{b}'], TB+8+2*b, TB+2*b, 18, 44+b)
    for aa in range(4):
        for b in range(2):
            src = (TB+8+4*b, f'b{4+2*b}') if aa == 0 else (TC+2*(2*(aa-1)+b), f'c{2*(aa-1)+b}')
            node(8*b+2.7+aa, f'c{2*aa+b}', [src[1]], TC+2*(2*aa+b), src[0], 18, 48+2*aa+b)
    node(6.8, 'l', ['c6'], TL, TC+12, 18, 56)
    TAIL = fix_tmp(sched([x[1] for x in sorted(D_, key=lambda x: x[0])]))
    _n = [0]
    def rel0_check():
        _n[0] += 1; lab = f'K1_R0_{_n[0]}'
        a('s_mov_b32 s27, 0')
        a.label(lab)
        a('s_waitcnt vmcnt(0)')
        a('v_cmp_ne_u32 vcc, 1, v156')
        a(f's_cbranch_vccz {lab}D')
        a('s_add_u32 s27, s27, 1')
        a(f's_cmp_ge_u32 s27, {SPIN_MAX}')
        a(f's_cbranch_scc1 {lab}D')
        a('s_sleep 4')
        a('buffer_load_dword v156, v152, s[68:71], 0 offen sc1')
        a(f's_branch {lab}')
        a.label(lab + 'D')
    def poll_issue():
        a('buffer_load_dword v156, v153, s[64:67], s33 offen sc1')
    def poll_check():
        _n[0] += 1; lab = f'K1_PC_{_n[0]}'
        a('s_waitcnt vmcnt(0)')
        a('v_cmp_eq_u32 vcc, 1, v156' if not OPT.get('x_np') else 'v_cmp_eq_u32 vcc, v156, v156')
        a('s_and_saveexec_b64 s[34:35], vcc')
        a(f's_cbranch_execz {lab}')
        a('buffer_load_dwordx4 v[158:161], v155, s[56:59], s30 offen sc1')
        a.label(lab)
        a('s_andn2_b64 exec, s[34:35], exec')
    def after_b1(tag):
        a(f's_cmp_lt_u32 s2, {OPT.get("early", 640)}')
        a(f's_cbranch_scc1 K1_NE{tag}')
        a('buffer_load_dword v156, v152, s[68:71], 0 offen sc1')
        a.label(f'K1_NE{tag}')
    for tt in TAIL: a(tt)
    a('s_waitcnt lgkmcnt(0)')
    a('s_barrier')
    stamp(a, 3)
    FR = 4
    def rd(s):
        b = FR + 8*s
        a(f'ds_read_b128 {vr(b,4)}, v109 offset:{64*s}')
        a(f'ds_read_b128 {vr(b+4,4)}, v108 offset:{64*s}')
    for s in range(7): rd(s)
    after_b1('P')
    for s in range(12):
        a(f's_waitcnt lgkmcnt({min(12, 2*(11-s))})')
        b = FR + 8*s
        a(f'v_mfma_f32_16x16x32_bf16 v[114:117], {vr(b,4)}, {vr(b+4,4)}, {"0" if s == 0 else "v[114:117]"}')
        if s + 7 < 12: rd(s+7)
    a('v_add_f32 v114, v114, v113')
    a(f'ds_write_b64 v110, v[114:115] offset:{GT}')
    a(f'ds_write_b64 v111, v[116:117] offset:{GT}')
    a('s_branch K1_B2')
    a.label('K1_Q')
    if not OPT.get('tlate', 0) and not OPT.get('t0', 0): touch_block()
    a('s_mov_b32 m0, 0')
    anchors([(32+8*c, 8+2*c, 9+2*c, 18, 19) for c in range(3)])
    recs = []
    for c in range(3):
        z = 32 + 8*c
        r = put(('1.0', '0'), 0, 256*c) + put(z, 1, 256*c)
        prev = z
        for b in range(2, 16):
            cur = z + 2 + 2*(b % 3)
            r += cm(cur, prev, z) + put(cur, b, 256*c)
            prev = cur
        recs.append(r)
    ql = fix_tmp(interleave(*recs))
    for k_, tt in enumerate(ql):
        a(tt)
    a('s_waitcnt lgkmcnt(0)')
    a('s_barrier')
    stamp(a, 3)
    after_b1('Q')
    if OPT.get('tlate', 0): touch_block()
    a.label('K1_B2')
    a('s_waitcnt lgkmcnt(0)')
    a('s_barrier')
    for e in range(11):
        a(f'ds_read_b32 v{8+e}, v{EX+e} offset:{GOFF}')
    a(f's_cmp_lt_u32 s2, {OPT.get("early", 640)}')
    a('s_cbranch_scc1 K1_NE2')
    rel0_check()
    poll_issue()
    a('s_branch K1_NE3')
    a.label('K1_NE2')
    a('buffer_load_dword v156, v152, s[68:71], 0 offen sc1')
    a.label('K1_NE3')
    a('v_mov_b32 v6, 0')
    a('v_mov_b32 v7, 0')
    a('ds_write_b64 v166, v[6:7]')
    a(f'ds_write_b64 v167, v[6:7] offset:{UPO}')
    a('s_waitcnt lgkmcnt(2)')
    for ph in range(4):
        for j in range(4):
            a(f'v_cvt_pk_bf16_f32 v{20+4*ph+j}, v{8+3-ph+2*j}, v{8+4-ph+2*j}')
        a(f'ds_write_b128 v112, {vr(20+4*ph,4)} offset:{KC*ph+32}')
    a('s_waitcnt lgkmcnt(0)')
    a('s_barrier')
    stamp(a, 4)
    lg = Cnt(a, 'lgkmcnt', 15)
    AF = 4; BR = 68; NB = 6; ACC = 104
    def rdB(b):
        r = BR + 4*((b+1) % NB)
        a(f'ds_read_b128 {vr(r,4)}, v148 offset:{64*(b+1)}'); lg.issue(('B', b))
    def rdA(m):
        a(f'ds_read_b64_tr_b16 {vr(AF+4*m,2)}, v147 offset:{256*m+32}'); lg.issue()
        a(f'ds_read_b64_tr_b16 {vr(AF+4*m+2,2)}, v147 offset:{256*m}'); lg.issue(('A', m))
    for m in list(range(1, 16, 2)) + list(range(0, 16, 2)): rdA(m)
    a(f's_cmp_ge_u32 s2, {OPT.get("early", 640)}')
    a('s_mov_b32 s27, 0')
    a('s_cbranch_scc1 K1_POLL1C')
    rel0_check()
    if OPT.get('hint', 2):
        a(f's_cmp_ge_u32 s2, {OPT.get("hintmax", 384)}')
        a('s_cbranch_scc1 K1_HINTD')
        a('s_lshr_b32 s31, s20, 3')
        a('s_add_u32 s31, s31, s22')
        a(f's_and_b32 s31, s31, {15 if OPT.get("hint", 2) == 1 else 7}')
        a('s_lshl_b32 s31, s31, 3')
        a('s_and_b32 s32, s20, 7')
        a('s_add_u32 s31, s31, s32')
        a('s_lshl_b32 s31, s31, 7')
        a(f's_add_u32 s31, s31, {0x4000 if OPT.get("hint", 2) == 1 else 0x8000}')
        a('s_mov_b64 exec, 1')
        a('s_mov_b32 s27, 0')
        a.label('K1_HINT')
        a('buffer_load_dword v156, v152, s[64:67], s31 offen sc1')
        a('s_add_u32 s27, s27, 1')
        a(f's_cmp_ge_u32 s27, {SPIN_MAX}')
        a('s_cbranch_scc1 K1_HINTD')
        a('s_waitcnt vmcnt(0)')
        a('v_cmp_ne_u32 vcc, 1, v156')
        a('s_cbranch_vccz K1_HINTD')
        a(f's_sleep {OPT.get("hsleep", 2)}')
        a('s_branch K1_HINT')
        a.label('K1_HINTD')
        a('s_mov_b64 exec, -1')
    a('s_mov_b32 s27, 0')
    a.label('K1_POLL1')
    poll_issue()
    a.label('K1_POLL1C')
    poll_check()
    a('s_cbranch_execz K1_POLL1D')
    a('s_add_u32 s27, s27, 1')
    a(f's_cmp_ge_u32 s27, {SPIN_MAX}')
    a('s_cbranch_scc1 K1_POLL1D')
    a(f's_sleep {OPT.get("sleep1", 4)}')
    a('s_branch K1_POLL1')
    a.label('K1_POLL1D')
    a('s_mov_b64 exec, -1')
    stamp(a, 2)
    a('s_waitcnt vmcnt(0)')
    PKS = OPT.get('pks', 1)
    a('buffer_load_dwordx4 v[136:139], v149, s[64:67], 0 offen sc1')
    a('buffer_load_dwordx4 v[140:143], v149, s[64:67], 0 offen offset:16 sc1')
    if not PKS:
        a('buffer_load_dwordx4 v[92:95], v149, s[64:67], s75 offen sc1')
        a('buffer_load_dwordx4 v[96:99], v149, s[64:67], s75 offen offset:16 sc1')
    a(f'ds_write_b64 v154, v[158:159] offset:{UPO+128}'); lg.issue()
    a(f'ds_write_b64 v154, v[160:161] offset:{UPO+128+UPS}'); lg.issue()
    a(f'ds_write_b64 v154, v[158:159] offset:{UPO+128+C1}'); lg.issue()
    a(f'ds_write_b64 v154, v[160:161] offset:{UPO+128+UPS+C1}'); lg.issue()
    lg.wait_all()
    a('s_barrier')
    a(f's_setprio {OPT.get("cprio", 0)}')
    stamp(a, 5)
    for b in range(-1, 4): rdB(b)
    ex = Rec()
    for r in range(4): ex(f'ds_read_b32 v{100+r}, v157 offset:{UPO+128+UPS*r}')
    ex2 = Rec()
    ex2('s_waitcnt vmcnt(0)')
    if PKS:
        for r in range(8):
            ex2(f'v_lshlrev_b32 v{92+r}, 16, v{136+r}')
            ex2(f'v_and_b32 v{136+r}, 0xffff0000, v{136+r}')
    for e in range(2):
        for r in range(4):
            ex2(f'v_lshlrev_b32 v{144+r}, 16, v{100+r}' if e == 0 else f'v_and_b32 v{144+r}, 0xffff0000, v{100+r}')
        for r in range(4):
            ex2(f'v_fmac_f32 v{92+4*e+r}, v{136+4*e+r}, v{144+r}')
    exl = list(ex.l)
    q = [(lambda b=b: rdB(b)) for b in range(4, 15)]
    wq = []
    issuedB = lambda: max([k[1] for k in lg.tags if k[0] == 'B'])
    for b in range(-1, 15):
        if b == OPT.get('xb2', 6): exl += ex2.l
        while ('B', b) not in lg.tags: q.pop(0)()
        lg.wait(('B', b))
        r = BR + 4*((b+1) % NB)
        ms = [m for m in range(16) if (m + b) % 2 == 0 and 0 <= (m + b)//2 <= 7]
        for m in ms:
            t = (m + b)//2
            acc = ACC + 4*t
            a(f'v_mfma_f32_16x16x32_bf16 {vr(acc,4)}, {vr(AF+4*m,4)}, {vr(r,4)}, {"0" if b == -1 else vr(acc,4)}')
            if wq and wq[0][0] <= 0: wq.pop(0)[1]()
            elif q and issuedB() < b + NB - 1 and (b >= 1 or not exl): q.pop(0)()
            else:
                for _ in range(2):
                    if exl:
                        t_ = exl.pop(0); a(t_)
                        if t_.startswith('ds_'): lg.issue()
            wq = [(d-1, f) for d, f in wq]
            if b == 2*t:
                def wr(t=t):
                    if OPT.get('exb', 0):
                        a(f'v_cvt_pk_bf16_f32 v{ACC+4*t}, v{ACC+4*t}, v{ACC+4*t+1}')
                        a(f'v_cvt_pk_bf16_f32 v{ACC+4*t+1}, v{ACC+4*t+2}, v{ACC+4*t+3}')
                        a(f'ds_write_b64 v162, {vr(ACC+4*t,2)} offset:{EXO+512*t}'); lg.issue()
                    else:
                        a(f'ds_write_b128 v162, {vr(ACC+4*t,4)} offset:{(EXO if t < 4 else 32)+1024*(t&3)}'); lg.issue()
                wq.append((3, wr))
    stamp(a, 6)
    a(f's_setprio {OPT.get("eprio", 1)}')
    for t_ in exl: a(t_)
    for d, f in wq: f()
    if OPT.get('l2pf', 0):
        a('s_lshr_b32 s31, s20, 3')
        a('s_lshl_b32 s31, s31, 2')
        a('s_add_u32 s31, s31, s22')
        a(f's_cmp_ge_u32 s31, {120*OPT.get("l2pf", 1)}')
        a('s_cbranch_scc1 K1_NOL2')
        a('s_and_b32 s32, s20, 3')
        a('s_mul_i32 s32, s32, 983040')
        a('s_and_b32 s34, s20, 1')
        a('s_mul_i32 s34, s34, 983040')
        a(f's_add_u32 s34, s34, {WS_W2F-WS_W1F-983040}')
        a('s_cmp_ge_u32 s31, 120')
        a('s_cselect_b32 s32, s34, s32')
        a('s_lshl_b32 s31, s31, 13')
        a('s_add_u32 s31, s31, s32')
        srd(a, 36, 54, WS_W2F-WS_W1F+W2F_BYTES, WS_W1F)
        a('v_lshlrev_b32 v164, 3, v151')
        a('buffer_load_dword v165, v164, s[36:39], s31 offen')
        a.label('K1_NOL2')
    a('s_waitcnt lgkmcnt(0)')
    a('s_barrier')
    if OPT.get('exb', 0):
        for k in range(4): a(f'ds_read_b128 {vr(4+4*k,4)}, v163 offset:{EXO+KC*k}')
        for k in range(4):
            a(f's_waitcnt lgkmcnt({3-k})')
            for r in range(4):
                a(f'v_lshlrev_b32 v{24+2*r}, 16, v{4+4*k+r}')
                a(f'v_and_b32 v{25+2*r}, 0xffff0000, v{4+4*k+r}')
            for r in range(8): a(f'v_add_f32 v{92+r}, v{92+r}, v{24+r}')
    else:
        for k in range(4):
            for e in range(2):
                a(f'ds_read_b128 {vr(4+8*k+4*e,4)}, v163 offset:{32+KC*k+256*e}')
        for k in range(4):
            a(f's_waitcnt lgkmcnt({6-2*k})')
            for r in range(8):
                a(f'v_add_f32 v{92+r}, v{92+r}, v{4+8*k+r}')
    for r in range(4): a(f'v_cvt_pk_bf16_f32 v{40+r}, v{92+2*r}, v{93+2*r}')
    a(f'buffer_store_dwordx4 v[40:43], v150, s[60:63], s29 offen {"sc1" if OPT.get("htsc1", 1) else ""}')
    stamp_end(a, 0)
    a.label('K1_END')
    a('s_endpgm')
    return a
```

```python
from common import *
K3_GRID = 256
HIMG = 8*1056
STG = HIMG + 12288
NS = 4
NK = 20
LAG = 3
R0 = 15 * 5120
K3_LDS = 163840
SPIN_MAX = 200000

def gen_k34():
    a = Asm()
    OST = ['', 'sc1', 'nt', 'sc0 sc1'][OPT.get('ost', 0)]
    a(f's_cmp_ge_u32 s2, {K3_GRID}')
    a('s_cbranch_scc1 K3_END')
    stamp_init(a)
    t0_mark(a, 1 if OPT.get('merged', 1) else 2)
    a(f's_load_dwordx2 s[16:17], s[0:1], {KA["ws"]}')
    a(f's_load_dwordx2 s[6:7], s[0:1], {KA["out"]}')
    a('v_lshrrev_b32 v1, 6, v0')
    a('v_and_b32 v2, 63, v0')
    a('v_readfirstlane_b32 s22, v1')
    a('s_and_b32 s3, s2, 7')
    a('s_lshr_b32 s18, s2, 3')
    a('s_lshr_b32 s19, s18, 2')
    a('s_and_b32 s21, s18, 3')
    if OPT.get('map1', 1):
        a('s_lshr_b32 s23, s3, 2')
        a('s_lshl_b32 s23, s23, 3')
        a('s_add_u32 s23, s23, s19')
        a('s_and_b32 s24, s3, 3')
        a('s_lshl_b32 s24, s24, 2')
        a('s_add_u32 s24, s24, s21')
    else:
        a('s_lshr_b32 s23, s3, 1')
        a('s_lshl_b32 s23, s23, 2')
        a('s_add_u32 s23, s23, s21')
        a('s_and_b32 s24, s3, 1')
        a('s_lshl_b32 s24, s24, 3')
        a('s_add_u32 s24, s24, s19')
    M2 = OPT.get('map2', 1)
    if M2:
        a('s_and_b32 s20, s3, 1')
        a('s_lshl_b32 s20, s20, 2')
        a('s_add_u32 s20, s20, s21')
        a('s_lshr_b32 s5, s3, 1')
        a('s_lshl_b32 s5, s5, 3')
        a('s_add_u32 s5, s5, s19')
        a('s_mov_b32 s4, s19')
        a('s_mov_b32 s63, s21')
    else:
        a('s_mov_b32 s20, s19')
        a('s_lshl_b32 s5, s3, 2')
        a('s_add_u32 s5, s5, s21')
        a('s_mov_b32 s4, s21')
        a('s_mov_b32 s63, s19')
    RK = (12 if M2 else 6) * OPT.get('rot2', 0)
    PFL = 60 if M2 else 120
    a('s_cmp_lt_u32 s22, 4')
    a('s_cbranch_scc1 K3_COMP')
    a('s_sub_u32 s22, s22, 4')
    if OPT.get('lprio', 0): a(f's_setprio {OPT["lprio"]}')
    a('v_lshrrev_b32 v7, 4, v2')
    a('v_and_b32 v9, 15, v2')
    a('v_lshlrev_b32 v8, 11, v7')
    a('v_lshl_add_u32 v8, v9, 4, v8')
    a('v_lshlrev_b32 v10, 4, v2')
    a('s_mul_i32 s27, s23, 163840')
    a('s_lshl_b32 s26, s22, 9')
    a('s_add_u32 s27, s27, s26')
    a('s_mul_i32 s28, s24, 245760')
    a('s_mul_i32 s26, s22, 3072')
    a('s_add_u32 s28, s28, s26')
    a('s_mul_i32 s29, s22, 2112')
    a(f's_add_u32 s29, s29, {R0}')
    a(f's_add_u32 s30, s26, {R0+HIMG}')
    a('s_waitcnt lgkmcnt(0)')
    srd(a, 12, 16, 0x280000, WS_HT)
    srd(a, 8, 16, W1F_BYTES, WS_W1F)
    vm = Cnt(a, 'vmcnt', 63)
    def dma_pre(s):
        a(f's_add_u32 m0, s30, {(s % NS) * STG}')
        a(f's_add_u32 s31, s28, {12288*s}')
        a(f's_add_u32 s32, s27, {8192*s}')
        a(f's_add_u32 s34, s27, {8192*s+256}')
    def dma_go(s):
        slot = (s % NS) * STG
        for i in range(3):
            a(f'buffer_load_dwordx4 v10, s[8:11], s31 offen offset:{1024*i} lds'); vm.issue()
        for i in range(2):
            a(f's_add_u32 m0, s29, {slot+1056*i}')
            a(f'buffer_load_dwordx4 v8, s[12:15], s{(32, 34)[i]} offen lds'); vm.issue(('st', s))
    def dma(s): dma_pre(s); dma_go(s)
    stamp(a, 1)
    L0 = OPT.get('lag0', LAG)
    for s in range(L0): dma(s)
    stamp(a, 2)
    srd(a, 44, 16, W2F_BYTES, WS_W2F)
    a('s_mul_i32 s48, s20, 245760')
    a('s_lshl_b32 s49, s22, 10')
    a('s_add_u32 s48, s48, s49')
    RG = 32
    def w2(q):
        a(f's_add_u32 s31, s48, {4096*q}')
        if q < 40:
            a(f's_add_u32 m0, s49, {4096*q}')
            a('buffer_load_dwordx4 v10, s[44:47], s31 offen lds')
        else:
            a(f'buffer_load_dwordx4 {vr(RG+4*(q-40),4)}, v10, s[44:47], s31 offen')
        vm.issue(('w2', q))
    THR = [None]
    a('v_bfe_u32 v3, v2, 2, 3')
    a('v_mul_u32_u24 v12, 1056, v3')
    a('v_lshrrev_b32 v3, 5, v2')
    a('v_lshl_add_u32 v12, v3, 8, v12')
    a('v_and_b32 v3, 3, v2')
    a('v_lshl_add_u32 v12, v3, 3, v12')
    a('s_lshl_b32 s26, s22, 6')
    a('v_add_u32 v12, s26, v12')
    a('s_mov_b32 s33, 0x3f803f80')
    srd(a, 36, 16, 20*L*8, WS_SP)
    srd(a, 52, 16, 1280*128, WS_CNT)
    a('v_and_b32 v13, 31, v2')
    a('s_lshl_b32 s26, s22, 8')
    a('v_lshl_add_u32 v13, v13, 3, s26')
    issued = L0
    PF2 = {0: (), 1: (16,), 2: (8, 16), 3: (5, 10, 15, 19)}[OPT.get('pf2', 1)]
    NE = OPT.get('w2ne', 16); E0 = OPT.get('w2s0', 1)
    early = list(range(18)) + list(range(40, 60))
    done = []
    def issue(x): w2(x); done.append(x)
    QA = 18
    stubs = []
    for s in range(NK):
        if issued < NK: dma_pre(issued)
        vm.wait(('st', s))
        a('s_waitcnt lgkmcnt(0)')
        if s in (0, 7, 14): stamp(a, 3 + s//7)
        a('s_barrier')
        if issued < NK:
            dma_go(issued); issued += 1
        a(f's_cmp_eq_u32 s24, {s & 15}')
        a(f's_cbranch_scc1 K3_ST{s}')
        a.label(f'K3_STR{s}')
        stubs.append(s)
        if s < 17:
            tgt = min(NE, max(0, (s - E0 + 1) * NE // (17 - E0)))
            while len(done) < tgt: issue(early.pop(0))
        else:
            lim = {17: 23, 18: 28, 19: 33}[s]
            for _ in range(5):
                cand = [x for x in range(60) if x not in done and (x < lim or x >= 40)]
                if cand: issue(cand[0])
    for x in range(10): vm.wait(('w2', x))
    a('s_waitcnt lgkmcnt(0)')
    a('s_barrier')
    a('v_add_u32 v18, s49, v10')
    rest = [x for x in range(60) if x not in done]
    for x in rest[:OPT.get('xq', 8)]: issue(x)
    for k in range(2):
        if k == 1:
            a('s_cmp_ge_u32 s24, 4')
            a('s_cbranch_scc1 K3_ST1D')
        for r in range(4): a(f'v_mov_b32 v{20+r}, 0')
        for jj in range(4):
            for T in range(2):
                r = 112 + 8*k + 4*T + jj
                a(f'v_lshlrev_b32 v28, 16, v{r}')
                a(f'v_and_b32 v29, 0xffff0000, v{r}')
                a(f'v_add_f32 v{20+2*T}, v{20+2*T}, v28')
                a(f'v_fmac_f32 v{21+2*T}, v28, v28')
                a(f'v_add_f32 v{20+2*T}, v{20+2*T}, v29')
                a(f'v_fmac_f32 v{21+2*T}, v29, v29')
        a('v_permlane16_swap_b32 v20, v22')
        a('v_permlane16_swap_b32 v21, v23')
        a('v_add_f32 v20, v20, v22')
        a('v_add_f32 v21, v21, v23')
        a('v_mov_b32 v22, v20')
        a('v_mov_b32 v23, v21')
        a('v_permlane32_swap_b32 v20, v22')
        a('v_permlane32_swap_b32 v21, v23')
        a(f'v_add_f32 v{24+2*k}, v20, v22')
        a(f'v_add_f32 v{25+2*k}, v21, v23')
        a('s_lshl_b32 s35, s23, 10')
        a('s_lshl_b32 s26, s24, 14')
        a('s_add_u32 s26, s26, s35')
        if k: a(f's_add_u32 s26, s26, {16 << 14}')
        a('s_mov_b32 exec_hi, 0')
        a(f'buffer_store_dwordx2 {vr(24+2*k,2)}, v13, s[36:39], s26 offen sc1')
        a('s_mov_b32 exec_hi, -1')
    a.label('K3_ST1D')
    vm.wait_all(); a('s_waitcnt vmcnt(0)')
    a('s_barrier')
    for x in rest[OPT.get('xq', 8):]: issue(x)
    stamp(a, 6)
    a('s_barrier')
    if OPT.get('hpf', 0):
        NSH = 4 if M2 else 8
        srd(a, 12, 16, L*F*2, WS_HID)
        a('s_lshl_b32 s26, s5, 2')
        a('s_add_u32 s26, s26, s22')
        a('s_mul_i32 s26, s26, 49152')
        a('s_lshl_b32 s31, s63, 7')
        a('s_add_u32 s26, s26, s31')
        a(f's_add_u32 s26, s26, {OPT["hpf"]*1024}')
        a(f'v_mul_u32_u24 v30, {128*NSH}, v2')
        nl = (48 - OPT['hpf']) * 8 // NSH
        for i in range((nl + 63) // 64):
            cnt = min(64, nl - 64*i)
            if cnt < 64:
                a(f's_mov_b32 exec_lo, {hex((1 << min(cnt,32)) - 1)}')
                a(f's_mov_b32 exec_hi, {hex((1 << max(cnt-32,0)) - 1)}')
            a('buffer_load_dword v31, v30, s[12:15], s26 offen sc1'); vm.issue()
            a(f's_add_u32 s26, s26, {64*128*NSH}')
        a('s_mov_b64 exec, -1')
    a('v_add_u32 v19, 0xa000, v18')
    def wr(qq):
        vm.wait(('w2', qq))
        a(f'ds_write_b128 v{18 if qq < 50 else 19}, {vr(RG+4*(qq-40),4)} offset:{4096*((qq-40) % 10)}')
    for x in range(20): vm.wait(('w2', x))
    a('s_barrier')
    for qq in range(40, 44): wr(qq)
    for x in range(40): vm.wait(('w2', x))
    a('s_barrier')
    for qq in range(44, 54): wr(qq)
    a('s_waitcnt lgkmcnt(4)')
    a('s_barrier')
    for qq in range(54, 60): wr(qq)
    a('s_waitcnt lgkmcnt(0)')
    a('s_barrier')
    stamp_end(a, 1 if OPT.get('merged', 1) else 2)
    a('s_endpgm')
    for s in stubs:
        a.label(f'K3_ST{s}')
        a(f'v_add_u32 v14, {R0 + (s % NS) * STG}, v12')
        for T in range(2):
            for hh in range(2):
                a(f'ds_read_b64_tr_b16 {vr(112+8*(s>>4)+4*T+2*hh,2)}, v14 offset:{hh*512+T*32}')
        a(f's_branch K3_STR{s}')

    a.label('K3_COMP')
    if OPT.get('pf3', 1):
        a(f's_cmp_ge_u32 s2, {OPT.get("pf3n", 16)}')
        a('s_cbranch_scc1 K3_NOPF')
        a('v_lshlrev_b32 v1, 7, v0')
        a('s_getpc_b64 s[64:65]')
        a.label('K3_PFH')
        a('s_sub_u32 s64, s64, K3_PFH-k3_kernel')
        a('s_subb_u32 s65, s65, 0')
        a('s_mov_b32 s66, CODE_END-k3_kernel')
        a('s_mov_b32 s67, 0x20000')
        a('buffer_load_dword v240, v1, s[64:67], 0 offen')
        a.label('K3_NOPF')
    if OPT.get('cp34', 0): a(f's_setprio {OPT["cp34"]}')
    a('s_and_b32 s25, s22, 1')
    a('s_lshr_b32 s26, s22, 1')
    HA = 4; WA = 6
    a('v_bfe_u32 v3, v2, 2, 3')
    a('v_mul_u32_u24 v4, 1056, v3')
    a('v_lshrrev_b32 v3, 5, v2')
    a('v_lshl_add_u32 v4, v3, 8, v4')
    a('v_and_b32 v3, 3, v2')
    a('v_lshl_add_u32 v4, v3, 3, v4')
    a('s_lshl_b32 s29, s25, 7')
    a(f's_add_u32 s29, s29, {R0}')
    a('v_add_u32 v4, s29, v4')
    a(f'v_add_u32 v5, {2*STG}, v4')
    a('s_mul_i32 s29, s26, 3072')
    a(f's_add_u32 s29, s29, {R0+HIMG}')
    a('v_lshl_add_u32 v6, v2, 4, s29')
    a(f'v_add_u32 v7, {2*STG}, v6')
    a('v_lshlrev_b32 v8, 4, v2')
    a('v_bfe_u32 v3, v2, 4, 1')
    a('v_mul_u32_u24 v9, 49152, v3')
    a('v_lshrrev_b32 v3, 5, v2')
    a('v_lshl_add_u32 v9, v3, 8, v9')
    a('v_and_b32 v3, 15, v2')
    a('v_lshl_add_u32 v9, v3, 4, v9')
    a('s_waitcnt lgkmcnt(0)')
    srd(a, 12, 16, L*F*2, 0 if OPT.get('hid0') else WS_HID)
    srd(a, 52, 16, 1280*128, WS_CNT)
    ACC = 16
    FB = 112
    lg = Cnt(a, 'lgkmcnt', 15)
    def reads(s):
        sl = s % NS; st = sl // 2; off = (sl % 2) * STG
        fb = FB + 40 * (s % 2)
        l = []
        def W(w):
            fr = (w % 3) + 6 * (w // 3)
            def f():
                a(f'ds_read_b128 {vr(fb+4*w,4)}, v{WA+st} offset:{off + fr*1024}'); lg.issue((s, 'W', w))
            l.append(f)
        def H(tt):
            for hh in range(2):
                def f(hh=hh):
                    a(f'ds_read_b64_tr_b16 {vr(fb+24+4*tt+2*hh,2)}, v{HA+st} offset:{off + hh*512 + tt*32}'); lg.issue((s, 'H', tt))
                l.append(f)
        H(0); W(0); W(1); W(2); W(3); W(4); W(5); H(1); H(2); H(3)
        return l
    order = [(tt, w if tt % 2 == 0 else 5 - w) for tt in range(4) for w in range(6)]
    stamp(a, 1)
    a('s_barrier')
    stamp(a, 2)
    for f in reads(0): f()
    if OPT.get('vpf', 0):
        srd(a, 44, 16, W2F_BYTES, WS_W2F)
        a('s_lshl_b32 s27, s19, 2')
        a('s_add_u32 s27, s27, s22')
        a('s_mul_i32 s27, s27, 7680')
        a('s_mul_i32 s28, s20, 245760')
        a('s_add_u32 s27, s27, s28')
        a('v_lshlrev_b32 v3, 7, v2')
        a('buffer_load_dword v15, v3, s[44:47], s27 offen')
    BARPOS = OPT.get('barpos', 6)
    a('s_lshl_b32 s27, s23, 1')
    a('s_add_u32 s30, s27, s25')
    a(f's_mul_i32 s27, s30, {4*49152}')
    a('s_mul_i32 s28, s24, 3072')
    a('s_add_u32 s27, s27, s28')
    a('s_lshl_b32 s28, s26, 11')
    a('s_lshl_b32 s29, s26, 9')
    a('s_add_u32 s29, s29, 1024')
    a('s_add_u32 s28, s28, s27')
    a('s_add_u32 s29, s29, s27')
    def mf(s, tt, w):
        fb = FB + 40 * (s % 2)
        lg.wait((s, 'W', w)); lg.wait((s, 'H', tt))
        acc = ACC + 4*(6*tt+w)
        a(f'v_mfma_f32_16x16x32_bf16 {vr(acc,4)}, {vr(fb+4*w,4)}, {vr(fb+24+4*tt,4)}, {"0" if s == 0 else vr(acc,4)}')
    for s in range(NK-2):
        nxt = reads(s+1)
        if s == 10: stamp(a, 3)
        for k, (tt, w) in enumerate(order):
            if k == BARPOS: lg.wait_all()
            mf(s, tt, w)
            if k == BARPOS: a('s_barrier')
            if k >= BARPOS and nxt: nxt.pop(0)()
        assert not nxt
    HST = ['sc1', '', 'sc0 sc1', 'nt'][OPT.get('x_hst', 0)]
    SG = 232
    def epi(tt):
        r = Rec()
        b = ACC + 24*tt
        for p in range(12): r(f'v_max_f32 v{b+p}, 0, v{b+p}')
        if tt == 3:
            for p in range(6): r(f'v_pk_mul_f32 {vr(b+2*p,2)}, {vr(b+2*p,2)}, {vr(b+12+2*p,2)}')
        else:
            for p in range(12): r(f'v_mul_f32 v{b+p}, v{b+p}, v{b+12+p}')
        o = b + 12
        sg_ = SG + 4*(tt >> 1) + 2*(tt & 1)
        for q_ in range(2):
            r(f'v_cvt_pk_bf16_f32 v{o+2*q_}, v{b+4*q_}, v{b+4*q_+1}')
            r(f'v_cvt_pk_bf16_f32 v{o+2*q_+1}, v{b+4*q_+2}, v{b+4*q_+3}')
        r(f'buffer_store_dwordx4 {vr(o,4)}, v8, s[12:15], s28 offen {HST}')
        r(f'v_cvt_pk_bf16_f32 v{sg_}, v{b+8}, v{b+9}')
        r(f'v_cvt_pk_bf16_f32 v{sg_+1}, v{b+10}, v{b+11}')
        r('s_add_u32 s28, s28, 49152')
        if tt & 1:
            g4 = SG + 4*(tt >> 1)
            r(f'v_permlane16_swap_b32 v{g4}, v{g4+2}')
            r(f'v_permlane16_swap_b32 v{g4+1}, v{g4+3}')
            r(f'buffer_store_dwordx4 {vr(g4,4)}, v9, s[12:15], s29 offen {HST}')
            r(f's_add_u32 s29, s29, {2*49152}')
        return r.l
    A_, B_ = NK-2, NK-1
    seq = [(A_, 0), (A_, 1), (B_, 0), (B_, 1), (A_, 2), (B_, 2), (A_, 3), (B_, 3)]
    nxt = reads(B_)
    side = []; delay = 0; k = 0
    for gi, (s, tt) in enumerate(seq):
        for w in range(6):
            if k == 0: lg.wait_all()
            if k == 13: lg.wait_all()
            mf(s, tt, w)
            if k == 0 or k == 13: a('s_barrier')
            for _ in range(2):
                if nxt: nxt.pop(0)()
                elif side and delay <= 0: a(side.pop(0))
            delay -= 1
            k += 1
        if s == B_:
            if not side: delay = 1
            side += epi(tt)
    stamp(a, 4)
    for t_ in side: a(t_)
    a('s_mov_b32 s31, s5')
    a('s_lshl_b32 s32, s31, 2')
    a('s_lshl_b32 s27, s25, 1')
    a('s_add_u32 s32, s32, s27')
    a('s_add_u32 s32, s32, s26')
    a('s_xor_b32 s27, s32, 1')
    a('s_mul_i32 s33, s32, 49152')
    a('s_mul_i32 s58, s27, 49152')
    a('s_mul_i32 s27, s26, 5120')
    a('v_add_u32 v14, s27, v8')
    a('v_add_u32 v4, 0x10000, v14')
    a('v_add_u32 v5, 0x20000, v14')
    a('v_lshrrev_b32 v3, 4, v2')
    a('v_and_b32 v12, 15, v2')
    a('v_lshlrev_b32 v6, 10, v3')
    a('v_lshl_add_u32 v6, v12, 1, v6')
    a('s_lshl_b32 s27, s22, 12')
    a('s_add_u32 s27, s27, 102400')
    a('v_mul_u32_u24 v7, 176, v12')
    a('v_lshl_add_u32 v7, v3, 3, v7')
    a('v_add_u32 v7, s27, v7')
    a('s_mov_b32 s28, 0x199a')
    for i in range(3):
        a(f'v_add_u32 v15, {64*i}, v2')
        a('v_mul_u32_u24 v13, s28, v15')
        a('v_lshrrev_b32 v13, 16, v13')
        a('v_lshlrev_b32 v15, 4, v15')
        a(f'v_lshl_add_u32 v{241+i}, v13, 4, v15')
        a(f'v_add_u32 v{241+i}, s27, v{241+i}')
        a('v_mul_u32_u24 v13, 1120, v13')
        a(f'v_add_u32 v{244+i}, v13, v15')
    a('v_mul_u32_u24 v9, 81920, v3')
    a('v_lshl_add_u32 v9, v12, 3, v9')
    srd(a, 36, 16, 0x280000, WS_HT)
    srd(a, 40, 16, 20*L*8, WS_SP)
    srd(a, 44, 6, L*D*2)
    a('v_mov_b32 v10, 1')
    a('v_lshlrev_b32 v13, 7, v2')
    a('s_lshl_b32 s30, s23, 11')
    a('s_lshl_b32 s27, s24, 7')
    a('s_add_u32 s30, s30, s27')
    a('s_lshr_b32 s34, s31, 1')
    a('s_lshl_b32 s34, s34, 11')
    a('v_lshlrev_b32 v11, 7, v2')
    a(f's_mul_i32 s56, s63, {RK*1024}')
    a('s_lshl_b32 s27, s26, 10')
    a('s_add_u32 s56, s56, s27')
    AC2 = 16; HR = 56; SPR = 76; WB = 88; NWB = 2; HB = 128; NHB = OPT.get('nhb', 8)
    a('s_waitcnt vmcnt(0)')
    stamp(a, 5)
    a('s_barrier')
    a('s_cmp_lg_u32 s22, 0')
    a('s_cbranch_scc1 K3_NOSIG')
    a('s_mov_b64 exec, 1')
    a('buffer_store_dword v10, v13, s[52:55], s30 offen sc1')
    a('s_mov_b64 exec, -1')
    a.label('K3_NOSIG')
    vm = Cnt(a, 'vmcnt', 63); lg = Cnt(a, 'lgkmcnt', 15)
    HD = OPT.get('hd', 6)
    a('s_add_u32 s57, s33, s56')
    a('s_add_u32 s59, s58, s56')
    def hload1(n, part):
        fl = "sc1" if OPT.get("hsc1",1) else ""
        sreg = (57, 59)[part]
        a(f'buffer_load_dwordx4 {vr(HB+8*(n%NHB)+4*part,4)}, v8, s[12:15], s{sreg} offen offset:{2048*(n&1)} {fl}')
        vm.issue(('h', n) if part else None)
        if n & 1: a(f's_add_u32 s{sreg}, s{sreg}, 4096')
    def hload(n): hload1(n, 0); hload1(n, 1)
    def wreads(n):
        pos = ((2*n) % 32) * 5120
        l = []
        for tau in range(5):
            off = pos + tau*1024
            base = (14, 4, 5)[off >> 16]
            def f(tau=tau, off=off, base=base):
                a(f'ds_read_b128 {vr(WB+20*(n%NWB)+4*tau,4)}, v{base} offset:{off & 0xffff}'); lg.issue((n, tau))
            l.append(f)
        return l
    def resid():
        a('s_lshr_b32 s27, s32, 3')
        a('s_mul_i32 s27, s27, 163840')
        a('s_mul_i32 s28, s20, 20480')
        a('s_add_u32 s27, s27, s28')
        a('s_and_b32 s28, s32, 7')
        a('s_lshl_b32 s28, s28, 5')
        a('s_add_u32 s27, s27, s28')
        l = []
        for tau in range(5):
            for r in range(4):
                def f(tau=tau, r=r):
                    a(f'buffer_load_short_d16_hi v{HR+4*tau+r}, v6, s[36:39], s27 offen offset:{r*256}'); vm.issue('res')
                    if r == 3: a('s_add_u32 s27, s27, 4096')
                l.append(f)
        return l
    for f in wreads(0): f()
    if OPT.get('otouch', 0):
        a(f's_mul_i32 s27, s32, {16*1280}')
        a('s_mov_b64 exec, 1')
        a('buffer_load_dword v240, v7, s[44:47], s27 offen'); vm.issue()
        a('s_mov_b64 exec, -1')
    for r in range(20): a(f'v_mov_b32 v{HR+r}, 0')
    if not OPT.get('x_nores'):
        for f in resid(): f()
    if OPT.get('x_delay'): a(f's_sleep {OPT["x_delay"]}')
    a('s_cmp_lg_u32 s22, 0')
    a('s_cbranch_scc1 K3_POLLX')
    if OPT.get('pw0', 0): a('s_waitcnt vmcnt(0)')
    a('s_mov_b64 exec, 0xffff')
    a('s_mov_b32 s35, 0')
    a.label('K3_POLL')
    a(f's_sleep {OPT.get("sleep", 4)}')
    a('buffer_load_dword v12, v11, s[52:55], s34 offen sc1')
    a('s_add_u32 s35, s35, 1')
    a(f's_cmp_ge_u32 s35, {SPIN_MAX}')
    a('s_cbranch_scc1 K3_POLLD')
    a('s_waitcnt vmcnt(0)')
    a('v_cmp_ne_u32 vcc, 1, v12')
    if OPT.get('pshr', 0):
        a('s_and_b64 exec, exec, vcc')
        a('s_cbranch_execnz K3_POLL')
    elif not OPT.get('x_nopoll'): a('s_cbranch_vccnz K3_POLL')
    a.label('K3_POLLD')
    a('s_mov_b64 exec, -1')
    a.label('K3_POLLX')
    a('s_barrier')
    stamp(a, 6)
    for n in range(HD): hload(n)
    extra = []
    NI = 24
    for n in range(NI - 2):
        nx = n + 1
        nxt = wreads(nx) if nx < NI else []
        vm.wait(('h', n))
        if OPT.get('x_st') and n in (4, 12, 20): stamp(a, {4:1, 12:2, 20:3}[n])
        for k in range(10):
            tau, tl = k >> 1, (k & 1) ^ ((k >> 1) & 1)
            lg.wait((n, tau))
            acc = AC2 + 20*tl + 4*tau
            if k == 0 and nx in (4, 8): lg.wait_all()
            a(f'v_mfma_f32_16x16x32_bf16 {vr(acc,4)}, {vr(WB+20*(n%NWB)+4*tau,4)}, {vr(HB+8*(n%NHB)+4*tl,4)}, {"0" if n == 0 else vr(acc,4)}')
            if k == 0 and nx in (4, 8, 16, 20): a('s_barrier')
            if k < 5 and nxt: nxt.pop(0)()
            if k in (5, 7) and n + HD < NI:
                if OPT.get('x_nohl'): vm.tags[('h', n + HD)] = 0
                else: hload1(n + HD, (k - 5) // 2)
            if k in (6, 8, 9) and extra: extra.pop(0)()
        if n == 4:
            a('s_lshl_b32 s29, s32, 7')
            for i in range(5):
                a(f'buffer_load_dwordx2 {vr(SPR+2*i,2)}, v9, s[40:43], s29 offen sc1'); vm.issue('sp')
                a('s_add_u32 s29, s29, 16384')
        if n == 11:
            vm.wait('sp')
            r = Rec()
            for i in (1, 2, 3, 4):
                r(f'v_add_f32 v{SPR}, v{SPR}, v{SPR+2*i}')
                r(f'v_add_f32 v{SPR+1}, v{SPR+1}, v{SPR+2*i+1}')
            for sw in ('32', '16'):
                r(f'v_mov_b32 v{SPR+2}, v{SPR}')
                r(f'v_mov_b32 v{SPR+3}, v{SPR+1}')
                r(f'v_permlane{sw}_swap_b32 v{SPR}, v{SPR+2}')
                r(f'v_permlane{sw}_swap_b32 v{SPR+1}, v{SPR+3}')
                r(f'v_add_f32 v{SPR}, v{SPR}, v{SPR+2}')
                r(f'v_add_f32 v{SPR+1}, v{SPR+1}, v{SPR+3}')
            r(f'v_mul_f32 v{SPR}, {f2u(1.0/640)}, v{SPR}')
            r(f'v_mul_f32 v13, {f2u(1.0/640)}, v{SPR+1}')
            r(f'v_fma_f32 v13, -v{SPR}, v{SPR}, v13')
            r('v_max_f32 v13, 0, v13')
            round_bf16(r, 13, 13)
            r(f'v_add_f32 v13, {f2u(1e-5)}, v13')
            round_bf16(r, 13, 13)
            r('v_sqrt_f32 v13, v13')
            round_bf16(r, 13, 13)
            r('v_rcp_f32 v13, v13')
            r('v_mul_f32 v13, v13, v13')
            extra = [(lambda t=t: a(t)) for t in r.l]
    for f in extra: f()
    a('s_mul_i32 s27, s22, 5120')
    a('s_add_u32 s27, s27, 81920')
    a('v_add_u32 v10, s27, v8')
    a('s_xor_b32 s28, s22, 2')
    a('s_mul_i32 s28, s28, 5120')
    a('s_add_u32 s28, s28, 81920')
    a('v_add_u32 v11, s28, v8')
    if OPT.get('x_st2'): stamp(a, 1)
    nxt = wreads(NI - 1)
    def mf2(n, tau, tl):
        lg.wait((n, tau))
        acc = AC2 + 20*tl + 4*tau
        a(f'v_mfma_f32_16x16x32_bf16 {vr(acc,4)}, {vr(WB+20*(n%NWB)+4*tau,4)}, {vr(HB+8*(n%NHB)+4*tl,4)}, {vr(acc,4)}')
    vm.wait(('h', NI - 2))
    for tau in range(5):
        mf2(NI - 2, tau, 1); nxt.pop(0)()
    for tau in range(3): mf2(NI - 2, tau, 0)
    vm.wait(('h', NI - 1))
    for tau in range(5): mf2(NI - 1, tau, 1)
    rest = [(NI - 2, 3), (NI - 2, 4)] + [(NI - 1, tau) for tau in range(5)]
    for k, (n, tau) in enumerate(rest):
        mf2(n, tau, 0)
        if 1 <= k <= 5:
            a(f'ds_write_b128 v10, {vr(AC2+20+4*(k-1),4)} offset:{1024*(k-1)}'); lg.issue()
    a(f's_mul_i32 s27, s32, {16*1280}')
    a('s_mul_i32 s28, s20, 160')
    a('s_add_u32 s27, s27, s28')
    a('s_waitcnt lgkmcnt(0)')
    if OPT.get('x_st2'): stamp(a, 2)
    a('s_barrier')
    if OPT.get('x_st2'): stamp(a, 3)
    for tau in range(5):
        a(f'ds_read_b128 {vr(WB+4*tau,4)}, v11 offset:{1024*tau}')
    for r in range(20): a(f'v_fmac_f32 v{HR+r}, v{AC2+r}, v13')
    for tau in range(5):
        a('s_waitcnt lgkmcnt(4)')
        for r in range(4):
            a(f'v_fmac_f32 v{HR+4*tau+r}, v{WB+4*tau+r}, v13')
        a(f'v_cvt_pk_bf16_f32 v{HR+4*tau}, v{HR+4*tau}, v{HR+4*tau+1}')
        a(f'v_cvt_pk_bf16_f32 v{HR+4*tau+1}, v{HR+4*tau+2}, v{HR+4*tau+3}')
        a(f'ds_write_b64 v7, {vr(HR+4*tau,2)} offset:{32*tau}')
    for i in range(3):
        a(f'ds_read_b128 {vr(AC2+4*i,4)}, v{241+i}')
    for i in range(3):
        a(f's_waitcnt lgkmcnt({2-i})')
        if i == 2: a('s_mov_b32 exec_hi, 0')
        a(f'buffer_store_dwordx4 {vr(AC2+4*i,4)}, v{244+i}, s[44:47], s27 offen {OST}')
    a('s_mov_b32 exec_hi, -1')
    stamp_end(a, 1 if OPT.get('merged', 1) else 2)
    a.label('K3_END')
    a('s_endpgm')
    return a
```
